```python
import torch

def _softmax(x, axis=-1):
    return torch.softmax(x, dim=axis)
def _gelu(x):
    return torch.nn.functional.gelu(x, approximate="tanh")
def _silu(x):
    return torch.nn.functional.silu(x)
def _sigmoid(x):
    return torch.sigmoid(x)
def _layernorm(x, axis=-1, eps=1e-5):
    m = x.mean(dim=axis, keepdim=True)
    v = x.var(dim=axis, keepdim=True, unbiased=False)
    return (x - m) / torch.sqrt(v + eps)
def _scatter_add(tgt, idx, src, axis=0):
    return tgt.clone().index_add_(axis, idx, src)
def _segment_sum(src, seg, n):
    out = torch.zeros((n,) + src.shape[1:], dtype=src.dtype)
    return out.index_add_(0, seg, src)
def _pad(x, pw):
    flat = tuple(v for pair in reversed(pw) for v in pair)
    return torch.nn.functional.pad(x, flat)

kernel_name = 'parallel_sum__ssm_conv_s5__glu_gated_glu__prompt'

def setup_inputs():

    _w = (lambda a: (lambda t: t.to(torch.bfloat16) if t.is_floating_point() else t)(torch.as_tensor(a)))
    def _A_setup():
        B, S, D = 1, 2048, 640
        P = D
        Lambda_re = -0.5 * (lambda _x: torch.exp(torch.as_tensor(_x)))((lambda *s: torch.randn(*s, dtype=torch.bfloat16) * 0.8)(P))
        Lambda_im = (lambda *s: torch.randn(*s, dtype=torch.bfloat16) * 0.8)(P) * 1.0
        B_re = (lambda *s: torch.randn(*s, dtype=torch.bfloat16) * 0.8)(P, D) * (D ** -0.5)
        B_im = (lambda *s: torch.randn(*s, dtype=torch.bfloat16) * 0.8)(P, D) * (D ** -0.5)
        C_re = (lambda *s: torch.randn(*s, dtype=torch.bfloat16) * 0.8)(D, P) * (P ** -0.5)
        C_im = (lambda *s: torch.randn(*s, dtype=torch.bfloat16) * 0.8)(D, P) * (P ** -0.5)
        log_dt = (lambda *s: torch.randn(*s, dtype=torch.bfloat16) * 0.8)(P) * 0.3 - 2.0
        Dskip = (lambda *s: torch.randn(*s, dtype=torch.bfloat16) * 0.8)(D)
        return {
            "x": _w((lambda *s: torch.randn(*s, dtype=torch.bfloat16) * 0.05)(B, S, D)),
            "Lambda_re": _w(Lambda_re),
            "Lambda_im": _w(Lambda_im),
            "B_re": _w(B_re),
            "B_im": _w(B_im),
            "C_re": _w(C_re),
            "C_im": _w(C_im),
            "log_dt": _w(log_dt),
            "Dskip": _w(Dskip),
        }
    _A_in = _A_setup()

    def _B_setup():
        B, S, D, F = 1, 2048, 640, 1728
        return {
            "x": _w((lambda *s: torch.randn(*s, dtype=torch.bfloat16) * 0.05)(B, S, D)),
            "w_gate": _w((lambda *s: torch.randn(*s, dtype=torch.bfloat16) * 0.05)(D, F)),
            "w_up": _w((lambda *s: torch.randn(*s, dtype=torch.bfloat16) * 0.05)(D, F)),
            "w_down": _w((lambda *s: torch.randn(*s, dtype=torch.bfloat16) * 0.05)(F, D)),
        }
    _B_in = _B_setup()

    return {
        "A_x": _A_in["x"],
        "A_Lambda_re": _A_in["Lambda_re"],
        "A_Lambda_im": _A_in["Lambda_im"],
        "A_B_re": _A_in["B_re"],
        "A_B_im": _A_in["B_im"],
        "A_C_re": _A_in["C_re"],
        "A_C_im": _A_in["C_im"],
        "A_log_dt": _A_in["log_dt"],
        "A_Dskip": _A_in["Dskip"],
        "B_x": _B_in["x"],
        "B_w_gate": _B_in["w_gate"],
        "B_w_up": _B_in["w_up"],
        "B_w_down": _B_in["w_down"],
    }

def reference(A_x, A_Lambda_re, A_Lambda_im, A_B_re, A_B_im, A_C_re, A_C_im, A_log_dt, A_Dskip, B_x, B_w_gate, B_w_up, B_w_down):
    def _A_ref(x, Lambda_re, Lambda_im, B_re, B_im, C_re, C_im, log_dt, Dskip):
        Bsz, L, H = x.shape
        Lam = Lambda_re + 1j * Lambda_im
        Bmat = B_re + 1j * B_im
        Cmat = C_re + 1j * C_im
        dt = torch.exp(log_dt)
        Lam_bar = torch.exp(dt * Lam)
        B_bar = ((Lam_bar - 1.0) / Lam)[:, None] * Bmat
        Bu = torch.einsum("bld,pd->blp", x + 0j, B_bar)
        h = torch.zeros_like(Bu[:, 0, :])
        hs = []
        for t in range(L):
            h = Lam_bar[None, :] * h + Bu[:, t, :]
            hs.append(h)
        hseq = torch.stack(hs, 1)
        y = 2.0 * torch.einsum("blp,dp->bld", hseq, Cmat).real + x * Dskip[None, None, :]
        return y

    def _B_ref(x, w_gate, w_up, w_down):
        g = torch.einsum("bsd,df->bsf", x, w_gate)
        u = torch.einsum("bsd,df->bsf", x, w_up)
        h = _sigmoid(g) * u
        return torch.einsum("bsf,fd->bsd", h, w_down)

    x = A_x
    xn = _layernorm(x, axis=-1)
    return x + _A_ref(xn, A_Lambda_re, A_Lambda_im, A_B_re, A_B_im, A_C_re, A_C_im, A_log_dt, A_Dskip) + _B_ref(xn, B_w_gate, B_w_up, B_w_down)
```

```python
import re

class Asm:
    def __init__(self):
        self.lines = []
        self.vm_n = 0; self.vm_done = 0
        self.lg_n = 0; self.lg_done = 0
        self.uid = 0
    def e(self, s):
        for ln in s.strip('\n').split('\n'):
            ln = ln.strip()
            if ln: self.lines.append(ln)
    def label(self, name): self.lines.append(name + ':')
    def newlabel(self, base):
        self.uid += 1
        return f'L_{base}_{self.uid}'
    def vm(self, s):
        self.e(s); self.vm_n += 1
        return self.vm_n - 1
    def lds(self, s):
        self.e(s); self.lg_n += 1
        return self.lg_n - 1
    def _cnt(self, op, n, done, mx):
        if op is None or op < done: return None
        return min(n - op - 1, mx)
    def wait(self, vm=None, lg=None):
        v = self._cnt(vm, self.vm_n, self.vm_done, 63)
        l = self._cnt(lg, self.lg_n, self.lg_done, 15)
        parts = []
        if v is not None:
            parts.append(f'vmcnt({v})'); self.vm_done = max(self.vm_done, self.vm_n - v)
        if l is not None:
            parts.append(f'lgkmcnt({l})'); self.lg_done = max(self.lg_done, self.lg_n - l)
        if parts:
            self.e('s_waitcnt ' + ' '.join(parts)); return True
        return False
    def wait_all(self, vm=True, lg=True):
        parts = []
        if vm: parts.append('vmcnt(0)'); self.vm_done = self.vm_n
        if lg: parts.append('lgkmcnt(0)'); self.lg_done = self.lg_n
        self.e('s_waitcnt ' + ' '.join(parts))
    def state(self): return (self.vm_n, self.vm_done, self.lg_n, self.lg_done)
    def restore(self, st): self.vm_n, self.vm_done, self.lg_n, self.lg_done = st
    def srd(self, d, ptr, nbytes, add=0):
        if add == 0:
            self.e(f's_mov_b32 s{d}, s{ptr}\ns_mov_b32 s{d+1}, s{ptr+1}')
        elif add > 0:
            self.e(f's_add_u32 s{d}, s{ptr}, {add}\ns_addc_u32 s{d+1}, s{ptr+1}, 0')
        else:
            self.e(f's_sub_u32 s{d}, s{ptr}, {-add}\ns_subb_u32 s{d+1}, s{ptr+1}, 0')
        self.e(f's_mov_b32 s{d+2}, {nbytes}\ns_mov_b32 s{d+3}, 0x00020000')
    def sdiv(self, dst, src, div, maxv):
        sh = 16
        while True:
            m = -(-(1 << sh) // div)
            if all((u * m) >> sh == u // div for u in range(maxv)) and maxv * m < (1 << 31): break
            sh += 1
            assert sh < 30
        self.e(f's_mul_i32 s{dst}, s{src}, {m}\ns_lshr_b32 s{dst}, s{dst}, {sh}')
    def text(self):
        out = []
        for ln in self.lines:
            if ln.endswith(':') or ln.startswith('.'): out.append(ln)
            else: out.append('    ' + ln)
        return '\n'.join(out) + '\n'

def V(a, n=1): return f'v{a}' if n == 1 else f'v[{a}:{a+n-1}]'
def A(a, n=1): return f'a{a}' if n == 1 else f'a[{a}:{a+n-1}]'
def S(a, n=1): return f's{a}' if n == 1 else f's[{a}:{a+n-1}]'
def R(r, n=1):
    return V(r, n) if r < 256 else A(r - 256, n)

_reg = re.compile(r'(-?\|?)\b([vas])(\d+)\b|\b([vas])\[(\d+):(\d+)\]|\b(vcc|exec|m0|scc)(_lo|_hi)?\b')
def regs_of(op):
    out = set()
    for m in _reg.finditer(op):
        if m.group(2): out.add((m.group(2), int(m.group(3))))
        elif m.group(4):
            for i in range(int(m.group(5)), int(m.group(6)) + 1): out.add((m.group(4), i))
        else: out.add((m.group(7), 0))
    return out
TRANS = ('v_exp_f32', 'v_log_f32', 'v_rcp_f32', 'v_rsq_f32', 'v_sqrt_f32', 'v_sin_f32', 'v_cos_f32')
def parse(ln):
    ln = ln.split(';')[0].strip()
    if not ln or ln.endswith(':') or ln.startswith('.'): return None
    sp = ln.split(None, 1)
    op = sp[0]; rest = sp[1] if len(sp) > 1 else ''
    ops = [o.strip() for o in rest.split(',')] if rest else []
    d = dict(op=op, w=set(), r=set(), text=ln)
    isv = op.startswith('v_')
    d['valu'] = isv and not op.startswith('v_mfma')
    d['mfma'] = op.startswith('v_mfma')
    d['vmem'] = op.startswith(('buffer_', 'global_'))
    d['ds'] = op.startswith('ds_')
    d['salu'] = op.startswith('s_')
    d['dpp'] = '_dpp' in op or 'row_' in rest or 'quad_perm' in rest
    if d['mfma']:
        d['w'] = regs_of(ops[0]); d['A'] = regs_of(ops[1]); d['B'] = regs_of(ops[2]); d['C'] = regs_of(ops[3]); d['r'] = d['A'] | d['B'] | d['C']
        d['passes'] = 8 if '32x32' in op else 4
    elif isv:
        if op.startswith('v_cmp'):
            d['w'] = regs_of(ops[0]); d['r'] = set().union(*[regs_of(o) for o in ops[1:]])
            if op.startswith('v_cmpx'): d['w'].add(('exec', 0))
        elif op.startswith('v_permlane'):
            d['w'] = regs_of(ops[0]) | regs_of(ops[1]); d['r'] = set(d['w'])
        elif op in ('v_nop',): pass
        else:
            d['w'] = regs_of(ops[0]); d['r'] = set().union(*[regs_of(o) for o in ops[1:]]) if len(ops) > 1 else set()
            if op.startswith(('v_fmac', 'v_dot2c', 'v_pk_fmac', 'v_writelane')) or d['dpp']: d['r'] |= d['w']
            if '_co_' in op: d['w'] |= regs_of(ops[1])
    elif d['vmem']:
        allr = [regs_of(o) for o in ops]
        if 'load' in op and ' lds' not in (' ' + rest) and '_lds_' not in op:
            d['w'] = allr[0]; d['r'] = set().union(*allr[1:])
        else:
            d['r'] = set().union(*allr) if allr else set()
            if ' lds' in (' ' + rest) or '_lds_' in op: d['r'].add(('m0', 0))
            if 'store' in op and ('x4' in op or 'x3' in op):
                d['sdata'] = allr[0] if op.startswith('buffer') else allr[1]
            if 'atomic' in op and 'sc0' in rest: d['w'] = allr[0]
    elif d['ds']:
        allr = [regs_of(o) for o in ops]
        if 'read' in op or 'permute' in op or 'swizzle' in op:
            d['w'] = allr[0]; d['r'] = set().union(*allr[1:])
        else: d['r'] = set().union(*allr)
    elif d['salu']:
        if op.startswith(('s_cmp', 's_cbranch', 's_branch', 's_waitcnt', 's_nop', 's_barrier', 's_endpgm', 's_setprio', 's_sleep')):
            d['r'] = set().union(*[regs_of(o) for o in ops]) if ops and op.startswith('s_cmp') else set()
        else:
            d['w'] = regs_of(ops[0]); d['r'] = set().union(*[regs_of(o) for o in ops[1:]]) if len(ops) > 1 else set()
            if 'saveexec' in op: d['w'].add(('exec', 0))
    d['states'] = (int(ops[0], 0) + 1) if op == 's_nop' else 1
    return d
def check_hazards(lines):
    ins = [(i, p) for i, p in ((i, parse(l)) for i, l in enumerate(lines)) if p]
    errs = []
    for j, (lj, c) in enumerate(ins):
        dist = 0
        for i in range(j - 1, max(-1, j - 24), -1):
            li, p = ins[i]
            need = 0; why = ''
            vw = {r for r in p['w'] if r[0] in 'va'}
            sw = {r for r in p['w'] if r[0] in ('s', 'vcc')}
            def upd(n, w):
                nonlocal need, why
                if n > need: need, why = n, w
            if p['valu']:
                if c['mfma'] and vw & c['r']: upd(2, 'valu->mfma')
                if c['valu'] and c['dpp'] and vw & c['r']: upd(2, 'valu->dpp')
                if c['op'].startswith('v_permlane') and vw & c['r']: upd(2, 'valu->permlane')
                if c['op'].startswith(('v_readlane', 'v_readfirstlane')) and vw & c['r']: upd(1, 'valu->readlane')
                if p['op'].replace('_e32', '').replace('_e64', '') in TRANS and c['valu'] and vw & c['r'] and c['op'] not in TRANS: upd(1, 'trans->valu')
                if p['op'].startswith('v_dot2') and (c['valu'] or c['vmem'] or c['ds'] or c['mfma']) and vw & (c['r'] | c['w']):
                    same = c['op'] == p['op']
                    if not same: upd(3, 'dot->other')
                    else:
                        ops = [o.strip() for o in c['text'].split(None, 1)[1].split(',')]
                        ab = regs_of(ops[1]) | regs_of(ops[2])
                        if vw & ab: upd(3, 'dot->dot AB')
                if sw and c['valu'] and sw & c['r']: upd(2, 'valu sgpr->valu')
                if sw and c['vmem'] and sw & c['r']: upd(5, 'valu sgpr->vmem')
                if sw and c['op'].startswith(('v_readlane', 'v_writelane')) and sw & c['r']: upd(4, 'valu sgpr->lane sel')
                if ('exec', 0) in p['w'] and c['dpp']: upd(5, 'exec->dpp')
                if ('exec', 0) in p['w'] and c['mfma']: upd(4, 'exec->mfma')
            if p['mfma']:
                n = {4: 8, 8: 12}[p['passes']]
                if c['mfma']:
                    if vw & (c['A'] | c['B']): upd(n, 'mfma->mfma AB')
                    if vw & c['C'] and not (c['C'] == vw and c['passes'] == p['passes']): upd(n - 2, 'mfma->mfma C overlap')
                    if vw & c['w'] and not (c['C'] == vw): upd(n - 2, 'mfma->mfma WAW')
                elif (c['valu'] or c['vmem'] or c['ds']) and vw & (c['r'] | c['w']): upd(n, 'mfma D->' + c['op'])
                if c['valu'] and p['C'] & c['w']: upd({4: 3, 8: 7}[p['passes']], 'mfma C WAR')
            if 'sdata' in p and (c['valu']) and p['sdata'] & c['w']: upd(2, 'store data WAR')
            if 'sdata' in p and (c['ds'] or c['vmem'] or c['mfma']) and p['sdata'] & c['w']: upd(1, 'store data WAR')
            if p['salu'] and ('m0', 0) in p['w'] and c['vmem'] and ('m0', 0) in c['r']: upd(1, 'm0->dma')
            if need > dist: errs.append(f'line {lj}: "{c["text"]}" needs {need} states after line {li} "{p["text"]}" ({why}), has {dist}')
            dist += p['states']
            if dist > 20: break
    return errs
```

```python
import sys
from asmlib import *

XNF_OFF = 0
HF_OFF = 4 << 20
W2F_OFF = 20 << 20
AGG_OFF = 24 << 20
NONCE_OFF = 25 << 20
WS_BYTES = 32 << 20
NKS = 94
P_X, P_LRE, P_LIM, P_BRE, P_BIM, P_CRE, P_CIM, P_LDT, P_DSK, P_BX, P_WG, P_WU, P_WD, P_OUT, P_DBG, P_WS = [16 + 2 * i for i in range(16)]

def head(a, name):
    a.e(f'.globl {name}\n.p2align 8\n.type {name},@function')
    a.label(name)
    a.e(f'''s_cmp_ge_u32 s2, 256
s_cbranch_scc1 L_end_{name}
s_load_dwordx16 s[16:31], s[0:1], 0
s_load_dwordx16 s[32:47], s[0:1], 64
v_lshrrev_b32 v2, 6, v0
v_and_b32 v1, 63, v0
v_readfirstlane_b32 s3, v2''')
def tail(a, name):
    a.label(f'L_end_{name}')
    a.e('s_endpgm')
def desc(name, nv, acc):
    return f'''.p2align 6
.amdhsa_kernel {name}
  .amdhsa_next_free_vgpr {nv}
  .amdhsa_next_free_sgpr 102
  .amdhsa_accum_offset {acc}
  .amdhsa_group_segment_fixed_size 0
  .amdhsa_kernarg_size 128
  .amdhsa_user_sgpr_count 2
  .amdhsa_user_sgpr_kernarg_segment_ptr 1
  .amdhsa_system_sgpr_workgroup_id_x 1
.end_amdhsa_kernel
'''

def red32(a, v, t):
    for r in (8, 4, 2, 1):
        a.e(f's_nop 1\nv_add_f32_dpp v{v}, v{v}, v{v} row_ror:{r} row_mask:0xf bank_mask:0xf')
    a.e(f'v_mov_b32 v{t}, v{v}\ns_nop 1\nv_permlane16_swap_b32 v{v}, v{t}\ns_nop 1\nv_add_f32 v{v}, v{v}, v{t}')
def bfround(a, d, s):
    a.e(f'v_cvt_pk_bf16_f32 v{d}, v{s}, v{s}\nv_lshlrev_b32 v{d}, 16, v{d}')

def k0():
    a = Asm(); name = 'k0_kernel'
    head(a, name)
    SX, SD, SO, SW, SR = 48, 52, 56, 60, 64
    a.e('''s_lshr_b32 s4, s2, 2
s_and_b32 s5, s2, 3
v_and_b32 v3, 31, v1
v_lshrrev_b32 v4, 5, v1
s_lshl_b32 s6, s3, 1
v_add_u32 v5, s6, v4
v_and_b32 v6, 3, v5
v_lshrrev_b32 v7, 2, v5
v_lshlrev_b32 v7, 4, v7
v_add_u32 v6, v6, v7
s_lshl_b32 s6, s4, 5
s_lshl_b32 s7, s5, 2
s_add_u32 s6, s6, s7
v_add_u32 v6, s6, v6
v_lshlrev_b32 v8, 3, v3
v_mul_u32_u24 v7, 1280, v6
v_add_u32 v7, v7, v8
s_waitcnt lgkmcnt(0)''')
    a.srd(SX, P_X, 2621440); a.srd(SD, P_DSK, 1280); a.srd(SO, P_OUT, 5242880); a.srd(SW, P_WS, WS_BYTES)
    xl = [a.vm(f'buffer_load_dwordx2 v[{10+2*n}:{11+2*n}], v7, s[{SX}:{SX+3}], 0 offen offset:{256*n}') for n in range(5)]
    dl = [a.vm(f'buffer_load_dwordx2 v[{20+2*n}:{21+2*n}], v8, s[{SD}:{SD+3}], 0 offen offset:{256*n}') for n in range(5)]
    a.e('s_lshl_b32 s8, s2, 2\ns_add_u32 s8, s8, s3')
    a.e('s_mov_b32 s15, 0')
    a.e('s_cmp_ge_u32 s8, 940\ns_cbranch_scc1 L_k0_rt_done\ns_cmp_ge_u32 s8, 540\ns_cbranch_scc1 L_k0_rt_c')
    a.e('s_mov_b32 s15, 1')
    a.sdiv(9, 8, 10, 540)
    a.e('s_mul_i32 s10, s9, 10\ns_sub_u32 s10, s8, s10')
    a.srd(SR, P_WD, 1728 * 1280)
    a.e('''v_lshrrev_b32 v50, 3, v1
v_mul_u32_u24 v50, 1280, v50
v_and_b32 v51, 7, v1
v_lshlrev_b32 v51, 4, v51
v_add_u32 v50, v50, v51
s_mul_i32 s11, s9, 40960
s_lshl_b32 s12, s10, 7
s_add_u32 s11, s11, s12
s_lshl_b32 s12, s3, 12
s_add_u32 s12, s12, 16384
s_mov_b32 m0, s12''')
    st = a.state()
    for j in range(4):
        a.e(f's_add_u32 s13, s11, {j*(10240-1024)}')
        a.vm(f'buffer_load_dwordx4 v50, s[{SR}:{SR+3}], s13 offen offset:{1024*j} lds')
    a.e('s_branch L_k0_rt_done')
    a.label('L_k0_rt_c')
    a.restore(st)
    a.e('s_mov_b32 s15, 2\ns_sub_u32 s8, s8, 540')
    a.e('s_cmp_ge_u32 s8, 200\ns_cselect_b32 s9, 1, 0')
    a.e(f's_cselect_b32 s{SR}, s{P_CIM}, s{P_CRE}\ns_cselect_b32 s{SR+1}, s{P_CIM+1}, s{P_CRE+1}\ns_mov_b32 s{SR+2}, 819200\ns_mov_b32 s{SR+3}, 0x00020000')
    a.e('s_mul_i32 s10, s9, 200\ns_sub_u32 s8, s8, s10')
    a.sdiv(10, 8, 5, 200)
    a.e('s_mul_i32 s11, s10, 5\ns_sub_u32 s11, s8, s11')
    a.e('''v_and_b32 v50, 15, v1
v_mul_u32_u24 v50, 1280, v50
v_lshrrev_b32 v51, 4, v1
v_lshlrev_b32 v51, 4, v51
v_add_u32 v50, v50, v51
s_mul_i32 s12, s10, 20480
s_lshl_b32 s13, s11, 8
s_add_u32 s12, s12, s13''')
    for q in range(4):
        a.vm(f'buffer_load_dwordx4 v[{52+4*q}:{55+4*q}], v50, s[{SR}:{SR+3}], s12 offen offset:{64*q}')
    a.label('L_k0_rt_done')
    a.wait_all(lg=False)
    X = 30
    for n in range(10):
        a.e(f'v_lshlrev_b32 v{X+2*n}, 16, v{10+n}\nv_and_b32 v{X+2*n+1}, 0xffff0000, v{10+n}')
    a.e(f'v_add_f32 v70, v{X}, v{X+1}\nv_add_f32 v71, v{X+2}, v{X+3}')
    for n in range(4, 20, 2):
        a.e(f'v_add_f32 v70, v70, v{X+n}\nv_add_f32 v71, v71, v{X+n+1}')
    a.e('v_add_f32 v70, v70, v71')
    red32(a, 70, 71)
    a.e('v_mul_f32 v70, 0x3acccccd, v70')
    a.e('v_mov_b32 v72, 0\nv_mov_b32 v73, 0')
    for n in range(0, 20, 2):
        a.e(f'v_sub_f32 v74, v{X+n}, v70\nv_sub_f32 v75, v{X+n+1}, v70\nv_fmac_f32 v72, v74, v74\nv_fmac_f32 v73, v75, v75')
    a.e('v_add_f32 v72, v72, v73')
    red32(a, 72, 73)
    a.e('v_mul_f32 v72, 0x3acccccd, v72')
    bfround(a, 70, 70)
    bfround(a, 72, 72)
    a.e('v_add_f32 v72, 0x3727c5ac, v72')
    bfround(a, 72, 72)
    a.e('v_sqrt_f32 v72, v72\ns_nop 0')
    bfround(a, 72, 72)
    a.e('v_rcp_f32 v72, v72\ns_nop 0')
    for n in range(10):
        a.e(f'''v_sub_f32 v74, v{X+2*n}, v70
v_sub_f32 v75, v{X+2*n+1}, v70
v_cvt_pk_bf16_f32 v74, v74, v75
v_and_b32 v75, 0xffff0000, v74
v_lshlrev_b32 v74, 16, v74
v_mul_f32 v74, v74, v72
v_mul_f32 v75, v75, v72
v_cvt_pk_bf16_f32 v{10+n}, v74, v75''')
    a.e('''v_lshrrev_b32 v76, 1, v3
v_and_b32 v77, 7, v76
v_xor_b32 v77, v77, v5
v_lshlrev_b32 v77, 4, v77
v_lshlrev_b32 v76, 7, v76
v_add_u32 v76, v76, v77
v_and_b32 v77, 1, v3
v_lshlrev_b32 v77, 3, v77
v_add_u32 v76, v76, v77''')
    for n in range(5):
        a.lds(f'ds_write_b64 v76, v[{10+2*n}:{11+2*n}] offset:{2048*n}')
    a.wait_all(vm=False)
    a.e('s_barrier')
    a.e('''v_lshrrev_b32 v76, 3, v1
v_and_b32 v77, 7, v1
v_xor_b32 v78, v76, v77
v_lshlrev_b32 v78, 4, v78
v_lshlrev_b32 v79, 7, v76
v_add_u32 v78, v78, v79
s_lshl_b32 s6, s3, 10
v_add_u32 v78, s6, v78
v_lshlrev_b32 v79, 9, v76
v_lshlrev_b32 v77, 4, v77
v_add_u32 v79, v79, v77''')
    a.e(f'''s_mul_i32 s6, s4, 40960
s_lshl_b32 s7, s5, 7
s_add_u32 s6, s6, s7
s_lshl_b32 s7, s3, 12
s_add_u32 s6, s6, s7
s_add_u32 s6, s6, {XNF_OFF}''')
    a.lds('ds_read_b128 v[80:83], v78')
    a.lds('ds_read_b128 v[84:87], v78 offset:4096')
    a.lds('ds_read_b128 v[88:91], v78 offset:8192')
    a.wait_all(vm=False)
    a.vm(f'buffer_store_dwordx4 v[80:83], v79, s[{SW}:{SW+3}], s6 offen')
    a.e('s_add_u32 s6, s6, 16384')
    a.vm(f'buffer_store_dwordx4 v[84:87], v79, s[{SW}:{SW+3}], s6 offen')
    a.e('s_add_u32 s6, s6, 16384\ns_cmp_ge_u32 s3, 2\ns_cbranch_scc1 L_k0_no3')
    a.vm(f'buffer_store_dwordx4 v[88:91], v79, s[{SW}:{SW+3}], s6 offen')
    a.label('L_k0_no3')
    for n in range(10):
        a.e(f'''v_lshlrev_b32 v74, 16, v{10+n}
v_and_b32 v75, 0xffff0000, v{10+n}
v_lshlrev_b32 v92, 16, v{20+n}
v_and_b32 v93, 0xffff0000, v{20+n}
v_mul_f32 v74, v74, v92
v_mul_f32 v75, v75, v93
v_cvt_pk_bf16_f32 v74, v74, v75
v_and_b32 v75, 0xffff0000, v74
v_lshlrev_b32 v74, 16, v74
v_add_f32 v{X+2*n}, v{X+2*n}, v74
v_add_f32 v{X+2*n+1}, v{X+2*n+1}, v75''')
    a.e('v_lshlrev_b32 v7, 1, v7')
    for n in range(5):
        a.vm(f'buffer_store_dwordx4 v[{X+4*n}:{X+4*n+3}], v7, s[{SO}:{SO+3}], 0 offen offset:{512*n}')
    a.e('v_lshlrev_b32 v51, 4, v1')
    a.e('s_cmp_eq_u32 s15, 0\ns_cbranch_scc1 L_k0_fin\ns_cmp_eq_u32 s15, 2\ns_cbranch_scc1 L_k0_stc')
    a.e('''v_lshrrev_b32 v68, 5, v1
v_lshlrev_b32 v68, 4, v68
v_bfe_u32 v69, v1, 4, 1
v_lshlrev_b32 v69, 2, v69
v_add_u32 v68, v68, v69
v_bfe_u32 v69, v1, 2, 2
v_add_u32 v68, v68, v69
v_lshlrev_b32 v68, 7, v68
v_and_b32 v69, 3, v1
v_lshlrev_b32 v69, 3, v69
v_add_u32 v68, v68, v69
v_add_u32 v68, s12, v68''')
    for q in range(4):
        for e in range(2):
            a.lds(f'ds_read_b64_tr_b16 v[{52+4*q+2*e}:{53+4*q+2*e}], v68 offset:{q*32+e*1024}')
    a.wait_all(vm=False)
    for q in range(4):
        a.e(f's_lshl_b32 s11, s10, 2\ns_add_u32 s11, s11, {q}')
        a.sdiv(13, 11, 5, 40)
        a.e(f'''s_mul_i32 s14, s13, 5
s_sub_u32 s11, s11, s14
s_lshl_b32 s11, s11, 10
s_mul_i32 s13, s13, {NKS*5120}
s_add_u32 s11, s11, s13
s_mul_i32 s13, s9, 5120
s_add_u32 s11, s11, s13
s_add_u32 s11, s11, {W2F_OFF}''')
        a.vm(f'buffer_store_dwordx4 v[{52+4*q}:{55+4*q}], v51, s[{SW}:{SW+3}], s11 offen')
    a.e('s_branch L_k0_fin')
    a.label('L_k0_stc')
    a.sdiv(13, 10, 5, 40)
    a.e(f'''s_mul_i32 s14, s13, 5
s_sub_u32 s14, s10, s14
s_lshl_b32 s14, s14, 10
s_mul_i32 s13, s13, {NKS*5120}
s_add_u32 s14, s14, s13
s_lshl_b32 s13, s11, 3
s_add_u32 s13, s13, s9
s_add_u32 s13, s13, 54
s_mul_i32 s13, s13, 5120
s_add_u32 s14, s14, s13
s_add_u32 s14, s14, {W2F_OFF}''')
    for q in range(4):
        a.vm(f'buffer_store_dwordx4 v[{52+4*q}:{55+4*q}], v51, s[{SW}:{SW+3}], s14 offen')
        a.e('s_add_u32 s14, s14, 10240')
    a.label('L_k0_fin')
    a.e(f'''s_or_b32 s6, s2, s3
s_cmp_lg_u32 s6, 0
s_cbranch_scc1 L_end_{name}
s_mov_b32 s6, {NONCE_OFF}
v_mov_b32 v76, 0
buffer_load_dword v77, v76, s[{SW}:{SW+3}], s6 offen
s_waitcnt vmcnt(0)
v_add_u32 v77, 0x9e3779b9, v77
buffer_store_dword v77, v76, s[{SW}:{SW+3}], s6 offen''')
    tail(a, name)
    return a, desc(name, 128, 128)

def k2(cfg):
    a = Asm(); name = 'k2_kernel'
    head(a, name)
    SW, SO = 48, 52
    DEPTH = 6
    ACC = 8
    def buf(slot, j):
        return 256 + slot * 36 + 4 * j
    a.e('s_and_b32 s4, s2, 7\ns_lshr_b32 s5, s2, 3')
    if cfg['k2map'] == 'A':
        a.e('s_lshl_b32 s6, s4, 2\ns_lshr_b32 s7, s5, 3\ns_add_u32 s6, s6, s7\ns_and_b32 s7, s5, 7')
    else:
        a.e('s_lshr_b32 s6, s4, 1\ns_lshl_b32 s6, s6, 3\ns_lshr_b32 s7, s5, 2\ns_add_u32 s6, s6, s7\ns_and_b32 s7, s4, 1\ns_lshl_b32 s7, s7, 2\ns_and_b32 s8, s5, 3\ns_add_u32 s7, s7, s8')
    a.e(f'''s_mul_i32 s8, s6, {NKS*4096}
s_lshl_b32 s9, s3, 12
s_add_u32 s8, s8, s9
s_add_u32 s8, s8, {HF_OFF}
s_mul_i32 s9, s7, {NKS*5120}
s_mul_i32 s10, s3, 5120
s_add_u32 s9, s9, s10
s_add_u32 s9, s9, {W2F_OFF}
v_lshlrev_b32 v3, 4, v1
v_add_u32 v4, 4096, v3
s_waitcnt lgkmcnt(0)''')
    a.srd(SW, P_WS, WS_BYTES); a.srd(SO, P_OUT, 5242880)
    NST = 24
    ids = {}
    def issue(st):
        sl = st % DEPTH
        last = None
        for j in range(4):
            last = a.vm(f'buffer_load_dwordx4 {R(buf(sl,j),4)}, v3, s[{SW}:{SW+3}], s8 offen offset:{1024*j}')
        for j in range(5):
            last = a.vm(f'buffer_load_dwordx4 {R(buf(sl,4+j),4)}, {"v3" if j<4 else "v4"}, s[{SW}:{SW+3}], s9 offen offset:{1024*(j%4)}')
        ids[st] = last
        if st == NST - 2:
            a.e(f's_cmp_ge_u32 s3, 2\ns_cselect_b32 s10, 0x40000000, 0\ns_add_u32 s8, s8, s10\ns_add_u32 s9, s9, s10')
        a.e('s_add_u32 s8, s8, 16384\ns_add_u32 s9, s9, 20480')
    for st in range(DEPTH): issue(st)
    a.e('''v_and_b32 v5, 15, v1
v_mul_u32_u24 v5, 336, v5
v_lshrrev_b32 v6, 4, v1
v_lshlrev_b32 v6, 4, v6
v_add_u32 v5, v5, v6
s_mul_i32 s10, s3, 21504
v_add_u32 v5, s10, v5''')
    for i in range(5):
        a.e(f'''v_add_u32 v6, {64*i}, v1
v_mul_u32_u24 v7, 3277, v6
v_lshrrev_b32 v7, 16, v7
v_mul_u32_u24 v{90+i}, 20, v7
v_sub_u32 v6, v6, v{90+i}
v_lshlrev_b32 v6, 4, v6
v_mul_u32_u24 v{90+i}, 336, v7
v_add_u32 v{90+i}, v{90+i}, v6
v_mul_u32_u24 v{95+i}, 2560, v7
v_add_u32 v{95+i}, v{95+i}, v6''')
        assert all((c * 3277) >> 16 == c // 20 for c in range(320))
    a.e('s_mul_i32 s10, s3, 5376')
    for i in range(5): a.e(f'v_add_u32 v{90+i}, s10, v{90+i}')
    a.e('s_lshl_b32 s11, s6, 2\ns_add_u32 s11, s11, s3\ns_mul_i32 s11, s11, 40960\ns_mul_i32 s12, s7, 320\ns_add_u32 s11, s11, s12')
    base_ids = None
    for st in range(NST):
        sl = st % DEPTH
        a.wait(vm=ids[st])
        for rt in range(4):
            for ct in range(5):
                d = ACC + 4 * (rt * 5 + ct)
                c = '0' if st == 0 else V(d, 4)
                a.e(f'v_mfma_f32_16x16x32_bf16 {V(d,4)}, {R(buf(sl,4+ct),4)}, {R(buf(sl,rt),4)}, {c}')
        if st + DEPTH < NST: issue(st + DEPTH)
        if st == NST - DEPTH:
            base_ids = [a.vm(f'buffer_load_dwordx4 v[{100+4*i}:{103+4*i}], v{95+i}, s[{SO}:{SO+3}], s11 offen') for i in range(5)]
    a.e('s_nop 7')
    for rt in range(4):
        for ct in range(5):
            d = ACC + 4 * (rt * 5 + ct)
            a.lds(f'ds_write_b128 v5, {V(d,4)} offset:{rt*5376+ct*64}')
    a.wait_all(vm=False)
    a.e('s_barrier')
    rd = {}
    for i in range(5):
        for p in range(4):
            rd[i, p] = a.lds(f'ds_read_b128 {V(ACC+16*i+4*p,4)}, v{90+i} offset:{p*21504}')
    a.wait(vm=base_ids[-1])
    for i in range(5):
        a.wait(lg=rd[i, 3])
        b = ACC + 16 * i
        for k in range(4):
            a.e(f'v_add_f32 v{b+k}, v{b+k}, v{b+4+k}\nv_add_f32 v{b+8+k}, v{b+8+k}, v{b+12+k}')
        for k in range(4):
            a.e(f'v_add_f32 v{100+4*i+k}, v{100+4*i+k}, v{b+k}')
        for k in range(4):
            a.e(f'v_add_f32 v{100+4*i+k}, v{100+4*i+k}, v{b+8+k}')
        a.vm(f'buffer_store_dwordx4 v[{100+4*i}:{103+4*i}], v{95+i}, s[{SO}:{SO+3}], s11 offen')
    tail(a, name)
    return a, desc(name, 512, 256)

HEADER = open('parallel_sum__ssm_conv_s5__glu_gated_glu__prompt.s.ref').read().split('; Override launch')[0]
def assemble(parts, launches):
    out = HEADER
    for nm, lds in launches:
        out += f'; @launch kernel={nm} grid=(256,1,1) block=(256,1,1) lds={lds}\n'
    out += '.amdgcn_target "amdgcn-amd-amdhsa--gfx950"\n.text\n'
    for a, d in parts:
        errs = check_hazards(a.lines)
        for e in errs: print('HAZARD', e)
        assert not errs
        out += a.text()
    out += '.section .rodata,"a"\n'
    for a, d in parts: out += d
    return out
if __name__ == '__main__':
    cfg = dict(k2map='B')
    s = assemble([k0(), k2(cfg)], [('k0_kernel', 32768), ('k2_kernel', 86016)])
    open(sys.argv[1], 'w').write(s)
```

```python
from asmlib import *
from gen1 import *

NS = 9
SCR = NS * 16384
LOG2E = 0x3fb8aa3b
NLOG2E = 0xbfb8aa3b
SW, SG, SU, SB, SA1, SA2, SH, SP = 48, 52, 56, 60, 64, 68, 72, 76
sRB, sSL, sD1, sD2, sQ1, sQ2 = 4, 5, 6, 7, 8, 9
sDOFF1, sDOFF2, sQOFF1, sQOFF2 = 10, 11, 12, 13
sHB = 14
sT0, sT1 = 80, 81
sM0B = 82
sXO = 83
sMASK = 84
sCNT = 98
vD = [3, 4, 5, 6]; vQ = [7, 8]
vRQ = [[9, 10, 11], [12, 13, 14]]
vRD = [15, 16, 17, 18]
vHG, vL16, vAGW, vAGR, vPUB, vTW, vTR, vT = 19, 20, 21, 22, 23, 24, 25, 26
vGO = 27
C1, C2 = 28, 44
TMP = 60
ACC_D, ACC_A, ACC_B = 96, 128, 192
XF = 256
WB = 256 + 160
cLr, cLi, cnLi, cP, cQn, cnP, c16r, c16i, c128r, c128i, c256r, c256i, cqr, cqi, cPr, cPi = range(16)

def cmul_sq(a, dr, di, sr, si, t):
    a.e(f'v_mul_f32 v{t}, v{si}, v{si}\nv_mul_f32 v{di}, v{sr}, v{si}\nv_fma_f32 v{dr}, v{sr}, v{sr}, -v{t}\nv_add_f32 v{di}, v{di}, v{di}')

def ssm_consts(a, C, l0):
    t = TMP + 12
    a.e(f'''v_lshlrev_b32 v{l0}, 16, v{l0}
v_lshlrev_b32 v{l0+1}, 16, v{l0+1}
v_lshlrev_b32 v{l0+2}, 16, v{l0+2}
v_mul_f32 v{l0+2}, {LOG2E}, v{l0+2}
v_exp_f32 v{l0+2}, v{l0+2}
s_nop 0''')
    bfround(a, l0 + 2, l0 + 2)
    a.e(f'''v_mul_f32 v{t}, v{l0+2}, v{l0}
v_mul_f32 v{t+1}, v{l0+2}, v{l0+1}
v_mul_f32 v{t}, {LOG2E}, v{t}
v_mul_f32 v{t+1}, 0.15915494, v{t+1}
v_exp_f32 v{t}, v{t}
v_fract_f32 v{t+1}, v{t+1}
v_cos_f32 v{t+2}, v{t+1}
v_sin_f32 v{t+3}, v{t+1}
v_mul_f32 v{t+4}, v{l0}, v{l0}
v_fmac_f32 v{t+4}, v{l0+1}, v{l0+1}
v_mul_f32 v{C+cLr}, v{t}, v{t+2}
v_mul_f32 v{C+cLi}, v{t}, v{t+3}
v_rcp_f32 v{t+4}, v{t+4}
v_sub_f32 v{C+cnLi}, 0, v{C+cLi}
v_add_f32 v{t+5}, -1.0, v{C+cLr}
v_add_f32 v{t+4}, v{t+4}, v{t+4}
v_mul_f32 v{t+6}, v{t+5}, v{l0}
v_fmac_f32 v{t+6}, v{C+cLi}, v{l0+1}
v_mul_f32 v{t+7}, v{t+5}, v{l0+1}
v_fmac_f32 v{t+7}, v{C+cnLi}, v{l0}
v_mul_f32 v{C+cP}, v{t+6}, v{t+4}
v_mul_f32 v{C+cQn}, v{t+7}, v{t+4}
v_sub_f32 v{C+cnP}, 0, v{C+cP}''')
    cmul_sq(a, t, t + 1, C + cLr, C + cLi, t + 8)
    cmul_sq(a, t + 2, t + 3, t, t + 1, t + 8)
    cmul_sq(a, t, t + 1, t + 2, t + 3, t + 8)
    cmul_sq(a, C + c16r, C + c16i, t, t + 1, t + 8)
    cmul_sq(a, t, t + 1, C + c16r, C + c16i, t + 8)
    cmul_sq(a, t + 2, t + 3, t, t + 1, t + 8)
    cmul_sq(a, C + c128r, C + c128i, t + 2, t + 3, t + 8)
    cmul_sq(a, C + c256r, C + c256i, C + c128r, C + c128i, t + 8)
    a.e(f'''s_mov_b32 s{sT0}, 0
s_mov_b32 s{sT1}, -1
v_cndmask_b32 v{C+cqr}, 1.0, v{C+c16r}, s[{sT0}:{sT1}]
v_cndmask_b32 v{C+cqi}, 0, v{C+c16i}, s[{sT0}:{sT1}]''')
    for bit, (pr, pi) in ((1, (t, t + 1)), (2, (t + 2, t + 3))):
        a.e(f'''s_and_b32 s{sT0}, s3, {bit}
s_cselect_b32 s{sT0}, -1, 0
s_mov_b32 s{sT1}, s{sT0}
v_cndmask_b32 v{t+4}, 1.0, v{pr}, s[{sT0}:{sT1}]
v_cndmask_b32 v{t+5}, 0, v{pi}, s[{sT0}:{sT1}]
v_mul_f32 v{t+6}, v{C+cqr}, v{t+4}
v_mul_f32 v{t+7}, v{C+cqr}, v{t+5}
v_fma_f32 v{C+cqr}, -v{C+cqi}, v{t+5}, v{t+6}
v_fma_f32 v{C+cqi}, v{C+cqi}, v{t+4}, v{t+7}''')
    a.e(f'v_mov_b32 v{C+cPr}, 0\nv_mov_b32 v{C+cPi}, 0')

def cfma(dr, di, lr, li, sr, si):
    yield ('v', f'v_fmac_f32 v{dr}, v{lr}, v{sr}')
    yield ('v', f'v_fmac_f32 v{di}, v{lr}, v{si}')
    yield ('v', f'v_fma_f32 v{dr}, -v{li}, v{si}, v{dr}')
    yield ('v', f'v_fmac_f32 v{di}, v{li}, v{sr}')

def f_agg(acc, C, area, SA, tag):
    sr, si = acc, acc + 16
    for r in range(1, 16):
        t = TMP + 2 * (r & 1)
        yield ('v', f'v_fma_f32 v{t}, v{C+cLr}, v{sr}, v{acc+r}')
        yield ('v', f'v_fma_f32 v{t+1}, v{C+cLr}, v{si}, v{acc+16+r}')
        yield ('v', f'v_fmac_f32 v{t}, v{C+cnLi}, v{si}')
        yield ('v', f'v_fmac_f32 v{t+1}, v{C+cLi}, v{sr}')
        sr, si = t, t + 1
    yield ('lds', f'ds_write_b64 v{vAGW}, v[{sr}:{si}] offset:{area}', tag + 'w')
    yield ('delay', 2)
    yield ('wl', tag + 'w')
    yield ('needbar',)
    g = TMP + 4
    for j in range(8):
        yield ('lds', f'ds_read_b64 v[{g+2*j}:{g+2*j+1}], v{vAGR} offset:{area+256*j}', tag + f'r{j}')
    yield ('delay', 3)
    yield ('wl', tag + 'r7')
    for j in range(1, 8):
        pr, pi = g + 2 * (j - 1), g + 2 * (j - 1) + 1
        m = sMASK + 2 * (j - 1)
        yield ('v', f'v_cndmask_b32 v{C+cPr}, v{C+cPr}, v{pr}, s[{m}:{m+1}]')
        yield ('v', f'v_cndmask_b32 v{C+cPi}, v{C+cPi}, v{pi}, s[{m}:{m+1}]')
        yield from cfma(g + 2 * j, g + 2 * j + 1, C + c16r, C + c16i, pr, pi)
    yield ('v', f'v_mov_b32 v{TMP}, v{g+14}')
    yield ('v', f'v_mov_b32 v{TMP+1}, v{vT}')
    yield ('v', f'v_mov_b32 v{TMP+2}, v{g+15}')
    yield ('v', f'v_mov_b32 v{TMP+3}, v{vT}')
    yield ('vm', f'buffer_store_dwordx4 v[{TMP}:{TMP+3}], v{vPUB}, s[{SA}:{SA+3}], 0 offen sc1', tag + 'pub')
    yield ('delay', 1)

def ren(acc, spare): return [spare] + [acc + r for r in range(15)]
def f_coef(acc, C, spare):
    an = ren(acc, spare)
    for r in range(16):
        ar, br = acc + r, acc + 16 + r
        yield ('v', f'v_mul_f32 v{an[r]}, v{C+cP}, v{ar}')
        yield ('v', f'v_fmac_f32 v{an[r]}, v{C+cQn}, v{br}')
        yield ('v', f'v_mul_f32 v{br}, v{C+cnP}, v{br}')
        yield ('v', f'v_fmac_f32 v{br}, v{C+cQn}, v{ar}')

GOF = TMP + 20
EXP = TMP + 28
def f_gather_issue(G, SA, tag):
    for j in range(8):
        yield ('vm', f'buffer_load_dwordx4 v[{G+4*j}:{G+4*j+3}], v{GOF+j}, s[{SA}:{SA+3}], 0 offen sc1', tag + f'g{j}')
def f_carry(G, acc, C, spare, SA, sD, tag):
    yield ('wv', tag + 'g7')
    def chk(a):
        top = a.newlabel('chk'); ok = a.newlabel('ok')
        a.e(f's_mov_b32 s{sCNT}, 0')
        a.label(top)
        a.e(f'v_xor_b32 v{TMP}, v{G+1}, v{EXP}\nv_xor_b32 v{TMP+1}, v{G+3}, v{EXP}')
        for j in range(1, 8):
            a.e(f'v_bitop3_b32 v{TMP}, v{TMP}, v{G+4*j+1}, v{EXP+j} bitop3:0xf6\nv_bitop3_b32 v{TMP+1}, v{TMP+1}, v{G+4*j+3}, v{EXP+j} bitop3:0xf6')
        a.e(f'''v_or_b32 v{TMP}, v{TMP}, v{TMP+1}
v_cmp_ne_u32 vcc, 0, v{TMP}
s_add_u32 s{sCNT}, s{sCNT}, 1
s_cmp_gt_u32 s{sCNT}, 20000
s_cbranch_scc1 {ok}
s_cmp_eq_u64 vcc, 0
s_cbranch_scc1 {ok}
s_sleep 4''')
        for j in range(8):
            a.e(f'buffer_load_dwordx4 v[{G+4*j}:{G+4*j+3}], v{GOF+j}, s[{SA}:{SA+3}], 0 offen sc1')
        a.e(f's_waitcnt vmcnt(0)\ns_branch {top}')
        a.label(ok)
    yield ('raw', chk, 8)
    for j in range(6, -1, -1):
        yield from cfma(G + 4 * j, G + 4 * j + 2, C + c256r, C + c256i, G + 4 * j + 4, G + 4 * j + 6)
    yield ('v', f'v_mov_b32 v{G+4}, v{G}')
    yield ('v', f'v_mov_b32 v{G+6}, v{G+2}')
    yield ('s', 's_nop 1')
    yield ('v', f'v_permlane32_swap_b32 v{G}, v{G+4}')
    yield ('v', f'v_permlane32_swap_b32 v{G+2}, v{G+6}')
    yield ('s', 's_nop 1')
    yield from cfma(G, G + 2, C + c128r, C + c128i, G + 4, G + 6)
    yield from cfma(C + cPr, C + cPi, C + cqr, C + cqi, G, G + 2)
    yield ('v', f'v_mul_f32 v{G}, v{C+cP}, v{C+cPr}')
    yield ('v', f'v_mul_f32 v{G+1}, v{C+cQn}, v{C+cPr}')
    yield ('v', f'v_fmac_f32 v{G}, v{C+cQn}, v{C+cPi}')
    yield ('v', f'v_fmac_f32 v{G+1}, v{C+cnP}, v{C+cPi}')
    an = ren(acc, spare)
    pr, pi = G, G + 1
    for r in range(16):
        ar, br = an[r], acc + 16 + r
        yield ('v', f'v_fmac_f32 v{ar}, v{C+cLr}, v{pr}')
        yield ('v', f'v_fmac_f32 v{br}, v{C+cLr}, v{pi}')
        yield ('v', f'v_fmac_f32 v{ar}, v{C+cLi}, v{pi}')
        yield ('v', f'v_fmac_f32 v{br}, v{C+cnLi}, v{pr}')
        pr, pi = ar, br
    for k in range(8):
        yield ('v', f'v_cvt_pk_bf16_f32 v{G+k}, v{an[2*k]}, v{an[2*k+1]}')
    for k in range(8):
        yield ('v', f'v_cvt_pk_bf16_f32 v{G+8+k}, v{acc+16+2*k}, v{acc+17+2*k}')
    yield ('s', f's_lshl_b32 s{sT0}, s{sD}, 13')
    yield ('s', f's_add_u32 s{sT0}, s{sT0}, s{sHB}')
    yield ('s', f's_add_u32 s{sT0}, s{sT0}, {54*4096}')
    yield ('s', f's_add_u32 s{sT1}, s{sT0}, 4096')
    for comp in range(2):
        yield ('lds', f'ds_write_b128 v{vTW}, v[{G+8*comp}:{G+8*comp+3}]', tag + f'tw{comp}a')
        yield ('lds', f'ds_write_b128 v{vTW}, v[{G+8*comp+4}:{G+8*comp+7}] offset:16', tag + f'tw{comp}b')
        for h2 in range(2):
            for e in range(2):
                d = G + 16 + 8 * comp + 4 * h2 + 2 * e
                yield ('lds', f'ds_read_b64_tr_b16 v[{d}:{d+1}], v{vTR} offset:{h2*32+e*256}', tag + f'tr{comp}{h2}{e}')
    yield ('delay', 3)
    yield ('wl', tag + 'tr111')
    for comp in range(2):
        for h2 in range(2):
            d = G + 16 + 8 * comp + 4 * h2
            yield ('vm', f'buffer_store_dwordx4 v[{d}:{d+3}], v{vL16}, s[{SH}:{SH+3}], s{sT0+comp} offen offset:{h2*1024}', tag + f'st{comp}{h2}')

def f_epiq(acc, sQ, jhs):
    for jh in jhs:
        G = acc + 32 * jh; U = G + 16
        yield ('s', f's_lshl_b32 s{sXO}, s{sQ}, 13')
        yield ('s', f's_add_u32 s{sXO}, s{sXO}, s{sHB}')
        if jh: yield ('s', f's_add_u32 s{sXO}, s{sXO}, 4096')
        for b in range(4):
            rs = range(4 * b, 4 * b + 4)
            for r in rs: yield ('v', f'v_mul_f32 v{G+r}, {NLOG2E}, v{G+r}')
            for r in rs: yield ('t', f'v_exp_f32 v{G+r}, v{G+r}')
            for r in rs: yield ('v', f'v_add_f32 v{G+r}, 1.0, v{G+r}')
            for r in rs: yield ('t', f'v_rcp_f32 v{G+r}, v{G+r}')
            for r in rs: yield ('v', f'v_mul_f32 v{G+r}, v{G+r}, v{U+r}')
            c = b >> 1
            for k in range(2):
                yield ('v', f'v_cvt_pk_bf16_f32 v{U+8*c+2*(b&1)+k}, v{G+4*b+2*k}, v{G+4*b+2*k+1}')
            if b & 1:
                yield ('vm', f'buffer_store_dwordx4 v[{U+8*c}:{U+8*c+3}], v{vHG}, s[{SW}:{SW+3}], s{sXO} offen offset:{512*c}', None)

def chain(*gens):
    for g in gens: yield from g

class Sched:
    def __init__(self, a, cfg):
        self.a = a; self.cfg = cfg
        self.keys = {}
        self.stream = None; self.pend = None; self.delay = 0; self.blocked = False
    def set_stream(self, gen):
        if self.stream is None: self.stream = gen
        else: self.stream = chain(self.stream, gen)
    def peek(self):
        if self.pend is None and self.stream is not None:
            self.pend = next(self.stream, None)
            if self.pend is None: self.stream = None
        return self.pend
    def emit_item(self, it):
        a = self.a; k = it[0]
        if k in ('v', 's'): a.e(it[1]); return 1
        if k == 't': a.e(it[1]); return 2
        if k == 'lds': self.keys[it[2]] = a.lds(it[1]); return 1
        if k == 'vm': self.keys[it[2]] = a.vm(it[1]); return 1
        if k == 'wl': return 1 if a.wait(lg=self.keys[it[1]]) else 0
        if k == 'wv': return 1 if a.wait(vm=self.keys[it[1]]) else 0
        if k == 'raw': it[1](a); return it[2]
        raise ValueError(k)
    def fill(self, budget):
        if self.delay > 0: self.delay -= 1; return
        used = 0; valu_seen = False
        while not self.blocked:
            it = self.peek()
            if it is None: return
            k = it[0]
            if k == 'delay': self.delay = it[1]; self.pend = None; return
            if k == 'needbar': self.blocked = True; self.pend = None; return
            if k in ('lds', 'vm') and valu_seen: return
            cost = 2 if k == 't' else 1
            if used + cost > budget and used > 0: return
            self.pend = None
            used += self.emit_item(it)
            if k in ('v', 't', 'raw'): valu_seen = True
    def on_barrier(self): self.blocked = False
    def drain(self):
        while True:
            if self.blocked:
                self.a.e('s_barrier'); self.blocked = False
            it = self.peek()
            if it is None: return
            self.pend = None
            if it[0] == 'delay': continue
            if it[0] == 'needbar': self.blocked = True; continue
            self.emit_item(it)

def k1(cfg):
    a = Asm(); name = 'k1_kernel'
    head(a, name)
    a.e('s_and_b32 s10, s2, 7\ns_lshr_b32 s11, s2, 3')
    mp = cfg['k1map']
    if mp == 'P':
        a.e(f's_lshr_b32 s{sRB}, s10, 1\ns_lshl_b32 s{sRB}, s{sRB}, 2\ns_lshr_b32 s12, s11, 3\ns_add_u32 s{sRB}, s{sRB}, s12\ns_and_b32 s{sSL}, s11, 7\ns_lshl_b32 s{sSL}, s{sSL}, 1\ns_and_b32 s12, s10, 1\ns_add_u32 s{sSL}, s{sSL}, s12')
    elif mp == 'R':
        a.e(f's_lshr_b32 s{sRB}, s10, 2\ns_lshl_b32 s{sRB}, s{sRB}, 3\ns_lshr_b32 s12, s11, 2\ns_add_u32 s{sRB}, s{sRB}, s12\ns_and_b32 s{sSL}, s11, 3\ns_lshl_b32 s{sSL}, s{sSL}, 2\ns_and_b32 s12, s10, 3\ns_add_u32 s{sSL}, s{sSL}, s12')
    elif mp == 'T':
        a.e(f's_lshl_b32 s{sRB}, s10, 1\ns_lshr_b32 s12, s11, 4\ns_add_u32 s{sRB}, s{sRB}, s12\ns_and_b32 s{sSL}, s11, 15')
    a.e(f'''s_lshl_b32 s10, s{sSL}, 1
s_sub_u32 s11, s10, 12
s_add_u32 s12, s{sSL}, 11
s_min_u32 s13, s{sSL}, 9
s_cmp_ge_u32 s{sSL}, 11
s_cselect_b32 s{sD1}, s11, s13
s_cselect_b32 s{sQ1}, s12, s10
s_add_u32 s{sD2}, s{sD1}, 1
s_add_u32 s10, s10, 1
s_cmp_ge_u32 s{sSL}, 11
s_cselect_b32 s{sQ2}, s12, s10''')
    a.e(f'''v_lshrrev_b32 v60, 3, v1
v_and_b32 v61, 7, v1
v_lshrrev_b32 v62, 1, v60
v_xor_b32 v63, v61, v62
v_lshlrev_b32 v63, 4, v63
v_mul_u32_u24 v64, 1280, v60
v_add_u32 v{vD[0]}, v64, v63
v_xor_b32 v63, 64, v63
v_add_u32 v{vD[1]}, v64, v63
v_add_u32 v{vD[1]}, {10240-1024}, v{vD[1]}
v_add_u32 v{vD[2]}, {2*(10240-1024)}, v{vD[0]}
v_add_u32 v{vD[3]}, {2*(10240-1024)}, v{vD[1]}
v_and_b32 v62, 1, v62
v_lshlrev_b32 v62, 2, v62
v_xor_b32 v63, v61, v62
v_lshlrev_b32 v63, 4, v63
v_mul_u32_u24 v64, 3456, v60
v_add_u32 v{vQ[0]}, v64, v63
v_add_u32 v{vQ[1]}, {8*3456-1024}, v{vQ[0]}
v_lshlrev_b32 v{vL16}, 4, v1
s_lshl_b32 s{sM0B}, s3, 12''')
    a.e(f'''s_lshr_b32 s15, s3, 1
s_lshl_b32 s15, s15, 7
s_mul_i32 s{sDOFF1}, s{sD1}, 40960
s_add_u32 s{sDOFF1}, s{sDOFF1}, s15
s_add_u32 s{sDOFF2}, s{sDOFF1}, 40960
s_mul_i32 s15, s3, {16*3456}
s_lshl_b32 s{sQOFF1}, s{sQ1}, 7
s_add_u32 s{sQOFF1}, s{sQOFF1}, s15
s_lshl_b32 s{sQOFF2}, s{sQ2}, 7
s_add_u32 s{sQOFF2}, s{sQOFF2}, s15
s_lshl_b32 s{sXO}, s{sRB}, 2
s_add_u32 s{sXO}, s{sXO}, s3
s_mul_i32 s{sXO}, s{sXO}, 40960
s_add_u32 s{sXO}, s{sXO}, {XNF_OFF}
s_waitcnt lgkmcnt(0)''')
    a.srd(SW, P_WS, WS_BYTES)
    a.e(f's_and_b32 s15, s3, 1\ns_cselect_b32 s{SB}, s{P_BIM}, s{P_BRE}\ns_cselect_b32 s{SB+1}, s{P_BIM+1}, s{P_BRE+1}\ns_mov_b32 s{SB+2}, 819200\ns_mov_b32 s{SB+3}, 0x00020000')
    stage_last = {}
    def dma_items(n, kind, soff):
        slot = n % NS
        out = []
        for j in range(4):
            def th(j=j):
                if j == 0: a.e(f's_add_u32 m0, s{sM0B}, {slot*16384}\ns_nop 0') if cfg.get('m0nop', True) else None
                if kind == 'D': i = a.vm(f'buffer_load_dwordx4 v{vD[j]}, s[{SB}:{SB+3}], s{soff} offen offset:{1024*j} lds')
                else:
                    srd = SG if j < 2 else SU
                    i = a.vm(f'buffer_load_dwordx4 v{vQ[j&1]}, s[{srd}:{srd+3}], s{soff} offen offset:{1024*j} lds')
                if j == 3:
                    a.e(f's_add_u32 s{soff}, s{soff}, {256 if kind=="D" else 64*3456}')
                    stage_last[n] = i
            out.append(th)
        return out
    xid = {}
    for n in range(5):
        for th in dma_items(n, 'D', sDOFF1): th()
        for s in range(8 * n, 8 * n + 8):
            if s % 4 == 0 and s > 0: a.e(f's_add_u32 s{sXO}, s{sXO}, 4096')
            xid[s] = a.vm(f'buffer_load_dwordx4 {R(XF+4*s,4)}, v{vL16}, s[{SW}:{SW+3}], s{sXO} offen offset:{1024*(s%4)}')
        if n == 0:
            a.e(f's_mov_b32 s15, {NONCE_OFF}\nv_mov_b32 v60, 0')
            a.vm(f'buffer_load_dword v{vT}, v60, s[{SW}:{SW+3}], s15 offen')
            a.e(f'v_and_b32 v60, 31, v1\nv_lshlrev_b32 v60, 1, v60\ns_lshl_b32 s15, s{sD1}, 6')
            for i, p in enumerate((P_LRE, P_LIM, P_LDT)):
                a.srd(SP, p, 1280)
                a.vm(f'buffer_load_ushort v{64+i}, v60, s[{SP}:{SP+3}], s15 offen')
                pid = a.vm(f'buffer_load_ushort v{68+i}, v60, s[{SP}:{SP+3}], s15 offen offset:64')
        if n == 3: a.wait(vm=pid)
    a.srd(SG, P_WG, 640 * 3456); a.srd(SU, P_WU, 640 * 3456 + 2048, add=-2048)
    a.e(f'''s_lshl_b32 s15, s{sD1}, 13
s_add_u32 s15, s15, {AGG_OFF}
s_add_u32 s{SA1}, s{P_WS}, s15
s_addc_u32 s{SA1+1}, s{P_WS+1}, 0
s_mov_b32 s{SA1+2}, 8192
s_mov_b32 s{SA1+3}, 0x00020000
s_add_u32 s{SA2}, s{SA1}, 8192
s_addc_u32 s{SA2+1}, s{SA1+1}, 0
s_mov_b32 s{SA2+2}, 8192
s_mov_b32 s{SA2+3}, 0x00020000
s_mov_b32 s{SH}, s{P_WS}
s_mov_b32 s{SH+1}, s{P_WS+1}
s_cmp_eq_u32 s{sSL}, 10
s_cselect_b32 s{SH+2}, 0, {WS_BYTES}
s_mov_b32 s{SH+3}, 0x00020000''')
    a.e(f'''s_lshl_b32 s{sHB}, s{sRB}, 1
s_lshr_b32 s15, s3, 1
s_add_u32 s{sHB}, s{sHB}, s15
s_mul_i32 s{sHB}, s{sHB}, {NKS*4096}
s_and_b32 s15, s3, 1
s_lshl_b32 s15, s15, 11
s_add_u32 s{sHB}, s{sHB}, s15
s_add_u32 s{sHB}, s{sHB}, {HF_OFF}''')
    a.e(f'''v_lshrrev_b32 v72, 5, v1
v_lshlrev_b32 v72, 3, v72
v_bfe_u32 v73, v1, 2, 2
v_add_u32 v72, v72, v73
v_lshlrev_b32 v72, 7, v72
v_bfe_u32 v73, v1, 3, 1
v_lshlrev_b32 v73, 6, v73
v_add_u32 v72, v72, v73
v_bfe_u32 v73, v1, 4, 1
v_lshlrev_b32 v73, 5, v73
v_add_u32 v72, v72, v73
v_and_b32 v73, 3, v1
v_lshlrev_b32 v73, 3, v73
v_add_u32 v{vRQ[0][0]}, v72, v73
v_xor_b32 v{vRQ[1][0]}, 64, v{vRQ[0][0]}''')
    for jh in range(2):
        for wn in (1, 2): a.e(f'v_add_u32 v{vRQ[jh][wn]}, {65536*wn}, v{vRQ[jh][0]}')
    a.e(f'''v_and_b32 v72, 31, v1
v_bfe_u32 v73, v1, 1, 3
v_lshrrev_b32 v74, 5, v1
v_xor_b32 v73, v73, v74
v_lshlrev_b32 v73, 4, v73
v_lshlrev_b32 v72, 7, v72
v_add_u32 v{vRD[0]}, v72, v73''')
    for s in (1, 2, 3): a.e(f'v_xor_b32 v{vRD[s]}, {32*s}, v{vRD[0]}')
    a.e(f'''v_bfe_u32 v72, v1, 2, 1
v_lshlrev_b32 v72, 10, v72
v_lshrrev_b32 v73, 5, v1
v_lshlrev_b32 v73, 8, v73
v_add_u32 v72, v72, v73
v_bfe_u32 v73, v1, 3, 2
v_lshlrev_b32 v73, 6, v73
v_add_u32 v72, v72, v73
v_and_b32 v73, 3, v1
v_lshlrev_b32 v73, 4, v73
v_add_u32 v{vHG}, v72, v73''')
    a.e(f'''v_lshlrev_b32 v72, 3, v1
s_lshl_b32 s15, s3, 9
s_add_u32 s15, s15, {SCR}
v_add_u32 v{vAGW}, s15, v72
v_and_b32 v72, 31, v1
v_lshlrev_b32 v73, 3, v72
v_add_u32 v{vAGR}, {SCR}, v73
v_lshlrev_b32 v73, 4, v72
s_lshl_b32 s15, s{sRB}, 9
s_cmp_eq_u32 s{sSL}, 10
s_cselect_b32 s{sT0}, 1, s3
s_cmp_lg_u32 s{sT0}, 0
s_cselect_b32 s{sT0}, 0x100000, 0
s_add_u32 s{sT0}, s{sT0}, s15
v_add_u32 v{vPUB}, s{sT0}, v73
s_sub_u32 s15, s15, 512
v_add_u32 v73, s15, v73
v_lshrrev_b32 v74, 5, v1
v_lshlrev_b32 v74, 9, v74
v_sub_u32 v{vGO}, v73, v74''')
    a.e(f'''s_lshl_b32 s15, s3, 11
s_add_u32 s15, s15, {SCR+4096}
v_lshlrev_b32 v73, 6, v72
v_lshrrev_b32 v74, 5, v1
v_lshlrev_b32 v74, 5, v74
v_add_u32 v73, v73, v74
v_add_u32 v{vTW}, s15, v73
v_lshrrev_b32 v73, 4, v1
v_lshlrev_b32 v73, 3, v73
v_bfe_u32 v74, v1, 2, 2
v_add_u32 v73, v73, v74
v_lshlrev_b32 v73, 6, v73
v_and_b32 v74, 3, v1
v_lshlrev_b32 v74, 3, v74
v_add_u32 v73, v73, v74
v_add_u32 v{vTR}, s15, v73''')
    for j in range(1, 8):
        m = sMASK + 2 * (j - 1)
        a.e(f's_cmp_eq_u32 s3, {j>>1}\ns_cselect_b32 s{m+(j&1)}, -1, 0\ns_mov_b32 s{m+1-(j&1)}, 0')
    ssm_consts(a, C1, 64); ssm_consts(a, C2, 68)
    for j in range(8):
        a.e(f'v_subrev_u32 v{GOF+j}, {1024*j}, v{vGO}')
        a.e(f'v_cmp_gt_u32 vcc, 8192, v{GOF+j}\ns_nop 1\nv_cndmask_b32 v{EXP+j}, 0, v{vT}, vcc')

    def run_path(units, pre_done_groups, state):
        pass
    def build(units):
        stages = []; groups = []
        for ui, (kind, acc, soff) in enumerate(units):
            ns = 5 if kind == 'D' else 10
            for s in range(ns):
                n = len(stages); stages.append((kind, soff))
                for g in range(4): groups.append((ui, kind, acc, n, s, g))
        return stages, groups
    bars = cfg.get('bars', [0, 1, 2, 3] + list(range(5, 25, 2)))
    st = dict(dwin=0, issued=5, dmaq=[], rid={})
    def reads(G, groups):
        ui, kind, acc, n, s, g = groups[G]
        slot = n % NS; win = slot // 4; base = (slot % 4) * 16384
        buf = WB + 16 * (G % 3)
        out = []
        if kind == 'Q':
            for m in range(4):
                jh, mat = m >> 1, m & 1
                out.append([f'ds_read_b64_tr_b16 {R(buf+4*m+2*e,2)}, v{vRQ[jh][win]} offset:{base+g*4096+mat*2048+e*512}' for e in range(2)])
        else:
            for m in range(4):
                ks, mat = 2 * g + (m >> 1), m & 1
                out.append([f'ds_read_b128 {R(buf+4*m,4)}, v{vRD[ks&3]} offset:{base+(ks>>2)*8192+mat*4096}'])
        return out, (win if kind == 'D' else None)
    def barrier_for(n, stages, sch):
        nxt = min([b for b in bars if b > n] + [len(stages)])
        a.wait(vm=stage_last[min(nxt, len(stages)) - 1])
        a.e('s_barrier')
        sch.on_barrier()
        while st['issued'] < len(stages) and st['issued'] <= n + NS - 2:
            m = st['issued']; st['dmaq'] += dma_items(m, *stages[m]); st['issued'] += 1
    def set_dwin(w):
        if w is not None and w != st['dwin']:
            d = (w - st['dwin']) * 65536
            for r in vRD: a.e(f'v_add_u32 v{r}, {d & 0xffffffff}, v{r}')
            st['dwin'] = w
    def emit_groups(G0, G1, stages, groups, sch, fillers):
        for G in range(G0, G1):
            ui, kind, acc, n, s, g = groups[G]
            if s == 0 and g == 0 and ui in fillers: sch.set_stream(fillers[ui])
            nx = G + 2
            rd = None
            if nx < len(groups): rd, win = reads(nx, groups)
            buf = WB + 16 * (G % 3)
            for m in range(4):
                if kind == 'Q': ks = 4 * s + g; d = acc + 16 * m
                else: ks = 8 * s + 2 * g + (m >> 1); d = acc + 16 * (m & 1)
                if m == 0: a.wait(lg=st['rid'][G], vm=(xid[ks + 1] if ui == 0 else None))
                c = '0' if ks == 0 else V(d, 16)
                if kind == 'Q': a.e(f'v_mfma_f32_32x32x16_bf16 {V(d,16)}, {R(buf+4*m,4)}, {R(XF+4*ks,4)}, {c}')
                else: a.e(f'v_mfma_f32_32x32x16_bf16 {V(d,16)}, {R(XF+4*ks,4)}, {R(buf+4*m,4)}, {c}')
                budget = cfg['bq'] if (rd and len(rd[0]) == 2) else cfg['bd']
                if m == 0 and rd and groups[nx][5] == 0 and groups[nx][3] in bars:
                    barrier_for(groups[nx][3], stages, sch); budget -= 2
                if rd:
                    for t in rd[m]: st['rid'][nx] = a.lds(t)
                if st['dmaq'] and (m == 1 or (m == 3 and len(st['dmaq']) > 8)):
                    st['dmaq'].pop(0)(); budget -= 1
                if budget > 0: sch.fill(budget)
                if m == 3 and G + 3 < len(groups):
                    set_dwin(reads(G + 3, groups)[1])
    unitsA = [('D', ACC_D, sDOFF1), ('Q', ACC_A, sQOFF1), ('Q', ACC_B, sQOFF2)]
    unitsB = [('D', ACC_D, sDOFF1), ('D', ACC_A, sDOFF2), ('Q', ACC_B, sQOFF2)]
    SP1, SP2 = TMP + 36 - 1, TMP + 36 - 2
    import copy
    a.e(f's_cmp_ge_u32 s{sSL}, 11\ns_cbranch_scc1 L_k1_typeB')
    st0 = copy.deepcopy({k: v for k, v in st.items()}); as0 = a.state(); sl0 = dict(stage_last)
    for typ, units in (('A', unitsA), ('B', unitsB)):
        if typ == 'B':
            a.label('L_k1_typeB')
            a.restore(as0); st.clear(); st.update(copy.deepcopy(st0)); stage_last.clear(); stage_last.update(sl0)
        stages, groups = build(units)
        sch = Sched(a, cfg)
        spare1, spare2 = 0, 2
        if typ == 'A':
            G = ACC_A
            fillers = {
                1: chain([('delay', 3)], f_agg(ACC_D, C1, 0, SA1, 'a1'), f_coef(ACC_D, C1, spare1)),
                2: chain([('delay', 3)], f_epiq(ACC_A, sQ1, [0]), [('delay', 1)], f_gather_issue(G, SA1, 'a1'), f_epiq(ACC_A, sQ1, [1]),
                         f_carry(G, ACC_D, C1, spare1, SA1, sD1, 'a1')),
            }
            tailg = chain([('s', 's_nop 7'), ('s', 's_nop 3')], f_epiq(ACC_B, sQ2, [0, 1]))
        else:
            G = ACC_A + 32
            fillers = {
                1: chain([('delay', 3)], f_agg(ACC_D, C1, 0, SA1, 'a1'), f_coef(ACC_D, C1, spare1)),
                2: chain([('delay', 3)], f_agg(ACC_A, C2, 2048, SA2, 'a2'), f_gather_issue(G, SA1, 'a1'), f_coef(ACC_A, C2, spare2), [('delay', 10)],
                         f_carry(G, ACC_D, C1, spare1, SA1, sD1, 'a1')),
            }
            tailg = chain([('s', 's_nop 7'), ('s', 's_nop 3')], f_gather_issue(ACC_D, SA2, 'a2'), f_epiq(ACC_B, sQ2, [0, 1]),
                          f_carry(ACC_D, ACC_A, C2, spare2, SA2, sD2, 'a2'))
        barrier_for(0, stages, sch)
        for G0 in (0, 1):
            rd, win = reads(G0, groups)
            for lst in rd:
                for t in lst: st['rid'][G0] = a.lds(t)
        emit_groups(0, len(groups), stages, groups, sch, fillers)
        assert not st['dmaq']
        sch.drain()
        sch.set_stream(tailg); sch.drain()
        if typ == 'A': a.e(f's_branch L_end_{name}')
    tail(a, name)
    return a, desc(name, 512, 256)

if __name__ == '__main__':
    cfg = dict(k2map='B', k1map='P', bq=3, bd=4)
    s = assemble([k0(), k1(cfg), k2(cfg)], [('k0_kernel', 32768), ('k1_kernel', 163840), ('k2_kernel', 86016)])
    open(sys.argv[1], 'w').write(s)
```

```python
import sys, copy
from asmlib import *

KNAME = 'parallel_sum__ssm_conv_s5__glu_gated_glu__prompt_kernel'
XNF_OFF = 0
HF_OFF = 4 << 20
W2F_OFF = 20 << 20
AGG_OFF = 24 << 20
NONCE_OFF = 25 << 20
FLG_OFF = (25 << 20) + 65536
DIAG_OFF = 26 << 20
WS_BYTES = 32 << 20
NKS = 94
GOLD = 0x9e3779b9
P_X, P_LRE, P_LIM, P_BRE, P_BIM, P_CRE, P_CIM, P_LDT, P_DSK, P_BX, P_WG, P_WU, P_WD, P_OUT, P_DBG, P_WS = [16 + 2 * i for i in range(16)]
NS = 9
SCR = NS * 16384
LOG2E = 0x3fb8aa3b
NLOG2E = 0xbfb8aa3b
OOB = 0x40000000
SW, SG, SU, SB, SA1, SA2, SH, SP, SF, SO = 48, 52, 56, 60, 64, 68, 72, 76, 16, 20
sRB, sSL, sD1, sD2 = 4, 5, 6, 7
sRB2, sNB = 8, 9
sDOFF1, sDOFF2, sQOFF1, sQOFF2 = 10, 11, 12, 13
sHB = 14
sT0, sT1 = 80, 81
sM0B, sXO = 82, 83
sMASK = 84
sCNT = 98
sH2, sW2, sOO = 24, 25, 26
sNEED0, sNEED2 = 28, 30
sTP = 32
sP0, sP1 = 36, 37
vD = [3, 4, 5, 6]; vQ = [7, 8]
vRQ = [[9, 10, 11], [12, 13, 14]]
vRD = [15, 16, 17, 18]
vHG, vL16, vAGW, vAGR, vPUB, vTW, vTR, vT = 19, 20, 21, 22, 23, 24, 25, 26
vFP = 27
C1, C2 = 28, 44
TMP = 60
GOF = TMP + 20; EXP = TMP + 28
ACC_D, ACC_A, ACC_B = 96, 128, 192
XF = 256; WB = 256 + 160
cLr, cLi, cnLi, cP, cQn, cnP, c16r, c16i, c128r, c128i, c256r, c256i, cqr, cqi, cPr, cPi = range(16)

STAMP = [False]
SNAMES = []
def stamp(a, nm, real=False):
    if not STAMP[0]: return
    if nm not in SNAMES: SNAMES.append(nm)
    i = SNAMES.index(nm); assert i < 32
    a.e(f'{"s_memrealtime" if real else "s_memtime"} s[100:101]')
    a.wait_all(vm=False)
    a.e(f'v_writelane_b32 v0, s100, {i}')
def stamp_out(a):
    if not STAMP[0]: return
    a.e('s_waitcnt vmcnt(0)')
    stamp(a, 'end'); stamp(a, 'rt1', True)
    a.e(f'''s_lshl_b32 s100, s2, 2
s_add_u32 s100, s100, s3
s_lshl_b32 s100, s100, 7
s_add_u32 s100, s100, {DIAG_OFF}
v_lshlrev_b32 v4, 2, v1
s_mov_b64 exec, 0xffffffff
buffer_store_dword v0, v4, s[{SW}:{SW+3}], s100 offen''')
def sitem(nm): return ('raw', lambda a: stamp(a, nm), 0)

def items(text, kind=None):
    for ln in text.strip().split('\n'):
        ln = ln.strip()
        if not ln: continue
        op = ln.split()[0]
        if op in TRANS: yield ('t', ln)
        elif op.startswith('s_'): yield ('s', ln)
        else: yield ('v', ln)
def chain(*gens):
    for g in gens: yield from g

def bfround_t(d, s): return f'v_cvt_pk_bf16_f32 v{d}, v{s}, v{s}\nv_lshlrev_b32 v{d}, 16, v{d}\n'
def cmul_sq(dr, di, sr, si, t):
    return f'v_mul_f32 v{t}, v{si}, v{si}\nv_mul_f32 v{di}, v{sr}, v{si}\nv_fma_f32 v{dr}, v{sr}, v{sr}, -v{t}\nv_add_f32 v{di}, v{di}, v{di}\n'
def ssm_consts(C, l0):
    t = TMP + 8
    s = f'''v_lshlrev_b32 v{l0+2}, 16, v{l0+2}
v_mul_f32 v{l0+2}, {LOG2E}, v{l0+2}
v_exp_f32 v{l0+2}, v{l0+2}
v_lshlrev_b32 v{l0}, 16, v{l0}
v_lshlrev_b32 v{l0+1}, 16, v{l0+1}
''' + bfround_t(l0 + 2, l0 + 2) + f'''v_mul_f32 v{t}, v{l0+2}, v{l0}
v_mul_f32 v{t+1}, v{l0+2}, v{l0+1}
v_mul_f32 v{t}, {LOG2E}, v{t}
v_mul_f32 v{t+1}, 0.15915494, v{t+1}
v_exp_f32 v{t}, v{t}
v_fract_f32 v{t+1}, v{t+1}
v_cos_f32 v{t+2}, v{t+1}
v_sin_f32 v{t+3}, v{t+1}
v_mul_f32 v{t+4}, v{l0}, v{l0}
v_fmac_f32 v{t+4}, v{l0+1}, v{l0+1}
v_mul_f32 v{C+cLr}, v{t}, v{t+2}
v_mul_f32 v{C+cLi}, v{t}, v{t+3}
v_rcp_f32 v{t+4}, v{t+4}
v_sub_f32 v{C+cnLi}, 0, v{C+cLi}
v_add_f32 v{t+5}, -1.0, v{C+cLr}
v_add_f32 v{t+4}, v{t+4}, v{t+4}
v_mul_f32 v{t+6}, v{t+5}, v{l0}
v_fmac_f32 v{t+6}, v{C+cLi}, v{l0+1}
v_mul_f32 v{t+7}, v{t+5}, v{l0+1}
v_fmac_f32 v{t+7}, v{C+cnLi}, v{l0}
v_mul_f32 v{C+cP}, v{t+6}, v{t+4}
v_mul_f32 v{C+cQn}, v{t+7}, v{t+4}
v_sub_f32 v{C+cnP}, 0, v{C+cP}
'''
    s += cmul_sq(t, t + 1, C + cLr, C + cLi, t + 8) + cmul_sq(t + 2, t + 3, t, t + 1, t + 8) + cmul_sq(t, t + 1, t + 2, t + 3, t + 8)
    s += cmul_sq(C + c16r, C + c16i, t, t + 1, t + 8) + cmul_sq(t, t + 1, C + c16r, C + c16i, t + 8) + cmul_sq(t + 2, t + 3, t, t + 1, t + 8)
    s += cmul_sq(C + c128r, C + c128i, t + 2, t + 3, t + 8) + cmul_sq(C + c256r, C + c256i, C + c128r, C + c128i, t + 8)
    s += f'''s_mov_b32 s{sT0}, 0
s_mov_b32 s{sT1}, -1
v_cndmask_b32 v{C+cqr}, 1.0, v{C+c16r}, s[{sT0}:{sT1}]
v_cndmask_b32 v{C+cqi}, 0, v{C+c16i}, s[{sT0}:{sT1}]
'''
    for bit, (pr, pi) in ((0, (t, t + 1)), (1, (t + 2, t + 3))):
        s += f'''s_bfe_i32 s{sT0}, s3, {0x10000 | bit}
s_mov_b32 s{sT1}, s{sT0}
v_cndmask_b32 v{t+4}, 1.0, v{pr}, s[{sT0}:{sT1}]
v_cndmask_b32 v{t+5}, 0, v{pi}, s[{sT0}:{sT1}]
v_mul_f32 v{t+6}, v{C+cqr}, v{t+4}
v_mul_f32 v{t+7}, v{C+cqr}, v{t+5}
v_fma_f32 v{C+cqr}, -v{C+cqi}, v{t+5}, v{t+6}
v_fma_f32 v{C+cqi}, v{C+cqi}, v{t+4}, v{t+7}
'''
    s += f'v_mov_b32 v{C+cPr}, 0\nv_mov_b32 v{C+cPi}, 0\n'
    return s

def cfma(dr, di, lr, li, sr, si):
    yield ('v', f'v_fmac_f32 v{dr}, v{lr}, v{sr}')
    yield ('v', f'v_fmac_f32 v{di}, v{lr}, v{si}')
    yield ('v', f'v_fma_f32 v{dr}, -v{li}, v{si}, v{dr}')
    yield ('v', f'v_fmac_f32 v{di}, v{li}, v{sr}')

def f_agg(acc, C, area, SA, tag):
    sr, si = acc, acc + 16
    for r in range(1, 16):
        t = TMP + 2 * (r & 1)
        yield ('v', f'v_fma_f32 v{t}, v{C+cLr}, v{sr}, v{acc+r}')
        yield ('v', f'v_fma_f32 v{t+1}, v{C+cLr}, v{si}, v{acc+16+r}')
        yield ('v', f'v_fmac_f32 v{t}, v{C+cnLi}, v{si}')
        yield ('v', f'v_fmac_f32 v{t+1}, v{C+cLi}, v{sr}')
        sr, si = t, t + 1
    yield ('lds', f'ds_write_b64 v{vAGW}, v[{sr}:{si}] offset:{area}', tag + 'w')
    yield ('delay', 2)
    yield ('wl', tag + 'w')
    yield ('forcebar',)
    g = TMP + 4
    for j in range(8):
        yield ('lds', f'ds_read_b64 v[{g+2*j}:{g+2*j+1}], v{vAGR} offset:{area+256*j}', tag + f'r{j}')
    yield ('delay', 3)
    yield ('wl', tag + 'r7')
    for j in range(1, 8):
        pr, pi = g + 2 * (j - 1), g + 2 * (j - 1) + 1
        yield from cfma(g + 2 * j, g + 2 * j + 1, C + c16r, C + c16i, pr, pi)
    yield ('v', f'v_mov_b32 v{TMP}, v{g+14}')
    yield ('v', f'v_mov_b32 v{TMP+1}, v{vT}')
    yield ('v', f'v_mov_b32 v{TMP+2}, v{g+15}')
    yield ('v', f'v_mov_b32 v{TMP+3}, v{vT}')
    yield ('vm', f'buffer_store_dwordx4 v[{TMP}:{TMP+3}], v{vPUB}, s[{SA}:{SA+3}], 0 offen sc1', tag + 'pub')
    yield sitem(tag + 'pub')
    for j in range(1, 8):
        pr, pi = g + 2 * (j - 1), g + 2 * (j - 1) + 1
        m = sMASK + 2 * (j - 1)
        yield ('v', f'v_cndmask_b32 v{C+cPr}, v{C+cPr}, v{pr}, s[{m}:{m+1}]')
        yield ('v', f'v_cndmask_b32 v{C+cPi}, v{C+cPi}, v{pi}, s[{m}:{m+1}]')

def ren(acc, spare): return [spare] + [acc + r for r in range(15)]
def f_coef(acc, C, spare):
    an = ren(acc, spare)
    for r in range(16):
        ar, br = acc + r, acc + 16 + r
        yield ('v', f'v_mul_f32 v{an[r]}, v{C+cP}, v{ar}')
        yield ('v', f'v_fmac_f32 v{an[r]}, v{C+cQn}, v{br}')
        yield ('v', f'v_mul_f32 v{br}, v{C+cnP}, v{br}')
        yield ('v', f'v_fmac_f32 v{br}, v{C+cQn}, v{ar}')
def f_gather_issue(G, SA, tag):
    for j in range(8):
        yield ('vm', f'buffer_load_dwordx4 v[{G+4*j}:{G+4*j+3}], v{GOF+j}, s[{SA}:{SA+3}], 0 offen sc1', tag + f'g{j}')
SPIN = 20000
def f_carry(G, acc, C, spare, SA, sD, tag):
    yield ('wv', tag + 'g7')
    t0 = TMP + 4
    yield ('v', f'v_xor_b32 v{t0}, v{G+1}, v{EXP}')
    yield ('v', f'v_xor_b32 v{t0+1}, v{G+3}, v{EXP}')
    for j in range(1, 8):
        yield ('v', f'v_bitop3_b32 v{t0}, v{t0}, v{G+4*j+1}, v{EXP+j} bitop3:0xf6')
        yield ('v', f'v_bitop3_b32 v{t0+1}, v{t0+1}, v{G+4*j+3}, v{EXP+j} bitop3:0xf6')
    yield ('v', f'v_or_b32 v{t0}, v{t0}, v{t0+1}')
    def chk(a):
        slow = a.newlabel('slow'); ok = a.newlabel('ok')
        a.e(f'v_cmp_ne_u32 vcc, 0, v{t0}\ns_nop 1\ns_cmp_lg_u64 vcc, 0\ns_cbranch_scc1 {slow}')
        a.label(ok)
        s = f'{slow}:\ns_mov_b32 s{sCNT}, 0\n{slow}_l:\ns_sleep 2\n'
        for j in range(8):
            s += f'buffer_load_dwordx4 v[{G+4*j}:{G+4*j+3}], v{GOF+j}, s[{SA}:{SA+3}], 0 offen sc1\n'
        s += f's_waitcnt vmcnt(0)\nv_xor_b32 v{t0}, v{G+1}, v{EXP}\nv_xor_b32 v{t0+1}, v{G+3}, v{EXP}\n'
        for j in range(1, 8):
            s += f'v_bitop3_b32 v{t0}, v{t0}, v{G+4*j+1}, v{EXP+j} bitop3:0xf6\nv_bitop3_b32 v{t0+1}, v{t0+1}, v{G+4*j+3}, v{EXP+j} bitop3:0xf6\n'
        s += f'''v_or_b32 v{t0}, v{t0}, v{t0+1}
v_cmp_ne_u32 vcc, 0, v{t0}
s_add_u32 s{sCNT}, s{sCNT}, 1
s_cmp_gt_u32 s{sCNT}, {SPIN}
s_cbranch_scc1 {ok}
s_cmp_lg_u64 vcc, 0
s_cbranch_scc1 {slow}_l
s_branch {ok}
'''
        a.cold.append(s)
    yield sitem(tag + 'w')
    yield ('raw', chk, 4)
    yield sitem(tag + 'ok')
    for j in range(6, -1, -1):
        yield from cfma(G + 4 * j, G + 4 * j + 2, C + c256r, C + c256i, G + 4 * j + 4, G + 4 * j + 6)
    yield ('v', f'v_mov_b32 v{G+4}, v{G}')
    yield ('v', f'v_mov_b32 v{G+6}, v{G+2}')
    yield ('s', f's_lshl_b32 s{sT0}, s{sD}, 13')
    yield ('s', f's_add_u32 s{sT0}, s{sT0}, s{sHB}')
    yield ('v', f'v_permlane32_swap_b32 v{G}, v{G+4}')
    yield ('v', f'v_permlane32_swap_b32 v{G+2}, v{G+6}')
    yield ('s', f's_add_u32 s{sT0}, s{sT0}, {32*4096}')
    yield ('s', f's_add_u32 s{sT1}, s{sT0}, 4096')
    yield from cfma(G, G + 2, C + c128r, C + c128i, G + 4, G + 6)
    yield from cfma(C + cPr, C + cPi, C + cqr, C + cqi, G, G + 2)
    yield ('v', f'v_mul_f32 v{G}, v{C+cP}, v{C+cPr}')
    yield ('v', f'v_mul_f32 v{G+1}, v{C+cQn}, v{C+cPr}')
    yield ('v', f'v_fmac_f32 v{G}, v{C+cQn}, v{C+cPi}')
    yield ('v', f'v_fmac_f32 v{G+1}, v{C+cnP}, v{C+cPi}')
    an = ren(acc, spare)
    pr, pi = G, G + 1
    for r in range(16):
        ar, br = an[r], acc + 16 + r
        yield ('v', f'v_fmac_f32 v{ar}, v{C+cLr}, v{pr}')
        yield ('v', f'v_fmac_f32 v{br}, v{C+cLr}, v{pi}')
        yield ('v', f'v_fmac_f32 v{ar}, v{C+cLi}, v{pi}')
        yield ('v', f'v_fmac_f32 v{br}, v{C+cnLi}, v{pr}')
        pr, pi = ar, br
    for k in range(8):
        yield ('v', f'v_cvt_pk_bf16_f32 v{G+k}, v{an[2*k]}, v{an[2*k+1]}')
    for k in range(8):
        yield ('v', f'v_cvt_pk_bf16_f32 v{G+8+k}, v{acc+16+2*k}, v{acc+17+2*k}')
    for comp in range(2):
        yield ('lds', f'ds_write_b128 v{vTW}, v[{G+8*comp}:{G+8*comp+3}]', tag + f'tw{comp}a')
        yield ('lds', f'ds_write_b128 v{vTW}, v[{G+8*comp+4}:{G+8*comp+7}] offset:16', tag + f'tw{comp}b')
        for h2 in range(2):
            for e in range(2):
                d = G + 16 + 8 * comp + 4 * h2 + 2 * e
                yield ('lds', f'ds_read_b64_tr_b16 v[{d}:{d+1}], v{vTR} offset:{h2*32+e*256}', tag + f'tr{comp}{h2}{e}')
    yield ('delay', 3)
    yield ('wl', tag + 'tr111')
    for comp in range(2):
        for h2 in range(2):
            d = G + 16 + 8 * comp + 4 * h2
            yield ('vm', f'buffer_store_dwordx4 v[{d}:{d+3}], v{vL16}, s[{SH}:{SH+3}], s{sT0+comp} offen offset:{h2*1024} sc1', 'lastH')

def f_epiq(acc, kbase):
    for jh in range(2):
        G = acc + 32 * jh; U = G + 16
        yield ('s', f's_lshl_b32 s{sXO}, s{sSL}, 13')
        yield ('s', f's_add_u32 s{sXO}, s{sXO}, s{sHB}')
        if kbase + jh: yield ('s', f's_add_u32 s{sXO}, s{sXO}, {4096*(kbase+jh)}')
        for b in range(4):
            rs = range(4 * b, 4 * b + 4)
            for r in rs: yield ('v', f'v_mul_f32 v{G+r}, {NLOG2E}, v{G+r}')
            for r in rs: yield ('t', f'v_exp_f32 v{G+r}, v{G+r}')
            for r in rs: yield ('v', f'v_add_f32 v{G+r}, 1.0, v{G+r}')
            for r in rs: yield ('t', f'v_rcp_f32 v{G+r}, v{G+r}')
            for r in rs: yield ('v', f'v_mul_f32 v{G+r}, v{G+r}, v{U+r}')
            c = b >> 1
            for k in range(2):
                yield ('v', f'v_cvt_pk_bf16_f32 v{U+8*c+2*(b&1)+k}, v{G+4*b+2*k}, v{G+4*b+2*k+1}')
            if b & 1:
                yield ('vm', f'buffer_store_dwordx4 v[{U+8*c}:{U+8*c+3}], v{vHG}, s[{SW}:{SW+3}], s{sXO} offen offset:{512*c} sc1', 'lastH')

def f_publish(level, delay):
    yield ('delay', delay)
    yield ('wv', 'lastH')
    yield ('vm', f'buffer_store_dword v{vT}, v{vFP}, s[{SF}:{SF+3}], 0 offen offset:{256*level} sc1', None)

def poll_load(dst, vaddr, off, n=1):
    x = '' if n == 1 else f'x{n}'
    return f'buffer_load_dword{x} {V(dst,n)}, v{vaddr}, s[{SF}:{SF+3}], 0 offen offset:{off} sc1'
def poll_check(dst, vaddr, off, need, n=1):
    def cmp_txt():
        s = ''
        if n > 1:
            s += f'v_xor_b32 v{dst}, v{dst}, v{vT}\n'
            for k in range(1, n): s += f'v_bitop3_b32 v{dst}, v{dst}, v{dst+k}, v{vT} bitop3:0xf6\n'
            s += f'v_cmp_ne_u32 vcc, 0, v{dst}\n'
        else: s += f'v_cmp_ne_u32 vcc, v{dst}, v{vT}\n'
        s += 's_nop 1\n'
        s += f's_and_b64 s[{sTP}:{sTP+1}], vcc, s[{need}:{need+1}]\n' if need else 's_cmp_lg_u64 vcc, 0\n'
        return s
    def chk(a):
        slow = a.newlabel('slow'); ok = a.newlabel('ok')
        a.e(cmp_txt() + f's_cbranch_scc1 {slow}')
        a.label(ok)
        a.cold.append(f'''{slow}:
s_mov_b32 s{sCNT}, 0
{slow}_l:
s_add_u32 s{sCNT}, s{sCNT}, 1
s_cmp_gt_u32 s{sCNT}, {SPIN}
s_cbranch_scc1 {ok}
{poll_load(dst, vaddr, off, n)}
s_waitcnt vmcnt(0)
{cmp_txt()}s_cbranch_scc1 {slow}_l
s_branch {ok}
''')
    return chk

class Sched:
    def __init__(self, a):
        self.a = a; self.keys = {}
        self.stream = None; self.pend = None; self.delay = 0; self.blocked = False
    def add(self, gen):
        self.stream = gen if self.stream is None else chain(self.stream, gen)
    def peek(self):
        if self.pend is None and self.stream is not None:
            self.pend = next(self.stream, None)
            if self.pend is None: self.stream = None
        return self.pend
    def emit_item(self, it):
        a = self.a; k = it[0]
        if k in ('v', 's'): a.e(it[1]); return 1
        if k == 't': a.e(it[1]); return 2
        if k == 'lds': self.keys[it[2]] = a.lds(it[1]); return 1
        if k == 'vm': self.keys[it[2]] = a.vm(it[1]); return 1
        if k == 'wl': return 1 if a.wait(lg=self.keys[it[1]]) else 0
        if k == 'wv': return 1 if a.wait(vm=self.keys[it[1]]) else 0
        if k == 'raw': it[1](a); return it[2]
        if k == 'forcebar': a.e('s_barrier'); return 1
        if k == 'call': it[1](); return 0
        raise ValueError(k)
    def fill(self, budget):
        if self.delay > 0: self.delay -= 1; return
        used = 0; valu_seen = False
        while not self.blocked:
            it = self.peek()
            if it is None: return
            k = it[0]
            if k == 'delay': self.delay = it[1]; self.pend = None; return
            if k == 'needbar': self.blocked = True; self.pend = None; return
            if k in ('lds', 'vm') and valu_seen: return
            cost = 2 if k == 't' else 1
            if used + cost > budget and used > 0: return
            self.pend = None
            used += self.emit_item(it)
            if k in ('v', 't', 'raw'): valu_seen = True
    def on_barrier(self): self.blocked = False
    def drain(self, every=None):
        n = 0
        while True:
            if self.blocked:
                self.a.e('s_barrier'); self.blocked = False
            it = self.peek()
            if it is None: return
            self.pend = None
            if it[0] == 'delay': continue
            if it[0] == 'needbar': self.blocked = True; continue
            n += self.emit_item(it)
            if every and n >= every[0]:
                n = 0; every[1]()

def kernel(cfg):
    a = Asm(); a.cold = []
    name = KNAME
    nt = ' nt' if cfg.get('nt') else ''
    a.e(f'.globl {name}\n.p2align 8\n.type {name},@function')
    a.label(name)
    a.e(f's_cmp_ge_u32 s2, 256\ns_cbranch_scc1 L_end')
    a.e('''s_load_dwordx16 s[16:31], s[0:1], 0
s_load_dwordx16 s[32:47], s[0:1], 64
v_lshrrev_b32 v2, 6, v0
v_and_b32 v1, 63, v0
v_readfirstlane_b32 s3, v2''')
    a.e('s_and_b32 s10, s2, 7\ns_lshr_b32 s11, s2, 3')
    mp = cfg['k1map']
    if mp == 'P':
        a.e(f's_lshr_b32 s{sRB}, s10, 1\ns_lshl_b32 s{sRB}, s{sRB}, 2\ns_lshr_b32 s12, s11, 3\ns_add_u32 s{sRB}, s{sRB}, s12\ns_and_b32 s{sSL}, s11, 7\ns_lshl_b32 s{sSL}, s{sSL}, 1\ns_and_b32 s12, s10, 1\ns_add_u32 s{sSL}, s{sSL}, s12')
    elif mp == 'R':
        a.e(f's_lshr_b32 s{sRB}, s10, 2\ns_lshl_b32 s{sRB}, s{sRB}, 3\ns_lshr_b32 s12, s11, 2\ns_add_u32 s{sRB}, s{sRB}, s12\ns_and_b32 s{sSL}, s11, 3\ns_lshl_b32 s{sSL}, s{sSL}, 2\ns_and_b32 s12, s10, 3\ns_add_u32 s{sSL}, s{sSL}, s12')
    elif mp == 'T':
        a.e(f's_lshl_b32 s{sRB}, s10, 1\ns_lshr_b32 s12, s11, 4\ns_add_u32 s{sRB}, s{sRB}, s12\ns_and_b32 s{sSL}, s11, 15')
    if cfg['k2map'] == 'A':
        a.e(f's_lshl_b32 s{sRB2}, s10, 2\ns_lshr_b32 s12, s11, 3\ns_add_u32 s{sRB2}, s{sRB2}, s12\ns_and_b32 s{sNB}, s11, 7')
    else:
        a.e(f's_lshr_b32 s{sRB2}, s10, 1\ns_lshl_b32 s{sRB2}, s{sRB2}, 3\ns_lshr_b32 s12, s11, 2\ns_add_u32 s{sRB2}, s{sRB2}, s12\ns_and_b32 s{sNB}, s10, 1\ns_lshl_b32 s{sNB}, s{sNB}, 2\ns_and_b32 s12, s11, 3\ns_add_u32 s{sNB}, s{sNB}, s12')
    a.e(f'''s_lshl_b32 s10, s{sSL}, 1
s_sub_u32 s11, s10, 12
s_min_u32 s13, s{sSL}, 9
s_cmp_ge_u32 s{sSL}, 11
s_cselect_b32 s{sD1}, s11, s13
s_add_u32 s{sD2}, s{sD1}, 1''')
    XV, RT, vXA = 192, 212, 228
    vJ, vRHO, vDA = 229, 230, 231
    XR, DR = 232, 242
    DV = 96
    tl = 128
    sT_, sB_ = 99, 15
    a.e(f'''s_lshl_b32 s{sT_}, s{sRB}, 2
s_lshr_b32 s10, s{sSL}, 2
s_add_u32 s{sT_}, s{sT_}, s10
s_and_b32 s{sB_}, s{sSL}, 3
v_and_b32 v{vJ}, 31, v1
v_lshrrev_b32 v{tl}, 5, v1
s_lshl_b32 s10, s3, 1
v_add_u32 v{vRHO}, s10, v{tl}
v_and_b32 v{tl}, 3, v{vRHO}
v_lshrrev_b32 v{tl+1}, 2, v{vRHO}
v_lshlrev_b32 v{tl+1}, 4, v{tl+1}
v_add_u32 v{tl}, v{tl}, v{tl+1}
s_lshl_b32 s10, s{sT_}, 5
s_lshl_b32 s11, s{sB_}, 2
s_add_u32 s10, s10, s11
v_add_u32 v{tl}, s10, v{tl}
v_lshlrev_b32 v{vDA}, 3, v{vJ}
v_mul_u32_u24 v{vXA}, 1280, v{tl}
v_add_u32 v{vXA}, v{vXA}, v{vDA}
v_lshlrev_b32 v{vL16}, 4, v1
v_mov_b32 v{tl}, 0
s_lshl_b32 s{sM0B}, s3, 12
s_mov_b32 s10, {NONCE_OFF}
s_waitcnt lgkmcnt(0)''')
    stamp(a, 'rt0', True); stamp(a, 't0')
    a.srd(SP, P_X, 2621440)
    xl = [a.vm(f'buffer_load_dwordx2 v[{XR+2*n}:{XR+2*n+1}], v{vXA}, s[{SP}:{SP+3}], 0 offen offset:{256*n}{nt}') for n in range(5)]
    a.srd(SW, P_WS, WS_BYTES)
    nonce = a.vm(f'buffer_load_dword v{vT}, v{tl}, s[{SW}:{SW+3}], s10 offen sc1')
    sU, sKS, sCG, sRO, sROLE = 84, 85, 86, 87, 88
    a.e(f's_lshl_b32 s{sU}, s2, 2\ns_add_u32 s{sU}, s{sU}, s3\ns_mov_b32 s{sROLE}, 1\ns_cmp_ge_u32 s{sU}, 540\ns_cbranch_scc1 L_rt_c')
    a.sdiv(sKS, sU, 10, 540)
    a.e(f's_mul_i32 s{sCG}, s{sKS}, 10\ns_sub_u32 s{sCG}, s{sU}, s{sCG}')
    a.srd(SP, P_WD, 1728 * 1280)
    a.e(f'''v_lshrrev_b32 v{tl+2}, 3, v1
v_mul_u32_u24 v{tl+2}, 1280, v{tl+2}
v_and_b32 v{tl+3}, 7, v1
v_lshlrev_b32 v{tl+3}, 4, v{tl+3}
v_add_u32 v{tl+2}, v{tl+2}, v{tl+3}
s_mul_i32 s11, s{sKS}, 40960
s_lshl_b32 s12, s{sCG}, 7
s_add_u32 s11, s11, s12
s_add_u32 m0, s{sM0B}, {8*16384}''')
    st = a.state()
    for j in range(4):
        a.e(f's_add_u32 s13, s11, {j*(10240-1024)}')
        rtl = a.vm(f'buffer_load_dwordx4 v{tl+2}, s[{SP}:{SP+3}], s13 offen offset:{1024*j}{nt} lds')
    a.e('s_branch L_rt_done')
    a.label('L_rt_c')
    a.restore(st)
    a.e(f's_mov_b32 s{sROLE}, 2\ns_sub_u32 s{sU}, s{sU}, 540\ns_cmp_ge_u32 s{sU}, 200\ns_cselect_b32 s{sKS}, 1, 0')
    a.e(f's_cselect_b32 s{SP}, s{P_CIM}, s{P_CRE}\ns_cselect_b32 s{SP+1}, s{P_CIM+1}, s{P_CRE+1}\ns_mov_b32 s{SP+2}, 819200\ns_mov_b32 s{SP+3}, 0x00020000')
    a.e(f's_mul_i32 s10, s{sKS}, 200\ns_sub_u32 s{sU}, s{sU}, s10')
    a.sdiv(sCG, sU, 5, 300)
    a.e(f's_mul_i32 s11, s{sCG}, 5\ns_sub_u32 s{sRO}, s{sU}, s11')
    a.e(f'''v_and_b32 v{tl+2}, 15, v1
v_mul_u32_u24 v{tl+2}, 1280, v{tl+2}
v_lshrrev_b32 v{tl+3}, 4, v1
v_lshlrev_b32 v{tl+3}, 4, v{tl+3}
v_add_u32 v{tl+2}, v{tl+2}, v{tl+3}
s_mul_i32 s12, s{sCG}, 20480
s_lshl_b32 s13, s{sRO}, 8
s_add_u32 s12, s12, s13''')
    for q in range(4):
        a.vm(f'buffer_load_dwordx4 v[{RT+4*q}:{RT+4*q+3}], v{tl+2}, s[{SP}:{SP+3}], s12 offen offset:{64*q}')
    a.label('L_rt_done')
    a.srd(SP, P_DSK, 1280)
    dl = [a.vm(f'buffer_load_dwordx2 v[{DR+2*n}:{DR+2*n+1}], v{vDA}, s[{SP}:{SP+3}], 0 offen offset:{256*n}') for n in range(5)]
    a.e(f'v_lshlrev_b32 v{tl+4}, 1, v{vJ}\ns_lshl_b32 s10, s{sD1}, 6')
    for i, p in enumerate((P_LRE, P_LIM, P_LDT)):
        a.srd(SP, p, 1280)
        a.vm(f'buffer_load_ushort v{TMP+i}, v{tl+4}, s[{SP}:{SP+3}], s10 offen')
        pid = a.vm(f'buffer_load_ushort v{TMP+4+i}, v{tl+4}, s[{SP}:{SP+3}], s10 offen offset:64')
    a.srd(SG, P_WG, 640 * 3456); a.srd(SU, P_WU, 640 * 3456 + 2048, add=-2048)
    a.e(f's_and_b32 s10, s3, 1\ns_cselect_b32 s{SB}, s{P_BIM}, s{P_BRE}\ns_cselect_b32 s{SB+1}, s{P_BIM+1}, s{P_BRE+1}\ns_mov_b32 s{SB+2}, 819200\ns_mov_b32 s{SB+3}, 0x00020000')
    a.srd(SF, P_WS, 32768, add=FLG_OFF)
    a.srd(SO, P_OUT, 5242880)
    a.e(f'''v_lshrrev_b32 v{tl+5}, 3, v1
v_and_b32 v{tl+6}, 7, v1
v_lshrrev_b32 v{tl+7}, 1, v{tl+5}
v_xor_b32 v{tl+8}, v{tl+6}, v{tl+7}
v_lshlrev_b32 v{tl+8}, 4, v{tl+8}
v_mul_u32_u24 v{tl+9}, 1280, v{tl+5}
v_add_u32 v{vD[0]}, v{tl+9}, v{tl+8}
v_xor_b32 v{tl+8}, 64, v{tl+8}
v_add_u32 v{vD[1]}, v{tl+9}, v{tl+8}
v_add_u32 v{vD[1]}, {10240-1024}, v{vD[1]}
v_add_u32 v{vD[2]}, {2*(10240-1024)}, v{vD[0]}
v_add_u32 v{vD[3]}, {2*(10240-1024)}, v{vD[1]}
v_and_b32 v{tl+7}, 1, v{tl+7}
v_lshlrev_b32 v{tl+7}, 2, v{tl+7}
v_xor_b32 v{tl+8}, v{tl+6}, v{tl+7}
v_lshlrev_b32 v{tl+8}, 4, v{tl+8}
v_mul_u32_u24 v{tl+9}, 3456, v{tl+5}
v_add_u32 v{vQ[0]}, v{tl+9}, v{tl+8}
v_add_u32 v{vQ[1]}, {8*3456-1024}, v{vQ[0]}
s_lshr_b32 s14, s3, 1
s_lshl_b32 s14, s14, 7
s_mul_i32 s{sDOFF1}, s{sD1}, 40960
s_add_u32 s{sDOFF1}, s{sDOFF1}, s14
s_add_u32 s{sDOFF2}, s{sDOFF1}, 40960
s_mul_i32 s14, s3, {16*3456}
s_lshl_b32 s{sQOFF1}, s{sSL}, 7
s_add_u32 s{sQOFF1}, s{sQOFF1}, s14
s_add_u32 s{sQOFF2}, s{sQOFF1}, 2048
s_lshl_b32 s{sXO}, s{sRB}, 2
s_add_u32 s{sXO}, s{sXO}, s3
s_mul_i32 s{sXO}, s{sXO}, 40960''')
    if XNF_OFF: a.e(f's_add_u32 s{sXO}, s{sXO}, {XNF_OFF}')
    a.e(f'''v_lshrrev_b32 v{tl+5}, 5, v1
v_lshlrev_b32 v{tl+5}, 3, v{tl+5}
v_bfe_u32 v{tl+6}, v1, 2, 2
v_add_u32 v{tl+5}, v{tl+5}, v{tl+6}
v_lshlrev_b32 v{tl+5}, 7, v{tl+5}
v_bfe_u32 v{tl+6}, v1, 3, 1
v_lshlrev_b32 v{tl+6}, 6, v{tl+6}
v_add_u32 v{tl+5}, v{tl+5}, v{tl+6}
v_bfe_u32 v{tl+6}, v1, 4, 1
v_lshlrev_b32 v{tl+6}, 5, v{tl+6}
v_add_u32 v{tl+5}, v{tl+5}, v{tl+6}
v_and_b32 v{tl+6}, 3, v1
v_lshlrev_b32 v{tl+6}, 3, v{tl+6}
v_add_u32 v{vRQ[0][0]}, v{tl+5}, v{tl+6}
v_xor_b32 v{vRQ[1][0]}, 64, v{vRQ[0][0]}''')
    for jh in range(2):
        for wn in (1, 2): a.e(f'v_add_u32 v{vRQ[jh][wn]}, {65536*wn}, v{vRQ[jh][0]}')
    vLW, vLR, vXS, vFL0 = tl + 10, tl + 11, tl + 12, tl + 13
    a.e(f'''v_lshrrev_b32 v{tl+5}, 1, v{vJ}
v_and_b32 v{tl+6}, 7, v{tl+5}
v_xor_b32 v{tl+6}, v{tl+6}, v{vRHO}
v_lshlrev_b32 v{tl+6}, 4, v{tl+6}
v_lshlrev_b32 v{tl+5}, 7, v{tl+5}
v_add_u32 v{tl+5}, v{tl+5}, v{tl+6}
v_and_b32 v{tl+6}, 1, v{vJ}
v_lshlrev_b32 v{tl+6}, 3, v{tl+6}
v_add_u32 v{tl+5}, v{tl+5}, v{tl+6}
v_add_u32 v{vLW}, {SCR}, v{tl+5}
v_lshrrev_b32 v{tl+5}, 3, v1
v_and_b32 v{tl+6}, 7, v1
v_xor_b32 v{tl+7}, v{tl+5}, v{tl+6}
v_lshlrev_b32 v{tl+7}, 4, v{tl+7}
v_lshlrev_b32 v{tl+8}, 7, v{tl+5}
v_add_u32 v{tl+7}, v{tl+7}, v{tl+8}
s_lshl_b32 s14, s3, 10
s_add_u32 s14, s14, {SCR}
v_add_u32 v{vLR}, s14, v{tl+7}
v_lshlrev_b32 v{tl+8}, 9, v{tl+5}
v_lshlrev_b32 v{tl+6}, 4, v{tl+6}
v_add_u32 v{vXS}, v{tl+8}, v{tl+6}
s_mul_i32 s{sT0}, s{sT_}, 40960
s_lshl_b32 s14, s{sB_}, 7
s_add_u32 s{sT0}, s{sT0}, s14
s_add_u32 s{sT0}, s{sT0}, s{sM0B}
s_add_u32 s{sT1}, s{sT0}, 16384
s_cmp_ge_u32 s3, 2
s_cselect_b32 s{sT_}, {OOB}, 32768
s_add_u32 s{sT_}, s{sT_}, s{sT0}
s_lshl_b32 s14, s{sRB}, 10
v_lshlrev_b32 v{tl+5}, 2, v1
v_add_u32 v{vFL0}, s14, v{tl+5}
s_lshl_b32 s{sB_}, s{sSL}, 4
s_add_u32 s14, s14, s{sB_}
s_lshl_b32 s{sB_}, s3, 2
s_add_u32 s14, s14, s{sB_}
v_mov_b32 v{vFP}, {OOB}
v_writelane_b32 v{vFP}, s14, 0
s_lshl_b32 s14, s3, 4
s_mov_b32 s{sNEED0}, 0xffff
s_mov_b32 s{sNEED0+1}, 0
s_lshl_b64 s[{sNEED0}:{sNEED0+1}], s[{sNEED0}:{sNEED0+1}], s14''')
    assert XNF_OFF == 0
    stage_last = {}
    def dma_items(n, kind, soff):
        slot = n % NS
        out = []
        for j in range(4):
            def th(j=j):
                if j == 0: a.e(f's_add_u32 m0, s{sM0B}, {slot*16384}\ns_nop 0')
                if kind == 'D': i = a.vm(f'buffer_load_dwordx4 v{vD[j]}, s[{SB}:{SB+3}], s{soff} offen offset:{1024*j}{nt} lds')
                else:
                    srd = SG if j < 2 else SU
                    i = a.vm(f'buffer_load_dwordx4 v{vQ[j&1]}, s[{srd}:{srd+3}], s{soff} offen offset:{1024*j}{nt} lds')
                if j == 3:
                    a.e(f's_add_u32 s{soff}, s{soff}, {256 if kind=="D" else 64*3456}')
                    stage_last[n] = i
            out.append(th)
        return out
    npre = 0
    for n in range(cfg.get('pre0', 0)):
        for th in dma_items(npre, 'Q', sQOFF1): th()
        npre += 1
    a.wait(vm=xl[-1])
    stamp(a, 'x')
    def P(r): return f'v[{r}:{r+1}]'
    for n in range(10):
        a.e(f'v_lshlrev_b32 v{XV+2*n}, 16, v{XR+n}\nv_and_b32 v{XV+2*n+1}, 0xffff0000, v{XR+n}')
    m_, q_ = tl, tl + 2
    a.e(f'v_pk_add_f32 {P(m_)}, {P(XV)}, {P(XV+2)}\nv_pk_add_f32 {P(q_)}, {P(XV+4)}, {P(XV+6)}')
    for n in range(4, 10, 2):
        a.e(f'v_pk_add_f32 {P(m_)}, {P(m_)}, {P(XV+2*n)}\nv_pk_add_f32 {P(q_)}, {P(q_)}, {P(XV+2*n+2)}')
    a.e(f'v_pk_add_f32 {P(m_)}, {P(m_)}, {P(q_)}\nv_add_f32 v{m_}, v{m_}, v{m_+1}')
    def red32(v, t, fill):
        fill = iter(fill)
        def pad():
            for _ in range(2):
                x = next(fill, None)
                a.e(x if x else 's_nop 0')
        for r in (8, 4, 2, 1):
            pad(); a.e(f'v_add_f32_dpp v{v}, v{v}, v{v} row_ror:{r} row_mask:0xf bank_mask:0xf')
        a.e(f'v_mov_b32 v{t}, v{v}'); pad()
        a.e(f'v_permlane16_swap_b32 v{v}, v{t}'); pad()
        a.e(f'v_add_f32 v{v}, v{v}, v{t}')
        return fill
    red32(m_, m_ + 1, [])
    a.e(f'v_mul_f32 v{m_}, 0xbacccccd, v{m_}')
    a.e(f'v_mov_b32 v{m_+1}, v{m_}')
    for n in range(10): a.e(f'v_pk_add_f32 {P(DV+2*n)}, {P(XV+2*n)}, {P(m_)}')
    a.e(f'v_pk_mul_f32 {P(q_)}, {P(DV)}, {P(DV)}\nv_pk_mul_f32 {P(tl+4)}, {P(DV+2)}, {P(DV+2)}')
    for n in range(2, 10, 2):
        a.e(f'v_pk_fma_f32 {P(q_)}, {P(DV+2*n)}, {P(DV+2*n)}, {P(q_)}\nv_pk_fma_f32 {P(tl+4)}, {P(DV+2*n+2)}, {P(DV+2*n+2)}, {P(tl+4)}')
    a.e(bfround_t(m_, m_) + f'v_mov_b32 v{m_+1}, v{m_}')
    a.e(f'v_pk_add_f32 {P(q_)}, {P(q_)}, {P(tl+4)}\nv_add_f32 v{q_}, v{q_}, v{q_+1}')
    dfill = [f'v_pk_add_f32 {P(DV+2*n)}, {P(XV+2*n)}, {P(m_)}' for n in range(10)]
    dfill += [f'v_cvt_pk_bf16_f32 v{XR+n}, v{DV+2*n}, v{DV+2*n+1}' for n in range(10)]
    for n in range(10): dfill += [f'v_lshlrev_b32 v{DV+2*n}, 16, v{XR+n}', f'v_and_b32 v{DV+2*n+1}, 0xffff0000, v{XR+n}']
    rest = red32(q_, q_ + 1, dfill)
    chain_ops = [f'v_mul_f32 v{q_}, 0x3acccccd, v{q_}'] + bfround_t(q_, q_).split('\n')[:2] + [f'v_add_f32 v{q_}, 0x3727c5ac, v{q_}'] + bfround_t(q_, q_).split('\n')[:2] \
        + [f'v_sqrt_f32 v{q_}, v{q_}'] + bfround_t(q_, q_).split('\n')[:2] + [f'v_rcp_f32 v{q_}, v{q_}', f'v_mov_b32 v{q_+1}, v{q_}']
    for op in chain_ops:
        a.e(op)
        for _ in range(2):
            x = next(rest, None)
            if x: a.e(x)
    for x in rest: a.e(x)
    for n in range(10): a.e(f'v_pk_mul_f32 {P(DV+2*n)}, {P(DV+2*n)}, {P(q_)}')
    for n in range(10):
        a.e(f'v_cvt_pk_bf16_f32 v{XR+n}, v{DV+2*n}, v{DV+2*n+1}')
        if n & 1: a.lds(f'ds_write_b64 v{vLW}, v[{XR+n-1}:{XR+n}] offset:{2048*(n>>1)}')
    a.wait_all(vm=False)
    a.e('s_barrier')
    r3 = [a.lds(f'ds_read_b128 v[{DV+4*i}:{DV+4*i+3}], v{vLR} offset:{4096*i}') for i in range(3)]
    for i, so in enumerate((sT0, sT1, sT_)):
        a.wait(lg=r3[i])
        xst = a.vm(f'buffer_store_dwordx4 v[{DV+4*i}:{DV+4*i+3}], v{vXS}, s[{SW}:{SW+3}], s{so} offen sc1')
    stamp(a, 'xnst')
    for n in range(cfg.get('pre1', 2)):
        for th in dma_items(npre, 'Q', sQOFF1): th()
        npre += 1
    a.wait(vm=dl[-1])
    a.e(f'v_add_u32 v{vT}, {GOLD}, v{vT}')
    b0 = tl + 4
    for n in range(10):
        a.e(f'''v_lshlrev_b32 v{b0}, 16, v{XR+n}
v_and_b32 v{b0+1}, 0xffff0000, v{XR+n}
v_lshlrev_b32 v{b0+2}, 16, v{DR+n}
v_and_b32 v{b0+3}, 0xffff0000, v{DR+n}
v_pk_mul_f32 {P(b0)}, {P(b0)}, {P(b0+2)}
v_cvt_pk_bf16_f32 v{b0}, v{b0}, v{b0+1}
v_and_b32 v{b0+1}, 0xffff0000, v{b0}
v_lshlrev_b32 v{b0}, 16, v{b0}
v_pk_add_f32 {P(XV+2*n)}, {P(XV+2*n)}, {P(b0)}''')
    a.e(f'v_lshlrev_b32 v{vXA}, 1, v{vXA}')
    a.wait(vm=xst)
    a.vm(f'buffer_store_dword v{vT}, v{vFP}, s[{SF}:{SF+3}], 0 offen sc1')
    stamp(a, 'f0pub')
    for n in range(cfg.get('pre2', 2)):
        for th in dma_items(npre, 'Q', sQOFF1): th()
        npre += 1
    a.e(f's_cmp_eq_u32 s{sROLE}, 2\ns_cbranch_scc1 L_st_c')
    a.e(f'''v_lshrrev_b32 v{tl}, 5, v1
v_lshlrev_b32 v{tl}, 4, v{tl}
v_bfe_u32 v{tl+1}, v1, 4, 1
v_lshlrev_b32 v{tl+1}, 2, v{tl+1}
v_add_u32 v{tl}, v{tl}, v{tl+1}
v_bfe_u32 v{tl+1}, v1, 2, 2
v_add_u32 v{tl}, v{tl}, v{tl+1}
v_lshlrev_b32 v{tl}, 7, v{tl}
v_and_b32 v{tl+1}, 3, v1
v_lshlrev_b32 v{tl+1}, 3, v{tl+1}
v_add_u32 v{tl}, v{tl}, v{tl+1}
s_add_u32 s14, s{sM0B}, {8*16384}
v_add_u32 v{tl}, s14, v{tl}''')
    for q in range(4):
        for e in range(2):
            a.lds(f'ds_read_b64_tr_b16 v[{RT+4*q+2*e}:{RT+4*q+2*e+1}], v{tl} offset:{q*32+e*1024}')
    a.e(f's_add_u32 s14, s{sKS}, 40\ns_cmp_lt_u32 s{sKS}, 32\ns_cselect_b32 s{sKS}, s{sKS}, s14\ns_mul_i32 s{sKS}, s{sKS}, 5120\ns_add_u32 s{sKS}, s{sKS}, {W2F_OFF}')
    for q in range(4):
        a.e(f's_lshl_b32 s89, s{sCG}, 2\ns_add_u32 s89, s89, {q}')
        a.sdiv(90, 89, 5, 40)
        a.e(f'''s_mul_i32 s91, s90, {NKS*5120-5120}
s_lshl_b32 s89, s89, 10
s_add_u32 s89, s89, s91
s_add_u32 s{92+q}, s89, s{sKS}''')
    a.wait_all(vm=False)
    a.e('s_branch L_st_done')
    a.label('L_st_c')
    a.sdiv(90, sCG, 5, 60)
    a.e(f'''s_mul_i32 s91, s90, {NKS*5120-5120}
s_lshl_b32 s89, s{sCG}, 10
s_add_u32 s89, s89, s91
s_lshl_b32 s91, s{sRO}, 3
s_add_u32 s91, s91, s{sKS}
s_add_u32 s91, s91, 32
s_mul_i32 s91, s91, 5120
s_add_u32 s89, s89, s91
s_cmp_ge_u32 s{sCG}, 40
s_cselect_b32 s91, {OOB}, {W2F_OFF}
s_add_u32 s92, s89, s91
s_add_u32 s93, s92, 10240
s_add_u32 s94, s92, 20480
s_add_u32 s95, s92, 30720''')
    a.label('L_st_done')
    def p0_stores():
        for q in range(4):
            yield ('vm', f'buffer_store_dwordx4 v[{RT+4*q}:{RT+4*q+3}], v{vL16}, s[{SW}:{SW+3}], s{92+q} offen sc1', 'p0st')
            yield ('delay', cfg.get('stgap', 3))
        for n in range(5):
            yield ('vm', f'buffer_store_dwordx4 v[{XV+4*n}:{XV+4*n+3}], v{vXA}, s[{SO}:{SO+3}], 0 offen offset:{512*n} sc1', 'p0st')
            yield ('delay', cfg.get('stgap', 3))
    pl = a.vm(poll_load(tl, vFL0, 0))
    for n in range(cfg.get('pre3', 1)):
        for th in dma_items(npre, 'Q', sQOFF1): th()
        npre += 1
    a.wait(vm=pl)
    stamp(a, 'f0w')
    poll_check(tl, vFL0, 0, sNEED0)(a)
    stamp(a, 'f0ok')
    xid = {}
    xq = []
    for s in range(40):
        def th(s=s):
            if s % 4 == 0 and s > 0: a.e(f's_add_u32 s{sXO}, s{sXO}, 4096')
            xid[s] = a.vm(f'buffer_load_dwordx4 {R(XF+4*s,4)}, v{vL16}, s[{SW}:{SW+3}], s{sXO} offen offset:{1024*(s%4)} sc1')
        xq.append(th)
    for n in range(cfg.get('pre4', 0)):
        for th in dma_items(npre, 'Q', sQOFF1): th()
        npre += 1
    for _ in range(cfg.get('xpre', 8)): xq.pop(0)()

    vFL2, vF1L, vF1P = TMP + 17, TMP + 18, TMP + 19
    setup = f'''s_lshl_b32 s15, s{sD1}, 13
s_add_u32 s15, s15, {AGG_OFF}
s_mov_b32 s{SA1+2}, 8192
s_mov_b32 s{SA1+3}, 0x00020000
s_mov_b32 s{SA2+2}, 8192
s_mov_b32 s{SA2+3}, 0x00020000
s_mov_b32 s{SH}, s{P_WS}
s_mov_b32 s{SH+1}, s{P_WS+1}
s_mov_b32 s{SH+3}, 0x00020000
s_lshl_b32 s{sHB}, s{sRB}, 1
s_lshr_b32 s{sT0}, s3, 1
s_add_u32 s{sHB}, s{sHB}, s{sT0}
s_mul_i32 s{sHB}, s{sHB}, {NKS*4096}
s_and_b32 s{sT0}, s3, 1
s_lshl_b32 s{sT0}, s{sT0}, 11
s_add_u32 s{sHB}, s{sHB}, s{sT0}
s_add_u32 s{sHB}, s{sHB}, {HF_OFF}
s_mul_i32 s{sH2}, s{sRB2}, {NKS*4096}
s_add_u32 s{sH2}, s{sH2}, s{sM0B}
s_add_u32 s{sH2}, s{sH2}, {HF_OFF}
s_mul_i32 s{sW2}, s{sNB}, {NKS*5120}
s_mul_i32 s{sT0}, s3, 5120
s_add_u32 s{sW2}, s{sW2}, s{sT0}
s_add_u32 s{sW2}, s{sW2}, {W2F_OFF}
s_lshl_b32 s{sOO}, s{sRB2}, 2
s_add_u32 s{sOO}, s{sOO}, s3
s_mul_i32 s{sOO}, s{sOO}, 40960
s_mul_i32 s{sT0}, s{sNB}, 320
s_add_u32 s{sOO}, s{sOO}, s{sT0}
s_and_b32 s{sT0}, s{sRB2}, 1
s_lshl_b32 s{sT0}, s{sT0}, 1
s_lshl_b32 s{sNEED2}, 0x33333333, s{sT0}
s_mov_b32 s{sNEED2+1}, s{sNEED2}
v_and_b32 v{GOF}, 31, v1
v_bfe_u32 v{GOF+1}, v1, 1, 3
v_lshrrev_b32 v{GOF+2}, 5, v1
v_xor_b32 v{GOF+1}, v{GOF+1}, v{GOF+2}
v_lshlrev_b32 v{GOF+1}, 4, v{GOF+1}
v_lshlrev_b32 v{GOF+3}, 7, v{GOF}
v_add_u32 v{vRD[0]}, v{GOF+3}, v{GOF+1}
v_xor_b32 v{vRD[1]}, 32, v{vRD[0]}
v_xor_b32 v{vRD[2]}, 64, v{vRD[0]}
v_xor_b32 v{vRD[3]}, 96, v{vRD[0]}
v_bfe_u32 v{GOF+1}, v1, 2, 1
v_lshlrev_b32 v{GOF+1}, 10, v{GOF+1}
v_lshlrev_b32 v{GOF+3}, 8, v{GOF+2}
v_add_u32 v{GOF+1}, v{GOF+1}, v{GOF+3}
v_bfe_u32 v{GOF+3}, v1, 3, 2
v_lshlrev_b32 v{GOF+3}, 6, v{GOF+3}
v_add_u32 v{GOF+1}, v{GOF+1}, v{GOF+3}
v_and_b32 v{GOF+3}, 3, v1
v_lshlrev_b32 v{GOF+3}, 4, v{GOF+3}
v_add_u32 v{vHG}, v{GOF+1}, v{GOF+3}
v_lshlrev_b32 v{GOF+1}, 3, v1
s_lshl_b32 s{sT0}, s3, 9
s_add_u32 s{sT0}, s{sT0}, {SCR}
v_add_u32 v{vAGW}, s{sT0}, v{GOF+1}
v_lshlrev_b32 v{GOF+1}, 3, v{GOF}
v_add_u32 v{vAGR}, {SCR}, v{GOF+1}
s_lshl_b32 s{sT0}, s3, 11
s_add_u32 s{sT0}, s{sT0}, {SCR+4096}
v_lshlrev_b32 v{GOF+1}, 6, v{GOF}
v_lshlrev_b32 v{GOF+3}, 5, v{GOF+2}
v_add_u32 v{GOF+1}, v{GOF+1}, v{GOF+3}
v_add_u32 v{vTW}, s{sT0}, v{GOF+1}
v_lshrrev_b32 v{GOF+1}, 4, v1
v_lshlrev_b32 v{GOF+1}, 3, v{GOF+1}
v_bfe_u32 v{GOF+3}, v1, 2, 2
v_add_u32 v{GOF+1}, v{GOF+1}, v{GOF+3}
v_lshlrev_b32 v{GOF+1}, 6, v{GOF+1}
v_and_b32 v{GOF+3}, 3, v1
v_lshlrev_b32 v{GOF+3}, 3, v{GOF+3}
v_add_u32 v{GOF+1}, v{GOF+1}, v{GOF+3}
v_add_u32 v{vTR}, s{sT0}, v{GOF+1}
'''
    def setup_scc(a):
        a.e(f'''s_add_u32 s{SA1}, s{P_WS}, s15
s_addc_u32 s{SA1+1}, s{P_WS+1}, 0
s_add_u32 s{SA2}, s{SA1}, 8192
s_addc_u32 s{SA2+1}, s{SA1+1}, 0
s_cmp_eq_u32 s{sSL}, 10
s_cselect_b32 s{SH+2}, 0, {WS_BYTES}
s_cselect_b32 s{sT0}, 1, s3
s_cmp_lg_u32 s{sT0}, 0
s_cselect_b32 s{sT0}, 0x100000, 0''')
    setup2 = f'''s_lshl_b32 s15, s{sRB}, 9
v_lshlrev_b32 v{GOF+1}, 4, v{GOF}
s_or_b32 s{sT0}, s{sT0}, s15
v_add_u32 v{vPUB}, s{sT0}, v{GOF+1}
s_sub_u32 s15, s15, 512
v_add_u32 v{GOF+1}, s15, v{GOF+1}
v_lshlrev_b32 v{GOF+2}, 9, v{GOF+2}
v_sub_u32 v{GOF}, v{GOF+1}, v{GOF+2}
'''
    for j in range(1, 8): setup2 += f'v_subrev_u32 v{GOF+j}, {1024*j}, v{GOF}\n'
    def exp_items():
        for j in range(8):
            yield ('raw', lambda a, j=j: a.e(f'v_cmp_gt_u32 vcc, 8192, v{GOF+j}\ns_nop 1\nv_cndmask_b32 v{EXP+j}, 0, v{vT}, vcc'), 3)
        for j in range(1, 8):
            m = sMASK + 2 * (j - 1)
            yield ('raw', lambda a, j=j, m=m: a.e(f's_cmp_eq_u32 s3, {j>>1}\ns_cselect_b32 s{m+(j&1)}, -1, 0\ns_mov_b32 s{m+1-(j&1)}, 0'), 3)
    def f1_pub():
        yield ('wv', 'p0st')
        yield ('needbar',)
        yield ('raw', lambda a: a.e(f's_lshl_b32 s{sT0}, s2, 2\ns_add_u32 s{sT0}, s{sT0}, 16384\ns_cmp_lg_u32 s3, 0\ns_cselect_b32 s{sT0}, {OOB}, s{sT0}\nv_mov_b32 v{vF1P}, {OOB}\nv_writelane_b32 v{vF1P}, s{sT0}, 0'), 6)
        yield ('vm', f'buffer_store_dword v{vT}, v{vF1P}, s[{SF}:{SF+3}], 0 offen sc1', None)
    vFL2 = 2
    def f1_check(part):
        PL = TMP + 4
        if part == 0:
            yield from f1_a(PL); return
        yield from f1_b(PL)
    def f1_a(PL):
        yield ('v', f'v_add_u32 v{vF1L}, 16384, v{vL16}')
        yield ('s', f's_lshr_b32 s{sT0}, s{sRB2}, 1')
        yield ('s', f's_lshl_b32 s{sT0}, s{sT0}, 10')
        yield ('v', f'v_lshlrev_b32 v{vFL2}, 2, v1')
        yield ('v', f'v_add_u32 v{vFL2}, s{sT0}, v{vFL2}')
        yield ('vm', poll_load(PL, vF1L, 0, 4), 'f1')
    def f1_b(PL):
        yield ('wv', 'f1')
        yield ('raw', poll_check(PL, vF1L, 0, None, 4), 8)
        yield ('raw', lambda a: a.e(f's_or_b32 s{sT0}, s2, s3\ns_cselect_b32 s{sT0}, {OOB}, {NONCE_OFF}\nv_mov_b32 v{vF1P}, {OOB}\nv_writelane_b32 v{vF1P}, s{sT0}, 0'), 4)
        yield ('vm', f'buffer_store_dword v{vT}, v{vF1P}, s[{SW}:{SW+3}], 0 offen sc1', None)
        yield ('call', lambda: st.__setitem__('f1ok', True))

    def build(units):
        stages = []; groups = []
        for ui, (kind, acc, soff) in enumerate(units):
            ns = 5 if kind == 'D' else 10
            for s in range(ns):
                n = len(stages); stages.append((kind, soff))
                for g in range(4): groups.append((ui, kind, acc, n, s, g))
        return stages, groups
    bars = list(range(0, 25, 2))
    st = dict(dwin=0, issued=npre, rid={})
    dmaq = []
    def reads(G, groups):
        ui, kind, acc, n, s, g = groups[G]
        slot = n % NS; win = slot // 4; base = (slot % 4) * 16384
        buf = WB + 16 * (G % 3)
        out = []
        if kind == 'Q':
            for m in range(4):
                jh, mat = m >> 1, m & 1
                out.append([f'ds_read_b64_tr_b16 {R(buf+4*m+2*e,2)}, v{vRQ[jh][win]} offset:{base+g*4096+mat*2048+e*512}' for e in range(2)])
        else:
            for m in range(4):
                ks, mat = 2 * g + (m >> 1), m & 1
                out.append([f'ds_read_b128 {R(buf+4*m,4)}, v{vRD[ks&3]} offset:{base+(ks>>2)*8192+mat*4096}'])
        return out, (win if kind == 'D' else None)
    def barrier_for(n, stages, sch):
        nxt = min([b for b in bars if b > n] + [len(stages)])
        a.wait(vm=stage_last[min(nxt, len(stages)) - 1])
        a.e('s_barrier')
        sch.on_barrier()
        while st['issued'] < len(stages) and st['issued'] <= n + NS - 2:
            m = st['issued']; dmaq.extend(dma_items(m, *stages[m])); st['issued'] += 1
    def set_dwin(w):
        if w is not None and w != st['dwin']:
            d = (w - st['dwin']) * 65536
            for r in vRD: a.e(f'v_add_u32 v{r}, {d & 0xffffffff}, v{r}')
            st['dwin'] = w

    class P2:
        pass
    def p2_init():
        p = P2(); p.buf = {}; p.id = {}; p.cur = {'H': None, 'W': None}; p.free = []
        return p
    def p2_load(p, kind, i, j, reg):
        stride = 16384 if kind == 'H' else 20480
        sb = sH2 if kind == 'H' else sW2
        sreg = sP0 if kind == 'H' else sP1
        key = (i, j // 4)
        assert st.get('f1ok')
        if p.cur[kind] != key:
            off = i * stride + (j // 4) * 4096
            a.e(f's_add_u32 s{sreg}, s{sb}, {off}')
            if i == 23: a.e(f's_add_u32 s{sreg}, s{sreg}, s{sCNT+1}')
            p.cur[kind] = key
        p.buf[kind, i, j] = reg
        p.id[kind, i, j] = a.vm(f'buffer_load_dwordx4 {R(reg,4)}, v{vL16}, s[{SW}:{SW+3}], s{sreg} offen offset:{1024*(j%4)} sc1')

    def emit_groups(stages, groups, sch, fillers, p, xq, vq):
        lastu = groups[-1][0]
        wq = [(i, j) for i in range(8) for j in range(5)]
        for G in range(len(groups)):
            ui, kind, acc, n, s, g = groups[G]
            if s == 0 and g == 0:
                if ui in fillers: sch.add(fillers[ui])
                stamp(a, f'U{ui+1}')
            nx = G + 2
            rd = None
            if nx < len(groups): rd, win = reads(nx, groups)
            buf = WB + 16 * (G % 3)
            for m in range(4):
                if kind == 'Q': ks = 4 * s + g; d = acc + 16 * m
                else: ks = 8 * s + 2 * g + (m >> 1); d = acc + 16 * (m & 1)
                if m == 0: a.wait(lg=st['rid'][G], vm=(xid[ks] if ui == 0 else None))
                c = '0' if ks == 0 else V(d, 16)
                if kind == 'Q': a.e(f'v_mfma_f32_32x32x16_bf16 {V(d,16)}, {R(buf+4*m,4)}, {R(XF+4*ks,4)}, {c}')
                else: a.e(f'v_mfma_f32_32x32x16_bf16 {V(d,16)}, {R(XF+4*ks,4)}, {R(buf+4*m,4)}, {c}')
                budget = cfg['bq'] if (rd and len(rd[0]) == 2) else cfg['bd']
                if m == 0 and rd and groups[nx][5] == 0 and groups[nx][3] in bars:
                    barrier_for(groups[nx][3], stages, sch); budget -= 2
                if rd:
                    for t in rd[m]: st['rid'][nx] = a.lds(t)
                if dmaq and (m == 1 or (m == 3 and len(dmaq) > 8 and not xq)):
                    dmaq.pop(0)(); budget -= 1
                if xq and m == 2:
                    xq.pop(0)(); budget -= 1
                if vq and m in (0, 3) and not (m == 3 and len(dmaq) > 8):
                    vq.pop(0)(); budget -= 1
                if ui == lastu and cfg.get('wpre', 1):
                    first = (m == 0) if kind == 'Q' else (m in (0, 2))
                    slotm = (m == 2) if kind == 'Q' else (m in (0, 2))
                    if slotm and ks >= 1:
                        i, j = wq.pop(0); p2_load(p, 'W', i, j, XF + 4 * (ks - 1)); budget -= 1
                if budget > 0: sch.fill(budget)
                if m == 3 and G + 3 < len(groups): set_dwin(reads(G + 3, groups)[1])
        return wq

    unitsA = [('Q', ACC_A, sQOFF1), ('D', ACC_D, sDOFF1), ('Q', ACC_B, sQOFF2)]
    unitsB = [('Q', ACC_A, sQOFF1), ('D', ACC_D, sDOFF1), ('D', ACC_B, sDOFF2)]
    a.e(f's_cmp_ge_u32 s{sSL}, 11\ns_cbranch_scc1 L_typeB')
    st0 = copy.deepcopy(st); as0 = a.state(); sl0 = dict(stage_last); xid0 = dict(xid)
    for typ, units in (('A', unitsA), ('B', unitsB)):
        if typ == 'B':
            a.label('L_typeB')
            a.restore(as0); st.clear(); st.update(copy.deepcopy(st0)); stage_last.clear(); stage_last.update(sl0); xid.clear(); xid.update(xid0)
        stages, groups = build(units)
        sch = Sched(a)
        p = p2_init()
        spare1, spare2 = vD[0], vD[1]
        FL = TMP + 16
        vq = []
        def f2_issue():
            yield ('vm', poll_load(FL, vFL2, 256), 'f2')
        def f2_check(lo, hi, base):
            yield ('wv', 'f2')
            yield ('raw', poll_check(FL, vFL2, 256, sNEED2), 4)
            yield ('call', lambda: vq.extend([(lambda k=k: p2_load(p, 'H', k // 4, k % 4, base + 4 * (k - lo))) for k in range(lo, hi)]))
        u1 = chain(p0_stores(), [('call', lambda: a.wait(vm=pid))], items(ssm_consts(C1, TMP)), items(ssm_consts(C2, TMP + 4)) if typ == 'B' else [],
                   f1_pub(), items(setup), [('raw', setup_scc, 9)], items(setup2), exp_items(),
                   [('raw', lambda a: a.e(f's_cmp_ge_u32 s3, 2\ns_cselect_b32 s{sCNT+1}, {OOB}, 0'), 2)])
        u2 = chain([('delay', 3)], f1_check(0), f_epiq(ACC_A, 0), f1_check(1), f_publish(1, 4))
        spare1 = ACC_A + 63; spare2 = ACC_A + 62
        G = ACC_A
        if typ == 'A':
            u3 = chain([('delay', 3)], f_agg(ACC_D, C1, 0, SA1, 'a1'), f2_issue(), f_coef(ACC_D, C1, spare1), f2_check(0, 12, 256 + 208),
                       [('delay', cfg.get('gdelay0', 24))], f_gather_issue(G, SA1, 'a1'), [('delay', cfg.get('gdelay', 14))], f_carry(G, ACC_D, C1, spare1, SA1, sD1, 'a1'))
            tailg = chain(f_epiq(ACC_B, 72))
        else:
            u3 = chain([('delay', 3)], f_agg(ACC_D, C1, 0, SA1, 'a1'), f_coef(ACC_D, C1, spare1))
            tailg = chain(f_agg(ACC_B, C2, 2048, SA2, 'a2'), f_gather_issue(G, SA1, 'a1'), f2_issue(), f_coef(ACC_B, C2, spare2), f2_check(0, 12, 256 + 208),
                          f_carry(G, ACC_D, C1, spare1, SA1, sD1, 'a1'), f_gather_issue(ACC_B + 32, SA2, 'a2'),
                          f_carry(ACC_B + 32, ACC_B, C2, spare2, SA2, sD2, 'a2'))
        barrier_for(0, stages, sch)
        for G0 in (0, 1):
            rd, win = reads(G0, groups)
            for lst in rd:
                for t in lst: st['rid'][G0] = a.lds(t)
        wq = emit_groups(stages, groups, sch, {0: u1, 1: u2, 2: u3}, p, list(xq), vq)
        assert not dmaq
        stamp(a, 'T')
        sch.drain()
        stamp(a, 'T2')
        a.e('s_nop 7\ns_nop 3')
        used = set(p.buf.values())
        for r in range(XF, XF + 160, 4):
            if r not in used and wq:
                i, j = wq.pop(0); p2_load(p, 'W', i, j, r)
        assert not wq
        yq = [('H', i, j) for i in range(3, 6) for j in range(4)]
        pool = [WB + 4 * k for k in range(12)]
        f2seen = ('H', 0, 0) in p.id or bool(vq)
        def yl():
            if vq: vq.pop(0)()
            elif yq and ('H', 0, 0) in p.id: k, i, j = yq.pop(0); p2_load(p, k, i, j, pool.pop(0))
        sch.add(tailg); sch.drain(every=(cfg.get('yevery', 16), yl))
        while vq or yq: yl()
        stamp(a, 'Y')
        ACC2 = 96
        pool = [r for r in range(28, 96, 4)] + [r for r in range(176, 256, 4)]
        EA = 3
        BASE = [pool.pop() for _ in range(5)]
        lq = [('H', i, j) for i in (6, 7) for j in range(4)]
        NW1 = cfg.get('nw1', 24)
        w1 = [('W', i, j) for i in range(8, NW1) for j in range(5)]
        k3 = max(0, len(w1) - cfg.get('f3lead', 8))
        lq += w1[:k3] + [('F3i',)] + w1[k3:] + [('F3c',)]
        wrest = [('W', i, j) for i in range(NW1, 24) for j in range(5)]
        nh = 16
        for n, i in enumerate(range(8, 24)):
            lq += [('H', i, j) for j in range(4)]
            take = (len(wrest) + (nh - 2 - n) - 1) // max(1, nh - 2 - n) if n >= 2 else 0
            lq += wrest[:take]; wrest = wrest[take:]
        assert not wrest
        lq += [('B', i) for i in range(5)]
        base_ids = []
        pubdone = [False]
        ep = []
        t_ = 14
        eptxt = f'''v_and_b32 v{EA+10}, 15, v1
v_mul_u32_u24 v{EA+10}, 336, v{EA+10}
v_lshrrev_b32 v{t_}, 4, v1
v_lshlrev_b32 v{t_}, 4, v{t_}
v_add_u32 v{EA+10}, v{EA+10}, v{t_}
s_mul_i32 s{sT0}, s3, 21504
s_mul_i32 s{sT1}, s3, 5376
v_add_u32 v{EA+10}, s{sT0}, v{EA+10}
'''
        for i in range(5):
            eptxt += f'''v_add_u32 v{t_}, {64*i}, v1
v_mul_u32_u24 v{t_+1}, 3277, v{t_}
v_lshrrev_b32 v{t_+1}, 16, v{t_+1}
v_mul_u32_u24 v{EA+i}, 20, v{t_+1}
v_sub_u32 v{t_}, v{t_}, v{EA+i}
v_lshlrev_b32 v{t_}, 4, v{t_}
v_mul_u32_u24 v{EA+i}, 336, v{t_+1}
v_add3_u32 v{EA+i}, v{EA+i}, v{t_}, s{sT1}
v_mul_u32_u24 v{EA+5+i}, 2560, v{t_+1}
v_add_u32 v{EA+5+i}, v{EA+5+i}, v{t_}
'''
        ep = eptxt.strip().split('\n')
        FL3 = 16
        f3 = {}
        def next_load():
            if not lq: return False
            it = lq[0]
            if it[0] in ('H', 'W'):
                if not pool: return False
                if a.vm_n - a.vm_done >= cfg.get('maxout', 40): return False
                lq.pop(0); p2_load(p, it[0], it[1], it[2], pool.pop(0)); return True
            if it[0] == 'F3i':
                assert pubdone[0]
                lq.pop(0); f3['id'] = a.vm(poll_load(FL3, vFL2, 512)); return True
            if it[0] == 'F3c':
                lq.pop(0); a.wait(vm=f3['id']); stamp(a, 'f3w'); poll_check(FL3, vFL2, 512, sNEED2)(a); a.e('s_barrier'); stamp(a, 'f3ok')
                for _ in range(cfg.get('burst', 12)): next_load()
                return True
            if it[0] == 'B':
                assert not ep
                lq.pop(0); i = it[1]
                base_ids.append(a.vm(f'buffer_load_dwordx4 {V(BASE[i],4)}, v{EA+5+i}, s[{SO}:{SO+3}], s{sOO} offen sc1')); return True
        lastH = sch.keys['lastH']
        for _ in range(cfg.get('ypre', 4)): next_load()
        cnt = 0
        for i in range(24):
            need = [('H', i, j) for j in range(4)] + [('W', i, j) for j in range(5)]
            guard = 0
            while any(k not in p.id for k in need):
                if not next_load(): a.wait(vm=a.vm_done + 4)
                guard += 1; assert guard < 500, (i, lq[:3], len(pool))
            a.wait(vm=max(p.id[k] for k in need))
            if i in (4, 8, 12, 16, 20): stamp(a, f'i{i}')
            for rt in range(4):
                for ct in range(5):
                    d = ACC2 + 4 * (rt * 5 + ct)
                    c = '0' if i == 0 else V(d, 4)
                    a.e(f'v_mfma_f32_16x16x32_bf16 {V(d,4)}, {R(p.buf["W",i,ct],4)}, {R(p.buf["H",i,rt],4)}, {c}')
                    cnt += 1
                    if cnt == cfg.get('pubat', 10):
                        a.wait(vm=lastH)
                        a.vm(f'buffer_store_dword v{vT}, v{vFP}, s[{SF}:{SF+3}], 0 offen offset:512 sc1'); pubdone[0] = True; stamp(a, 'f3pub')
                    elif cnt % 2 == 0: next_load()
                    elif ep: a.e(ep.pop(0))
                pool.append(p.buf['H', i, rt])
            for ct in range(5): pool.append(p.buf['W', i, ct])
        while lq: assert next_load()
        stamp(a, 'mfend')
        a.e('s_nop 7')
        for rt in range(4):
            for ct in range(5):
                d = ACC2 + 4 * (rt * 5 + ct)
                a.lds(f'ds_write_b128 v{EA+10}, {V(d,4)} offset:{rt*5376+ct*64}')
        a.wait_all(vm=False)
        a.e('s_barrier')
        rd = {}
        for i in range(5):
            for q in range(4):
                rd[i, q] = a.lds(f'ds_read_b128 {V(ACC2+16*i+4*q,4)}, v{EA+i} offset:{q*21504}')
        a.wait(vm=base_ids[-1])
        for i in range(5):
            a.wait(lg=rd[i, 3])
            b = ACC2 + 16 * i; B = BASE[i]
            for k in (0, 2):
                a.e(f'v_pk_add_f32 {P(b+k)}, {P(b+k)}, {P(b+4+k)}\nv_pk_add_f32 {P(b+8+k)}, {P(b+8+k)}, {P(b+12+k)}')
            for k in (0, 2): a.e(f'v_pk_add_f32 {P(B+k)}, {P(B+k)}, {P(b+k)}')
            for k in (0, 2): a.e(f'v_pk_add_f32 {P(B+k)}, {P(B+k)}, {P(b+8+k)}')
            a.vm(f'buffer_store_dwordx4 {V(B,4)}, v{EA+5+i}, s[{SO}:{SO+3}], s{sOO} offen')
        stamp(a, 'st')
        stamp_out(a)
        a.e('s_endpgm')
    for s in a.cold: a.e(s)
    a.label('L_end')
    a.e('s_endpgm')
    return a

HEADER = open('parallel_sum__ssm_conv_s5__glu_gated_glu__prompt.s.ref').read().split('; Override launch')[0]
def assemble(a):
    out = HEADER + '; @launch grid=(256,1,1) block=(256,1,1) lds=163840\n'
    out += '.amdgcn_target "amdgcn-amd-amdhsa--gfx950"\n.text\n'
    errs = check_hazards(a.lines)
    for e in errs: print('HAZARD', e)
    assert not errs
    out += a.text()
    out += f'''.section .rodata,"a"
.p2align 6
.amdhsa_kernel {KNAME}
  .amdhsa_next_free_vgpr 512
  .amdhsa_next_free_sgpr 102
  .amdhsa_accum_offset 256
  .amdhsa_group_segment_fixed_size 0
  .amdhsa_kernarg_size 128
  .amdhsa_user_sgpr_count 2
  .amdhsa_user_sgpr_kernarg_segment_ptr 1
  .amdhsa_system_sgpr_workgroup_id_x 1
.end_amdhsa_kernel
'''
    return out
if __name__ == '__main__':
    cfg = dict(k2map='B', k1map='P', bq=4, bd=5)
    for kv in sys.argv[2:]:
        k, v = kv.split('=')
        if k == 'stamp': STAMP[0] = True
        else: cfg[k] = int(v) if v.isdigit() else v
    txt = assemble(kernel(cfg))
    if STAMP[0]: txt = '; STAMPS ' + ','.join(SNAMES) + '\n' + txt
    open(sys.argv[1], 'w').write(txt)
```

```python
import sys, copy
from asmlib import *

KNAME = 'parallel_sum__ssm_conv_s5__glu_gated_glu__prompt_kernel'
XNF_OFF = 0
HF_OFF = 4 << 20
W2F_OFF = 20 << 20
AGG_OFF = 24 << 20
NONCE_OFF = 25 << 20
FLG_OFF = (25 << 20) + 131072
DIAG_OFF = 26 << 20
WS_BYTES = 32 << 20
NKS = 94
GOLD = 0x9e3779b9
P_X, P_LRE, P_LIM, P_BRE, P_BIM, P_CRE, P_CIM, P_LDT, P_DSK, P_BX, P_WG, P_WU, P_WD, P_OUT, P_DBG, P_WS = [16 + 2 * i for i in range(16)]
NS = 9
SCR = NS * 16384
LOG2E = 0x3fb8aa3b
NLOG2E = 0xbfb8aa3b
OOB = 0x40000000
STAT_OFF = (25 << 20) + 4096
XCH_OFF = 27 << 20
F1_OFF, FX_OFF = 131072, 163840
SW, SG, SU, SB, SA1, SA2, SH, SF = 48, 52, 56, 60, 64, 68, 72, 76
SP, SR = SA1, SA2
SO, SXX, SDK = SG, SA1, SB
sRB, sSL, sD1, sD2 = 4, 5, 6, 7
sRBP, sNB = 8, 9
sDOFF1, sDOFF2, sQOFF1, sQOFF2 = 10, 11, 12, 13
sHB = 14
sT0, sT1 = 80, 81
sM0B, sXO = 82, 83
sMASK = 84
sCNT, sOOBK = 98, 99
sH2 = (18, 19); sW2, sOO = 20, 21
sXS, sXL = 22, 23
sSTO, sDKO, sXO2 = 24, 25, 26
sHL, sWL = 27, 30
sZM = 31
AGS = 8704
sNEEDA = 28
sTP = 34
sP0, sP1 = 44, 45
vD = [3, 4, 5, 6]; vQ = [7, 8]
vRQ = [[9, 10, 11], [12, 13, 14]]
vRD = [15, 16, 17, 18]
vHG, vL16, vAGW, vAGR, vPUB, vTW, vTR, vT = 19, 20, 21, 22, 23, 24, 25, 26
vFP = 27
C1, C2 = 28, 44
TMP = 60
GOF = TMP + 20; EXP = TMP + 28
ACC_D, ACC_A, ACC_B = 96, 128, 192
XF = 256; WB = 256 + 160
cLr, cLi, cnLi, cP, cQn, cnP, c16r, c16i, c128r, c128i, c256r, c256i, cqr, cqi, cPr, cPi = range(16)

STAMP = [False]
SNAMES = []
ONLY = [None]
def stamp(a, nm, real=False):
    if not STAMP[0]: return
    if ONLY[0] is not None:
        if nm not in ONLY[0] and nm not in ('rt0', 'rt1', 't0', 'end'): return
        if nm not in ('t0', 'end'): real = True
    if nm not in SNAMES: SNAMES.append(nm)
    i = SNAMES.index(nm); assert i < 64
    a.e(f'{"s_memrealtime" if real else "s_memtime"} s[100:101]')
    a.wait_all(vm=False)
    a.e(f'v_writelane_b32 v0, s100, {i}')
def stamp_out(a):
    if not STAMP[0]: return
    a.e('s_waitcnt vmcnt(0)')
    stamp(a, 'end'); stamp(a, 'rt1', True)
    a.e(f'''s_lshl_b32 s100, s2, 2
s_add_u32 s100, s100, s3
s_lshl_b32 s100, s100, 8
s_add_u32 s100, s100, {DIAG_OFF}
v_lshlrev_b32 v4, 2, v1
buffer_store_dword v0, v4, s[{SW}:{SW+3}], s100 offen''')
def sitem(nm): return ('raw', lambda a: stamp(a, nm), 0)

def items(text, kind=None):
    for ln in text.strip().split('\n'):
        ln = ln.strip()
        if not ln: continue
        op = ln.split()[0]
        if op in TRANS: yield ('t', ln)
        elif op.startswith('s_'): yield ('s', ln)
        else: yield ('v', ln)
def chain(*gens):
    for g in gens: yield from g

def bfround_t(d, s): return f'v_cvt_pk_bf16_f32 v{d}, v{s}, v{s}\nv_lshlrev_b32 v{d}, 16, v{d}\n'
def cmul_sq(dr, di, sr, si, t):
    return f'v_mul_f32 v{t}, v{si}, v{si}\nv_mul_f32 v{di}, v{sr}, v{si}\nv_fma_f32 v{dr}, v{sr}, v{sr}, -v{t}\nv_add_f32 v{di}, v{di}, v{di}\n'
def ssm_consts(C, l0):
    t = TMP + 8
    s = f'''v_lshlrev_b32 v{l0+2}, 16, v{l0+2}
v_mul_f32 v{l0+2}, {LOG2E}, v{l0+2}
v_exp_f32 v{l0+2}, v{l0+2}
v_lshlrev_b32 v{l0}, 16, v{l0}
v_lshlrev_b32 v{l0+1}, 16, v{l0+1}
''' + bfround_t(l0 + 2, l0 + 2) + f'''v_mul_f32 v{t}, v{l0+2}, v{l0}
v_mul_f32 v{t+1}, v{l0+2}, v{l0+1}
v_mul_f32 v{t}, {LOG2E}, v{t}
v_mul_f32 v{t+1}, 0.15915494, v{t+1}
v_exp_f32 v{t}, v{t}
v_fract_f32 v{t+1}, v{t+1}
v_cos_f32 v{t+2}, v{t+1}
v_sin_f32 v{t+3}, v{t+1}
v_mul_f32 v{t+4}, v{l0}, v{l0}
v_fmac_f32 v{t+4}, v{l0+1}, v{l0+1}
v_mul_f32 v{C+cLr}, v{t}, v{t+2}
v_mul_f32 v{C+cLi}, v{t}, v{t+3}
v_rcp_f32 v{t+4}, v{t+4}
v_sub_f32 v{C+cnLi}, 0, v{C+cLi}
v_add_f32 v{t+5}, -1.0, v{C+cLr}
v_add_f32 v{t+4}, v{t+4}, v{t+4}
v_mul_f32 v{t+6}, v{t+5}, v{l0}
v_fmac_f32 v{t+6}, v{C+cLi}, v{l0+1}
v_mul_f32 v{t+7}, v{t+5}, v{l0+1}
v_fmac_f32 v{t+7}, v{C+cnLi}, v{l0}
v_mul_f32 v{C+cP}, v{t+6}, v{t+4}
v_mul_f32 v{C+cQn}, v{t+7}, v{t+4}
v_sub_f32 v{C+cnP}, 0, v{C+cP}
'''
    s += cmul_sq(t, t + 1, C + cLr, C + cLi, t + 8) + cmul_sq(t + 2, t + 3, t, t + 1, t + 8) + cmul_sq(t, t + 1, t + 2, t + 3, t + 8)
    s += cmul_sq(C + c16r, C + c16i, t, t + 1, t + 8) + cmul_sq(t, t + 1, C + c16r, C + c16i, t + 8) + cmul_sq(t + 2, t + 3, t, t + 1, t + 8)
    s += cmul_sq(C + c128r, C + c128i, t + 2, t + 3, t + 8) + cmul_sq(C + c256r, C + c256i, C + c128r, C + c128i, t + 8)
    s += f'''s_mov_b32 s{sT0}, 0
s_mov_b32 s{sT1}, -1
v_cndmask_b32 v{C+cqr}, 1.0, v{C+c16r}, s[{sT0}:{sT1}]
v_cndmask_b32 v{C+cqi}, 0, v{C+c16i}, s[{sT0}:{sT1}]
'''
    for bit, (pr, pi) in ((0, (t, t + 1)), (1, (t + 2, t + 3))):
        s += f'''s_bfe_i32 s{sT0}, s3, {0x10000 | bit}
s_mov_b32 s{sT1}, s{sT0}
v_cndmask_b32 v{t+4}, 1.0, v{pr}, s[{sT0}:{sT1}]
v_cndmask_b32 v{t+5}, 0, v{pi}, s[{sT0}:{sT1}]
v_mul_f32 v{t+6}, v{C+cqr}, v{t+4}
v_mul_f32 v{t+7}, v{C+cqr}, v{t+5}
v_fma_f32 v{C+cqr}, -v{C+cqi}, v{t+5}, v{t+6}
v_fma_f32 v{C+cqi}, v{C+cqi}, v{t+4}, v{t+7}
'''
    s += f'v_mov_b32 v{C+cPr}, 0\nv_mov_b32 v{C+cPi}, 0\n'
    return s

def cfma(dr, di, lr, li, sr, si):
    yield ('v', f'v_fmac_f32 v{dr}, v{lr}, v{sr}')
    yield ('v', f'v_fmac_f32 v{di}, v{lr}, v{si}')
    yield ('v', f'v_fma_f32 v{dr}, -v{li}, v{si}, v{dr}')
    yield ('v', f'v_fmac_f32 v{di}, v{li}, v{sr}')

def f_agg(acc, C, area, SA, tag):
    sr, si = acc, acc + 16
    for r in range(1, 16):
        t = TMP + 2 * (r & 1)
        yield ('v', f'v_fma_f32 v{t}, v{C+cLr}, v{sr}, v{acc+r}')
        yield ('v', f'v_fma_f32 v{t+1}, v{C+cLr}, v{si}, v{acc+16+r}')
        yield ('v', f'v_fmac_f32 v{t}, v{C+cnLi}, v{si}')
        yield ('v', f'v_fmac_f32 v{t+1}, v{C+cLi}, v{sr}')
        sr, si = t, t + 1
    yield ('lds', f'ds_write_b64 v{vAGW}, v[{sr}:{si}] offset:{area}', tag + 'w')
    yield ('delay', 2)
    yield ('wl', tag + 'w')
    yield ('forcebar',)
    g = TMP + 4
    for j in range(8):
        yield ('lds', f'ds_read_b64 v[{g+2*j}:{g+2*j+1}], v{vAGR} offset:{area+256*j}', tag + f'r{j}')
    yield ('delay', 3)
    yield ('wl', tag + 'r7')
    for j in range(1, 8):
        pr, pi = g + 2 * (j - 1), g + 2 * (j - 1) + 1
        yield from cfma(g + 2 * j, g + 2 * j + 1, C + c16r, C + c16i, pr, pi)
    yield ('v', f'v_and_b32 v{TMP}, s{sZM}, v{g+14}')
    yield ('v', f'v_mov_b32 v{TMP+1}, v{vT}')
    yield ('v', f'v_and_b32 v{TMP+2}, s{sZM}, v{g+15}')
    yield ('v', f'v_mov_b32 v{TMP+3}, v{vT}')
    yield ('vm', f'buffer_store_dwordx4 v[{TMP}:{TMP+3}], v{vPUB}, s[{SA}:{SA+3}], 0 offen sc1', tag + 'pub')
    yield sitem(tag + 'pub')
    for j in range(1, 8):
        pr, pi = g + 2 * (j - 1), g + 2 * (j - 1) + 1
        m = sMASK + 2 * (j - 1)
        yield ('v', f'v_cndmask_b32 v{C+cPr}, v{C+cPr}, v{pr}, s[{m}:{m+1}]')
        yield ('v', f'v_cndmask_b32 v{C+cPi}, v{C+cPi}, v{pi}, s[{m}:{m+1}]')

def ren(acc, spare): return [spare] + [acc + r for r in range(15)]
def f_coef(acc, C, spare):
    an = ren(acc, spare)
    for r in range(16):
        ar, br = acc + r, acc + 16 + r
        yield ('v', f'v_mul_f32 v{an[r]}, v{C+cP}, v{ar}')
        yield ('v', f'v_fmac_f32 v{an[r]}, v{C+cQn}, v{br}')
        yield ('v', f'v_mul_f32 v{br}, v{C+cnP}, v{br}')
        yield ('v', f'v_fmac_f32 v{br}, v{C+cQn}, v{ar}')
def f_gather_issue(G, SA, tag, fill=None):
    for j in range(8):
        yield ('vm', f'buffer_load_dwordx4 {V(G[j],4)}, v{GOF+j}, s[{SA}:{SA+3}], 0 offen sc1', tag + f'g{j}')
        if fill is not None:
            for _ in range(6):
                x = next(fill, None)
                if x is not None: yield x
        else: yield ('delay', 1)
SPIN = 20000
SLEEP = [4]
def tagchk(G):
    L = [f'v_bitop3_b32 v{G[j]+1}, v{G[j]+1}, v{G[j]+3}, v{vT} bitop3:0x7e' for j in range(8)]
    L += [f'v_or3_b32 v{G[0]+1}, v{G[0]+1}, v{G[1]+1}, v{G[2]+1}', f'v_or3_b32 v{G[3]+1}, v{G[3]+1}, v{G[4]+1}, v{G[5]+1}',
          f'v_or3_b32 v{G[0]+1}, v{G[0]+1}, v{G[6]+1}, v{G[7]+1}', f'v_or_b32 v{G[0]+1}, v{G[0]+1}, v{G[3]+1}']
    return L
def f_carry(G, acc, C, spare, SA, sD, tag, kb=0):
    yield ('wv', tag + 'g7')
    for ln in tagchk(G): yield ('v', ln)
    t0 = G[0] + 1
    def chk(a):
        slow = a.newlabel('slow'); ok = a.newlabel('ok')
        a.e(f'v_cmp_ne_u32 vcc, 0, v{t0}\ns_nop 1\ns_cmp_lg_u64 vcc, 0\ns_cbranch_scc1 {slow}')
        a.label(ok)
        s = f'{slow}:\ns_mov_b32 s{sCNT}, 0\n{slow}_l:\ns_sleep {SLEEP[0]}\n'
        for j in range(8):
            s += f'buffer_load_dwordx4 {V(G[j],4)}, v{GOF+j}, s[{SA}:{SA+3}], 0 offen sc1\n'
        s += 's_waitcnt vmcnt(0)\n' + '\n'.join(tagchk(G)) + '\n'
        s += f'''v_cmp_ne_u32 vcc, 0, v{t0}
s_add_u32 s{sCNT}, s{sCNT}, 1
s_cmp_gt_u32 s{sCNT}, {SPIN}
s_cbranch_scc1 {ok}
s_cmp_lg_u64 vcc, 0
s_cbranch_scc1 {slow}_l
s_branch {ok}
'''
        a.cold.append(s)
    yield sitem(tag + 'w')
    yield ('raw', chk, 4)
    yield sitem(tag + 'ok')
    for j in range(6, -1, -1):
        yield from cfma(G[j], G[j] + 2, C + c256r, C + c256i, G[j + 1], G[j + 1] + 2)
    g0, g1 = G[0], G[1]
    yield ('v', f'v_mov_b32 v{g1}, v{g0}')
    yield ('v', f'v_mov_b32 v{g1+2}, v{g0+2}')
    yield ('s', f's_lshl_b32 s{sT0}, s{sD}, 13')
    yield ('s', f's_add_u32 s{sT0}, s{sT0}, s{sHB}')
    yield ('v', f'v_permlane32_swap_b32 v{g0}, v{g1}')
    yield ('v', f'v_permlane32_swap_b32 v{g0+2}, v{g1+2}')
    yield ('s', 's_nop 0')
    yield ('s', f's_add_u32 s{sT1}, s{sT0}, 4096')
    yield from cfma(g0, g0 + 2, C + c128r, C + c128i, g1, g1 + 2)
    yield from cfma(C + cPr, C + cPi, C + cqr, C + cqi, g0, g0 + 2)
    yield ('v', f'v_mul_f32 v{g0}, v{C+cP}, v{C+cPr}')
    yield ('v', f'v_mul_f32 v{g0+1}, v{C+cQn}, v{C+cPr}')
    yield ('v', f'v_fmac_f32 v{g0}, v{C+cQn}, v{C+cPi}')
    yield ('v', f'v_fmac_f32 v{g0+1}, v{C+cnP}, v{C+cPi}')
    an = ren(acc, spare)
    pr, pi = g0, g0 + 1
    for r in range(16):
        ar, br = an[r], acc + 16 + r
        yield ('v', f'v_fmac_f32 v{ar}, v{C+cLr}, v{pr}')
        yield ('v', f'v_fmac_f32 v{br}, v{C+cLr}, v{pi}')
        yield ('v', f'v_fmac_f32 v{ar}, v{C+cLi}, v{pi}')
        yield ('v', f'v_fmac_f32 v{br}, v{C+cnLi}, v{pr}')
        pr, pi = ar, br
    for comp in range(2):
        src = an if comp == 0 else [acc + 16 + r for r in range(16)]
        for k in range(8):
            yield ('v', f'v_cvt_pk_bf16_f32 v{G[2*comp+(k>>2)]+(k&3)}, v{src[2*k]}, v{src[2*k+1]}')
        yield ('lds', f'ds_write_b128 v{vTW}, {V(G[2*comp],4)}', tag + f'tw{comp}a')
        yield ('lds', f'ds_write_b128 v{vTW}, {V(G[2*comp+1],4)} offset:16', tag + f'tw{comp}b')
        yield ('delay', 0)
        for h2 in range(2):
            for e in range(2):
                d = G[4 + 2 * comp + h2] + 2 * e
                yield ('lds', f'ds_read_b64_tr_b16 v[{d}:{d+1}], v{vTR} offset:{h2*32+e*320}', tag + f'tr{comp}{h2}{e}')
            yield ('delay', 0)
    yield ('delay', 4)
    yield ('wl', tag + 'tr111')
    for comp in range(2):
        for h2 in range(2):
            yield ('vm', f'buffer_store_dwordx4 {V(G[4+2*comp+h2],4)}, v{vL16}, s[{SH}:{SH+3}], s{sT0+comp} offen offset:{h2*1024} sc1', 'lastH')
            yield ('delay', 0)

def f_epiq(acc, kbase):
    yield ('s', f's_lshl_b32 s{sXO}, s{sSL}, 13')
    yield ('s', f's_add_u32 s{sXO}, s{sXO}, s{sHB}')
    yield ('s', f's_add_u32 s{sXO}, s{sXO}, {4096*kbase}')
    g = lambda e: acc + 32 * (e >> 4) + (e & 15)
    for n in range(32 + 4):
        if n < 32: yield ('v', f'v_mul_f32 v{g(n)}, {NLOG2E}, v{g(n)}')
        if 0 <= n - 1 < 32: yield ('t', f'v_exp_f32 v{g(n-1)}, v{g(n-1)}')
        if 0 <= n - 2 < 32: yield ('v', f'v_add_f32 v{g(n-2)}, 1.0, v{g(n-2)}')
        if 0 <= n - 3 < 32: yield ('t', f'v_rcp_f32 v{g(n-3)}, v{g(n-3)}')
        e = n - 4
        if n >= 34: yield ('s', 's_nop 0')
        if 0 <= e < 32:
            yield ('v', f'v_mul_f32 v{g(e)}, v{g(e)}, v{g(e)+16}')
            if e & 1:
                U = acc + 32 * (e >> 4) + 16; c = (e >> 3) & 1
                yield ('v', f'v_cvt_pk_bf16_f32 v{U+8*c+((e&7)>>1)}, v{g(e-1)}, v{g(e)}')
                if (e & 7) == 7:
                    yield ('vm', f'buffer_store_dwordx4 v[{U+8*c}:{U+8*c+3}], v{vHG}, s[{SW}:{SW+3}], s{sXO} offen offset:{512*c} sc1', 'lastH')
                    if e == 15: yield ('s', f's_add_u32 s{sXO}, s{sXO}, 4096')

def f_publish(level, delay):
    yield sitem(f'st{level}')
    yield ('after', delay, [sitem(f'ak{level}'), ('wv', 'lastH'), ('vm', f'buffer_store_dword v{vT}, v{vFP}, s[{SF}:{SF+3}], 0 offen offset:{128*level} sc1', None), sitem(f'pub{level}'), ('mark', f'pub{level}')])

def poll_load(dst, vaddr, off, n=1):
    x = '' if n == 1 else f'x{n}'
    return f'buffer_load_dword{x} {V(dst,n)}, v{vaddr}, s[{SF}:{SF+3}], 0 offen offset:{off} sc1'
def poll_check(dst, vaddr, off, need, n=1):
    def cmp_txt():
        s = ''
        if n > 1:
            s += f'v_xor_b32 v{dst}, v{dst}, v{vT}\n'
            for k in range(1, n): s += f'v_bitop3_b32 v{dst}, v{dst}, v{dst+k}, v{vT} bitop3:0xf6\n'
            s += f'v_cmp_ne_u32 vcc, 0, v{dst}\n'
        else: s += f'v_cmp_ne_u32 vcc, v{dst}, v{vT}\n'
        s += 's_nop 1\n'
        s += f's_and_b64 s[{sTP}:{sTP+1}], vcc, s[{need}:{need+1}]\n' if need else 's_cmp_lg_u64 vcc, 0\n'
        return s
    def chk(a):
        slow = a.newlabel('slow'); ok = a.newlabel('ok')
        a.e(cmp_txt() + f's_cbranch_scc1 {slow}')
        a.label(ok)
        a.cold.append(f'''{slow}:
s_mov_b32 s{sCNT}, 0
{slow}_l:
s_add_u32 s{sCNT}, s{sCNT}, 1
s_cmp_gt_u32 s{sCNT}, {SPIN}
s_cbranch_scc1 {ok}
s_sleep {SLEEP[0]}
{poll_load(dst, vaddr, off, n)}
s_waitcnt vmcnt(0)
{cmp_txt()}s_cbranch_scc1 {slow}_l
s_branch {ok}
''')
    return chk

class Sched:
    def __init__(self, a):
        self.a = a; self.keys = {}
        self.stream = None; self.pend = None; self.delay = 0; self.blocked = False
        self.timers = []; self.barq = []; self.maxlds = 2
    def tick(self, force=False):
        used = 0
        for tm in list(self.timers):
            if len(tm) > 2 and not tm[2]() and not force: continue
            tm[0] -= 1
            if tm[0] <= 0 or force:
                self.timers.remove(tm)
                for it in tm[1]: used += self.emit_item(it)
        return used
    def add(self, gen):
        self.stream = gen if self.stream is None else chain(self.stream, gen)
    def push(self, gen):
        rest = ([self.pend] if self.pend is not None else [])
        self.pend = None; self.delay = 0
        self.stream = chain(gen, rest, self.stream if self.stream is not None else [])
    def peek(self):
        if self.pend is None and self.stream is not None:
            self.pend = next(self.stream, None)
            if self.pend is None: self.stream = None
        return self.pend
    def emit_item(self, it):
        a = self.a; k = it[0]
        if k in ('v', 's'): a.e(it[1]); return 1
        if k == 't': a.e(it[1]); return 2
        if k == 'lds': self.keys[it[2]] = a.lds(it[1]); return 1
        if k == 'vm': self.keys[it[2]] = a.vm(it[1]); return 1
        if k == 'wl': return 1 if a.wait(lg=self.keys[it[1]]) else 0
        if k == 'wv': return 1 if a.wait(vm=self.keys[it[1]]) else 0
        if k == 'raw': it[1](a); return it[2]
        if k == 'forcebar': a.e('s_barrier'); return 1
        if k == 'call': it[1](); return 0
        if k == 'after':
            its = [((x[0] + 'i', self.keys[x[1]]) if x[0] in ('wv', 'wl') else x) for x in it[2]]
            self.timers.append([it[1], its]); return 0
        if k == 'when': self.timers.append([it[2], it[3], it[1]]); return 0
        if k == 'wvi': return 1 if a.wait(vm=it[1]) else 0
        if k == 'wli': return 1 if a.wait(lg=it[1]) else 0
        if k == 'onbar': self.barq.append(it[1]); return 0
        if k == 'flush': return self.tick(True)
        if k == 'mark': self.keys[it[1]] = True; return 0
        if k == 'req': assert self.keys.get(it[1]), it[1]; return 0
        raise ValueError(k)
    def head_vm(self):
        return self.delay <= 0 and not self.blocked and self.peek() is not None and self.pend[0] == 'vm'
    def fill(self, budget, vm_ok=True):
        budget -= self.tick()
        if self.delay > 0: self.delay -= 1; return
        if budget <= 0: return
        used = 0; valu_seen = False; self.nl = 0
        while not self.blocked:
            it = self.peek()
            if it is None: return
            k = it[0]
            if k == 'delay': self.delay = it[1]; self.pend = None; return
            if k == 'needbar': self.blocked = True; self.pend = None; return
            if k == 'until':
                if not it[1](): return
                self.pend = None; continue
            if k in ('lds', 'vm') and valu_seen: return
            if k == 'vm':
                if not vm_ok: return
                vm_ok = False
            if k == 'lds':
                nl = getattr(self, 'nl', 0)
                if nl >= self.maxlds: return
                self.nl = nl + 1
            cost = 2 if k == 't' else it[2] if k == 'raw' else 1 if k in ('v', 's', 'lds', 'vm', 'wl', 'wv', 'forcebar') else 0
            if used + cost > budget and (used > 0 or (k == 't' and budget < 2)): return
            self.pend = None
            used += self.emit_item(it)
            if k in ('v', 't', 'raw'): valu_seen = True
    def on_barrier(self):
        self.blocked = False
        q = self.barq; self.barq = []
        for its in q:
            for it in its: self.emit_item(it)
    def drain(self, every=None):
        n = 0
        while True:
            if self.blocked:
                self.a.e('s_barrier'); self.blocked = False
            it = self.peek()
            if it is None: return
            self.pend = None
            if it[0] in ('delay', 'until'): continue
            if it[0] == 'needbar': self.blocked = True; continue
            c = self.emit_item(it); n += c
            self.acc = getattr(self, 'acc', 0) + c
            if self.acc >= 6: self.acc = 0; self.tick()
            if every and n >= every[0]:
                n = 0; every[1]()

def P(r): return f'v[{r}:{r+1}]'

def kernel(cfg):
    a = Asm(); a.cold = []
    name = KNAME
    ntx = ' nt' if cfg.get('ntx') else ''
    ntw = ' nt' if cfg.get('ntw') else ''
    a.e(f'.globl {name}\n.p2align 8\n.type {name},@function')
    a.label(name)
    a.e(f's_cmp_ge_u32 s2, 256\ns_cbranch_scc1 L_end')
    a.e('''s_load_dwordx16 s[16:31], s[0:1], 0
s_load_dwordx16 s[32:47], s[0:1], 64
v_lshrrev_b32 v2, 6, v0
v_and_b32 v1, 63, v0
v_readfirstlane_b32 s3, v2''')
    a.e('s_and_b32 s10, s2, 7\ns_lshr_b32 s11, s2, 3')
    mp = cfg['k1map']
    lgr = {'T': 1, 'P': 2, 'R': 3, 'S': 4}[mp]
    lx = 4 - lgr
    ls = 3 - lx
    sSH = 15
    a.e(f'''s_lshr_b32 s{sSH}, s11, {5-lgr}
s_lshr_b32 s{sRB}, s10, {ls}
s_lshl_b32 s{sRB}, s{sRB}, {lgr}
s_add_u32 s{sRB}, s{sRB}, s{sSH}
s_and_b32 s{sSL}, s11, {(32>>lgr)-1}
s_lshl_b32 s{sSL}, s{sSL}, {ls}
s_and_b32 s12, s10, {(1<<ls)-1}
s_add_u32 s{sSL}, s{sSL}, s12
s_lshr_b32 s{sRBP}, s10, 1
s_lshl_b32 s{sRBP}, s{sRBP}, 2
s_lshr_b32 s12, s11, 3
s_add_u32 s{sRBP}, s{sRBP}, s12
s_and_b32 s{sNB}, s11, 7
s_lshl_b32 s10, s{sSL}, 1
s_sub_u32 s11, s10, 12
s_min_u32 s13, s{sSL}, 9
s_cmp_ge_u32 s{sSL}, 11
s_cselect_b32 s{sD1}, s11, s13
s_add_u32 s{sD2}, s{sD1}, 1''')
    nsh = 16 if cfg.get('tmall') else (1 << lgr)
    if cfg.get('tmall'): a.e(f's_mov_b32 s{sSH}, s{sRB}')
    RT = 192
    vRTR, vRTL = 208, 209
    XV, XR, DV = 96, 116, 212
    tl = 128
    vJ, vRHO, vXA, vLW, vLR, vXS, vFL0, vSTA, vTQ, vTD, vPAR, vZ = range(tl + 8, tl + 20)
    DUM = 240
    sU, sKS, sCG, sRO, sROLE, sRLO, sRST = 84, 85, 86, 87, 99, 96, 97
    sXS0, sXS1, sXS2 = 89, 90, 91
    t = tl
    a.e(f'''s_lshl_b32 s12, s{sRB}, 2
s_lshr_b32 s10, s{sSL}, 2
s_add_u32 s12, s12, s10
s_and_b32 s13, s{sSL}, 3
v_and_b32 v{vJ}, 31, v1
v_lshrrev_b32 v{t}, 5, v1
s_lshl_b32 s10, s3, 1
v_add_u32 v{vRHO}, s10, v{t}
v_and_b32 v{t}, 3, v{vRHO}
v_lshrrev_b32 v{t+1}, 2, v{vRHO}
v_lshlrev_b32 v{t+1}, 4, v{t+1}
v_add_u32 v{t}, v{t}, v{t+1}
s_lshl_b32 s10, s12, 5
s_lshl_b32 s11, s13, 2
s_add_u32 s10, s10, s11
v_add_u32 v{t}, s10, v{t}
v_lshlrev_b32 v{t+1}, 3, v{vJ}
v_mul_u32_u24 v{vXA}, 1280, v{t}
v_add_u32 v{vXA}, v{vXA}, v{t+1}
v_lshlrev_b32 v{t}, 3, v{t}
v_add_u32 v{t}, {STAT_OFF}, v{t}
v_cmp_eq_u32 vcc, 0, v{vJ}
v_mov_b32 v{vSTA}, {OOB}
v_lshlrev_b32 v{vL16}, 4, v1
v_cndmask_b32 v{vSTA}, v{vSTA}, v{t}, vcc
v_mov_b32 v{vZ}, {NONCE_OFF}
s_lshl_b32 s{sM0B}, s3, 12
s_mul_i32 s{sXS0}, s12, 40960
s_lshl_b32 s13, s13, 7
s_add_u32 s{sXS0}, s{sXS0}, s13
s_add_u32 s{sXS0}, s{sXS0}, s{sM0B}
s_add_u32 s{sXS1}, s{sXS0}, 16384
s_cmp_ge_u32 s3, 2
s_cselect_b32 s{sXS2}, {OOB}, 32768
s_add_u32 s{sXS2}, s{sXS2}, s{sXS0}''')
    a.e(f'''v_lshrrev_b32 v{t}, 3, v1
v_and_b32 v{t+1}, 7, v1
v_lshrrev_b32 v{t+2}, 1, v{t}
v_xor_b32 v{t+3}, v{t+1}, v{t+2}
v_lshlrev_b32 v{t+3}, 4, v{t+3}
v_mul_u32_u24 v{t+4}, 1280, v{t}
v_add_u32 v{vD[0]}, v{t+4}, v{t+3}
v_xor_b32 v{t+3}, 64, v{t+3}
v_add_u32 v{vD[1]}, v{t+4}, v{t+3}
v_add_u32 v{vD[1]}, {10240-1024}, v{vD[1]}
v_add_u32 v{vD[2]}, {2*(10240-1024)}, v{vD[0]}
v_add_u32 v{vD[3]}, {2*(10240-1024)}, v{vD[1]}
v_lshl_add_u32 v{vRTL}, v{t+1}, 4, v{t+4}
v_and_b32 v{t+2}, 1, v{t+2}
v_lshlrev_b32 v{t+2}, 2, v{t+2}
v_xor_b32 v{t+3}, v{t+1}, v{t+2}
v_lshlrev_b32 v{t+3}, 4, v{t+3}
v_mul_u32_u24 v{t+4}, 3456, v{t}
v_add_u32 v{vQ[0]}, v{t+4}, v{t+3}
v_add_u32 v{vQ[1]}, {8*3456-1024}, v{vQ[0]}
v_xor_b32 v{t+3}, v{t}, v{t+1}
v_lshlrev_b32 v{t+3}, 4, v{t+3}
v_lshl_add_u32 v{t+3}, v{t}, 7, v{t+3}
s_lshl_b32 s14, s3, 10
s_add_u32 s14, s14, {SCR}
v_add_u32 v{vLR}, s14, v{t+3}
v_lshlrev_b32 v{t+1}, 4, v{t+1}
v_lshl_add_u32 v{vXS}, v{t}, 9, v{t+1}
s_lshr_b32 s14, s3, 1
s_lshl_b32 s10, s{sSH}, 1
s_add_u32 s{sSH}, s10, s14
s_lshl_b32 s14, s14, 7
s_mul_i32 s{sDOFF1}, s{sD1}, 40960
s_add_u32 s{sDOFF1}, s{sDOFF1}, s14
s_add_u32 s{sDOFF2}, s{sDOFF1}, 40960
s_mul_i32 s14, s3, {16*3456}
s_lshl_b32 s{sQOFF1}, s{sSL}, 7
s_add_u32 s{sQOFF1}, s{sQOFF1}, s14
s_add_u32 s{sQOFF2}, s{sQOFF1}, 2048
s_lshl_b32 s{sXO}, s{sRB}, 2
s_add_u32 s{sXO}, s{sXO}, s3
s_mul_i32 s{sXO}, s{sXO}, 40960''')
    assert XNF_OFF == 0
    RQ = 320 // nsh; RD = 160 // nsh
    nq = -(-RQ // 64); rq = RQ // nq
    a.e(f'''s_mul_i32 s14, s{sSH}, {RQ}
v_add_u32 v{t}, s14, v1
v_mul_u32_u24 v{t}, 3456, v{t}
v_cmp_gt_u32 vcc, {rq}, v1
v_mov_b32 v{vTQ}, {OOB}
s_mul_i32 s14, s{sSH}, {RD}
v_cndmask_b32 v{vTQ}, v{vTQ}, v{t}, vcc
v_add_u32 v{t}, s14, v1
v_lshlrev_b32 v{t}, 7, v{t}
v_cmp_gt_u32 vcc, {min(RD,64)}, v1
v_mov_b32 v{vTD}, {OOB}
v_lshlrev_b32 v{vPAR}, 1, v{vJ}
v_cndmask_b32 v{vTD}, v{vTD}, v{t}, vcc''')
    assert RD <= 64 or True
    a.e(f'''v_lshrrev_b32 v{t}, 1, v{vJ}
v_and_b32 v{t+1}, 7, v{t}
v_xor_b32 v{t+1}, v{t+1}, v{vRHO}
v_lshlrev_b32 v{t+1}, 4, v{t+1}
v_lshl_add_u32 v{t}, v{t}, 7, v{t+1}
v_and_b32 v{t+1}, 1, v{vJ}
v_lshl_add_u32 v{t}, v{t+1}, 3, v{t}
v_add_u32 v{vLW}, {SCR}, v{t}
v_lshrrev_b32 v{t}, 2, v1
v_and_b32 v{t+1}, 3, v1
v_lshlrev_b32 v{t+1}, 2, v{t+1}
v_lshl_add_u32 v{t}, v{t}, 9, v{t+1}
s_lshl_b32 s14, s{sRBP}, 13
v_add_u32 v2, s14, v{t}
s_lshl_b32 s14, s{sRB}, 13
s_lshl_b32 s10, s3, 11
s_add_u32 s10, s10, s14
v_add_u32 v{t}, s10, v{t}
v_cmp_gt_u32 vcc, 16, v1
v_mov_b32 v{vFL0}, {OOB}
s_lshl_b32 s10, s{sSL}, 9
v_cndmask_b32 v{vFL0}, v{vFL0}, v{t}, vcc
s_add_u32 s14, s14, s10
s_lshl_b32 s10, s3, 2
s_add_u32 s14, s14, s10
v_mov_b32 v{vFP}, {OOB}
v_writelane_b32 v{vFP}, s14, 0''')
    vFL2 = 2
    a.e(f'''s_lshr_b32 s14, s3, 1
s_lshl_b32 s14, s14, 7
s_mul_i32 s{sDOFF1}, s{sD1}, 40960
s_add_u32 s{sDOFF1}, s{sDOFF1}, s14''')
    a.e(f'''v_lshrrev_b32 v{t}, 5, v1
v_bfe_u32 v{t+1}, v1, 2, 2
v_lshl_add_u32 v{t}, v{t}, 3, v{t+1}
v_lshlrev_b32 v{t}, 7, v{t}
v_bfe_u32 v{t+1}, v1, 3, 1
v_lshl_add_u32 v{t}, v{t+1}, 6, v{t}
v_bfe_u32 v{t+1}, v1, 4, 1
v_lshl_add_u32 v{t}, v{t+1}, 5, v{t}
v_and_b32 v{t+1}, 3, v1
v_lshl_add_u32 v{vRQ[0][0]}, v{t+1}, 3, v{t}
v_xor_b32 v{vRQ[1][0]}, 64, v{vRQ[0][0]}''')
    for jh in range(2):
        for wn in (1, 2): a.e(f'v_add_u32 v{vRQ[jh][wn]}, {65536*wn}, v{vRQ[jh][0]}')
    a.e(f'''v_bfe_u32 v{t}, v1, 1, 3
v_lshrrev_b32 v{t+1}, 5, v1
v_xor_b32 v{t}, v{t}, v{t+1}
v_lshlrev_b32 v{t}, 4, v{t}
v_lshl_add_u32 v{vRD[0]}, v{vJ}, 7, v{t}
v_xor_b32 v{vRD[1]}, 32, v{vRD[0]}
v_xor_b32 v{vRD[2]}, 64, v{vRD[0]}
v_xor_b32 v{vRD[3]}, 96, v{vRD[0]}''')
    a.e('s_waitcnt lgkmcnt(0)')
    stamp(a, 'rt0', True); stamp(a, 't0')

    stage_last = {}
    st = dict(dwin=0, issued=0, rid={})
    K = {}
    cur = {}
    def dma_items(n, kind, soff):
        slot = n % NS
        out = []
        for j in range(4):
            def th(j=j):
                if j == 0:
                    if n == 8: assert st.get('rtread')
                    a.e(f's_add_u32 m0, s{sM0B}, {slot*16384}')
                    first = n == 0 or cur['stages'][n - 1] != cur['stages'][n]
                    a.e('s_nop 0' if first else f's_add_u32 s{soff}, s{soff}, {256 if kind=="D" else 64*3456}')
                if kind == 'D': i = a.vm(f'buffer_load_dwordx4 v{vD[j]}, s[{SB}:{SB+3}], s{soff} offen offset:{1024*j} lds')
                else:
                    srd = SG if j < 2 else SU
                    i = a.vm(f'buffer_load_dwordx4 v{vQ[j&1]}, s[{srd}:{srd+3}], s{soff} offen offset:{1024*j} lds')
                if j == 3:
                    stage_last[n] = i
            th.stage = n
            out.append(th)
        return out
    dum = [DUM]
    def step_x():
        a.srd(SP, P_X, 2621440)
        K['x'] = [a.vm(f'buffer_load_dwordx2 v[{XR+2*n}:{XR+2*n+1}], v{vXA}, s[{SP}:{SP+3}], 0 offen offset:{256*n}{ntx}') for n in range(5)][-1]
        a.srd(SW, P_WS, WS_BYTES)
        K['n'] = a.vm(f'buffer_load_dword v{vT}, v{vZ}, s[{SW}:{SW+3}], 0 offen sc1')
        a.srd(SG, P_WG, 640 * 3456); a.srd(SU, P_WU, 640 * 3456 + 2048, add=-2048)
        a.e(f's_and_b32 s14, s3, 1\ns_cselect_b32 s{SB}, s{P_BIM}, s{P_BRE}\ns_cselect_b32 s{SB+1}, s{P_BIM+1}, s{P_BRE+1}\ns_mov_b32 s{SB+2}, 819200\ns_mov_b32 s{SB+3}, 0x00020000')
        a.e(f's_cselect_b32 s{SH}, s{P_WU}, s{P_WG}\ns_cselect_b32 s{SH+1}, s{P_WU+1}, s{P_WG+1}\ns_mov_b32 s{SH+2}, {640*3456}\ns_mov_b32 s{SH+3}, 0x00020000')
        a.srd(SF, P_WS, 262144, add=FLG_OFF)
    def step_t(u):
        kind, acc, soff = cur['units'][u]
        if kind == 'Q':
            for k in range(nq):
                a.e(f's_lshl_b32 s14, s{sSL}, 7')
                c = (2048 if soff == sQOFF2 else 0) + k * rq * 3456
                if c: a.e(f's_add_u32 s14, s14, {c}')
                a.vm(f'buffer_load_dword v{dum[0]}, v{vTQ}, s[{SH}:{SH+3}], s14 offen{ntw}'); dum[0] += 1
        else:
            for k in range(-(-RD // 64)):
                a.e(f's_mul_i32 s14, s{sD1 if soff == sDOFF1 else sD2}, 40960')
                if k: a.e(f's_add_u32 s14, s14, {k*(RD-64)*128}')
                a.vm(f'buffer_load_dword v{dum[0]}, v{vTD}, s[{SB}:{SB+3}], s14 offen{ntw}'); dum[0] += 1
    def step_par():
        a.e(f's_lshl_b32 s14, s{sD1}, 6')
        for i, p in enumerate((P_LRE, P_LIM, P_LDT)):
            a.srd(SP, p, 1280)
            a.vm(f'buffer_load_ushort v{TMP+i}, v{vPAR}, s[{SP}:{SP+3}], s14 offen')
            K['par'] = a.vm(f'buffer_load_ushort v{TMP+4+i}, v{vPAR}, s[{SP}:{SP+3}], s14 offen offset:64')
    def step_rta():
        Lc, Ld = a.newlabel('rt_c'), a.newlabel('rt_done')
        a.e(f's_lshl_b32 s{sU}, s2, 2\ns_add_u32 s{sU}, s{sU}, s3\ns_mov_b32 s{sROLE}, 1\ns_cmp_ge_u32 s{sU}, 540\ns_cbranch_scc1 {Lc}')
        a.sdiv(sKS, sU, 10, 540)
        a.e(f's_mul_i32 s{sCG}, s{sKS}, 10\ns_sub_u32 s{sCG}, s{sU}, s{sCG}')
        a.srd(SR, P_WD, 1728 * 1280)
        a.e(f'''s_mul_i32 s{sRLO}, s{sKS}, 40960
s_lshl_b32 s14, s{sCG}, 7
s_add_u32 s{sRLO}, s{sRLO}, s14
s_mov_b32 s{sRST}, {10240-1024}
v_lshrrev_b32 v{vRTR}, 5, v1
v_bfe_u32 v{RT}, v1, 4, 1
v_lshlrev_b32 v{RT}, 2, v{RT}
v_lshl_add_u32 v{vRTR}, v{vRTR}, 4, v{RT}
v_bfe_u32 v{RT}, v1, 2, 2
v_add_u32 v{vRTR}, v{vRTR}, v{RT}
v_lshlrev_b32 v{vRTR}, 7, v{vRTR}
v_and_b32 v{RT}, 3, v1
v_lshl_add_u32 v{vRTR}, v{RT}, 3, v{vRTR}
s_mul_i32 s{sKS}, s{sKS}, 5120
s_add_u32 s{sKS}, s{sKS}, {W2F_OFF+40*5120}''')
        for q in range(4):
            a.e(f's_lshl_b32 s14, s{sCG}, 2\ns_add_u32 s14, s14, {q}')
            a.sdiv(sRO, 14, 5, 40)
            a.e(f'''s_mul_i32 s{sRO}, s{sRO}, {NKS*5120-5120}
s_lshl_b32 s14, s14, 10
s_add_u32 s14, s14, s{sRO}
s_add_u32 s{36+q}, s14, s{sKS}''')
        a.e(f's_branch {Ld}')
        a.label(Lc)
        a.e(f's_mov_b32 s{sROLE}, 2\ns_sub_u32 s{sU}, s{sU}, 540\ns_cmp_ge_u32 s{sU}, 200\ns_cselect_b32 s{sKS}, 1, 0')
        a.e(f's_cselect_b32 s{SR}, s{P_CIM}, s{P_CRE}\ns_cselect_b32 s{SR+1}, s{P_CIM+1}, s{P_CRE+1}\ns_mov_b32 s{SR+2}, 819200\ns_mov_b32 s{SR+3}, 0x00020000')
        a.e(f's_mul_i32 s14, s{sKS}, 200\ns_sub_u32 s{sU}, s{sU}, s14')
        a.sdiv(sCG, sU, 5, 300)
        a.e(f's_mul_i32 s14, s{sCG}, 5\ns_sub_u32 s{sRO}, s{sU}, s14')
        a.e(f'''s_mul_i32 s{sRLO}, s{sCG}, 20480
s_lshl_b32 s14, s{sRO}, 8
s_add_u32 s{sRLO}, s{sRLO}, s14
s_mov_b32 s{sRST}, {5120-1024}
v_lshrrev_b32 v{RT}, 4, v1
v_and_b32 v{RT+1}, 15, v1
v_mul_u32_u24 v{vRTL}, 1280, v{RT}
v_lshl_add_u32 v{vRTL}, v{RT+1}, 4, v{vRTL}
v_lshlrev_b32 v{RT}, 4, v{RT}
v_lshl_add_u32 v{vRTR}, v{RT+1}, 8, v{RT}''')
        a.sdiv(sU, sCG, 5, 60)
        a.e(f'''s_mul_i32 s{sU}, s{sU}, {NKS*5120-5120}
s_lshl_b32 s14, s{sCG}, 10
s_add_u32 s{sU}, s{sU}, s14
s_lshl_b32 s14, s{sRO}, 3
s_add_u32 s14, s14, s{sKS}
s_mul_i32 s14, s14, 5120
s_add_u32 s{sU}, s{sU}, s14
s_cmp_ge_u32 s{sCG}, 40
s_cselect_b32 s14, {OOB}, {W2F_OFF}
s_add_u32 s36, s{sU}, s14
s_add_u32 s37, s36, 10240
s_add_u32 s38, s36, 20480
s_add_u32 s39, s36, 30720''')
        a.label(Ld)
        a.e(f's_add_u32 s14, s{sM0B}, {8*16384}\nv_add_u32 v{vRTR}, s14, v{vRTR}')
    def step_rtl():
        a.e(f's_add_u32 m0, s{sM0B}, {8*16384}\ns_nop 0')
        for j in range(4):
            K['rt'] = a.vm(f'buffer_load_dwordx4 v{vRTL}, s[{SR}:{SR+3}], s{sRLO} offen offset:{1024*j}{ntx} lds')
            if j < 3: a.e(f's_add_u32 s{sRLO}, s{sRLO}, s{sRST}')
    def rt_read(a):
        a.wait(vm=K['rt'])
        lc, ld = a.newlabel('rtc'), a.newlabel('rtd')
        a.e(f's_cmp_eq_u32 s{sROLE}, 2\ns_cbranch_scc1 {lc}')
        for q in range(4):
            for e in range(2): a.e(f'ds_read_b64_tr_b16 v[{RT+4*q+2*e}:{RT+4*q+2*e+1}], v{vRTR} offset:{q*32+e*1024}')
        a.e(f's_branch {ld}')
        a.label(lc)
        for q in range(4):
            for e in range(2): K['rtr'] = a.lds(f'ds_read_b64 v[{RT+4*q+2*e}:{RT+4*q+2*e+1}], v{vRTR} offset:{q*64+e*8}')
        a.label(ld)
    def step_s():
        for th in dma_items(st['issued'], *cur['stages'][st['issued']]): th()
        st['issued'] += 1
    def step_ln(nst=0):
        a.wait(vm=K['x'])
        stamp(a, 'x')
        l0 = len(a.lines)
        ln_body()
        if nst:
            body = a.lines[l0:cur['lnend']]; tail_ = a.lines[cur['lnend']:]
            vm_tail = a.vm_n - cur['vm0']
            a.lines = a.lines[:l0]; a.vm_n = cur['vm0']
            ths = []
            for _ in range(nst):
                ths += dma_items(st['issued'], *cur['stages'][st['issued']]); st['issued'] += 1
            step = len(body) // (len(ths) + 1)
            for k, ln_ in enumerate(body):
                a.lines.append(ln_)
                if ths and (k + 1) % step == 0: ths.pop(0)()
            assert not ths
            a.lines += tail_; a.vm_n += vm_tail; K['xst'] = a.vm_n - 1
    def ln_body():
        cur['vm0'] = a.vm_n
        for n in range(10):
            a.e(f'v_lshlrev_b32 v{XV+2*n}, 16, v{XR+n}\nv_and_b32 v{XV+2*n+1}, 0xffff0000, v{XR+n}')
        m_, q_ = tl, tl + 2
        a.e(f'v_pk_add_f32 {P(m_)}, {P(XV)}, {P(XV+2)}\nv_pk_add_f32 {P(q_)}, {P(XV+4)}, {P(XV+6)}')
        for n in range(4, 10, 2):
            a.e(f'v_pk_add_f32 {P(m_)}, {P(m_)}, {P(XV+2*n)}\nv_pk_add_f32 {P(q_)}, {P(q_)}, {P(XV+2*n+2)}')
        a.e(f'v_pk_add_f32 {P(m_)}, {P(m_)}, {P(q_)}\nv_add_f32 v{m_}, v{m_}, v{m_+1}')
        def red32(v, tt, fill):
            fill = iter(fill)
            def pad():
                x = next(fill, None); y = next(fill, None)
                if x is None: a.e('s_nop 1')
                else: a.e(x); a.e(y if y else 's_nop 0')
            for r in (8, 4, 2, 1):
                pad(); a.e(f'v_add_f32_dpp v{v}, v{v}, v{v} row_ror:{r} row_mask:0xf bank_mask:0xf')
            a.e(f'v_mov_b32 v{tt}, v{v}'); pad()
            a.e(f'v_permlane16_swap_b32 v{v}, v{tt}\ns_nop 0')
            a.e(f'v_add_f32 v{v}, v{v}, v{tt}')
            return fill
        red32(m_, m_ + 1, [])
        a.e(f'v_mul_f32 v{m_}, 0xbacccccd, v{m_}')
        sel = 'op_sel_hi:[1,0]'
        for n in range(10): a.e(f'v_pk_add_f32 {P(DV+2*n)}, {P(XV+2*n)}, {P(m_)} {sel}')
        a.e(f'v_pk_mul_f32 {P(q_)}, {P(DV)}, {P(DV)}\nv_pk_mul_f32 {P(tl+4)}, {P(DV+2)}, {P(DV+2)}')
        for n in range(2, 10, 2):
            a.e(f'v_pk_fma_f32 {P(q_)}, {P(DV+2*n)}, {P(DV+2*n)}, {P(q_)}\nv_pk_fma_f32 {P(tl+4)}, {P(DV+2*n+2)}, {P(DV+2*n+2)}, {P(tl+4)}')
        a.e(bfround_t(m_, m_))
        a.e(f'v_pk_add_f32 {P(q_)}, {P(q_)}, {P(tl+4)}\nv_add_f32 v{q_}, v{q_}, v{q_+1}')
        dfill = [f'v_pk_add_f32 {P(DV+2*n)}, {P(XV+2*n)}, {P(m_)} {sel}' for n in range(10)]
        if cfg.get('mimic', 0):
            dfill += [f'v_cvt_pk_bf16_f32 v{XR+n}, v{DV+2*n}, v{DV+2*n+1}' for n in range(10)]
            for n in range(10): dfill += [f'v_lshlrev_b32 v{DV+2*n}, 16, v{XR+n}', f'v_and_b32 v{DV+2*n+1}, 0xffff0000, v{XR+n}']
        rest = red32(q_, q_ + 1, dfill)
        chain_ops = [f'v_mul_f32 v{q_}, 0x3acccccd, v{q_}'] + bfround_t(q_, q_).split('\n')[:2] + [f'v_add_f32 v{q_}, 0x3727c5ac, v{q_}'] + bfround_t(q_, q_).split('\n')[:2] \
            + [f'v_sqrt_f32 v{q_}, v{q_}', 's_nop 0'] + bfround_t(q_, q_).split('\n')[:2] + [f'v_rcp_f32 v{m_+1}, v{q_}', 's_nop 0']
        for op in chain_ops:
            a.e(op)
            for _ in range(2):
                x = next(rest, None)
                if x: a.e(x)
        for x in rest: a.e(x)
        for n in range(10):
            a.e(f'v_pk_mul_f32 {P(DV+2*n)}, {P(DV+2*n)}, {P(m_)} op_sel:[0,1]')
        cur['lnend'] = len(a.lines)
        for n in range(10):
            a.e(f'v_cvt_pk_bf16_f32 v{XR+n}, v{DV+2*n}, v{DV+2*n+1}')
            if n & 1: a.lds(f'ds_write_b64 v{vLW}, v[{XR+n-1}:{XR+n}] offset:{2048*(n>>1)}')
        a.wait_all(vm=False)
        a.e('s_barrier')
        r3 = [a.lds(f'ds_read_b128 v[{DV+4*i}:{DV+4*i+3}], v{vLR} offset:{4096*i}') for i in range(3)]
        for i, so in enumerate((sXS0, sXS1, sXS2)):
            a.wait(lg=r3[i])
            K['xst'] = a.vm(f'buffer_store_dwordx4 v[{DV+4*i}:{DV+4*i+3}], v{vXS}, s[{SW}:{SW+3}], s{so} offen sc1')
        stamp(a, 'xnst')
    def step_flag():
        a.wait(vm=K['xst'])
        a.e(f'v_add_u32 v{vT}, {GOLD}, v{vT}')
        a.vm(f'buffer_store_dword v{vT}, v{vFP}, s[{SF}:{SF+3}], 0 offen sc1')
        a.e(f'v_mov_b32 v210, v{tl}\nv_mov_b32 v211, v{tl+1}\nv_mov_b32 v232, v{vSTA}')
        stamp(a, 'f0pub')
    def step_poll():
        K['poll'] = a.vm(poll_load(tl + 4, vFL0, 0))
    def step_chk():
        a.e(f's_mov_b32 s40, 0xffff\ns_mov_b32 s41, 0')
        a.wait(vm=K['poll'])
        stamp(a, 'f0w')
        poll_check(tl + 4, vFL0, 0, 40)(a)
        stamp(a, 'f0ok')
    xid = {}
    xq = []
    for s in range(40):
        def th(s=s):
            if s % 4 == 0 and s > 0: a.e(f's_add_u32 s{sXO}, s{sXO}, 4096')
            xid[s] = a.vm(f'buffer_load_dwordx4 {R(XF+4*s,4)}, v{vL16}, s[{SW}:{SW+3}], s{sXO} offen offset:{1024*(s%4)} sc1')
        xq.append(th)
    def step_f():
        for _ in range(4): cur['xq'].pop(0)()
    def step_rr():
        rt_read(a); a.wait(lg=K['rtr']); st['rtread'] = True
    def step_rs():
        K['p0st'] = a.vm(f'buffer_store_dwordx2 v[210:211], v232, s[{SW}:{SW+3}], 0 offen sc1')
        for q in range(4): K['p0st'] = a.vm(f'buffer_store_dwordx4 v[{RT+4*q}:{RT+4*q+3}], v{vL16}, s[{SW}:{SW+3}], s{36+q} offen sc1')
    def run_items(gen):
        tmp = Sched(a); tmp.add(gen); tmp.drain()
    def step_c():
        a.wait(vm=K['par'])
        run_items(chain(items(ssm_consts(C1, TMP)), items(ssm_consts(C2, TMP + 4)) if cur['typ'] == 'B' else []))
    def step_su():
        run_items(chain(items(setup), [('raw', setup_scc, 4)], items(setup1b), [('raw', setup_scc2, 5), ('raw', setup_scc3, 3)], items(setup2), mask_items(), f1_pub(TMP + 30)))
    steps = dict(c=step_c, su=step_su, x=step_x, t0=lambda: step_t(0), t1=lambda: step_t(1), t2=lambda: step_t(2), par=step_par, ra=step_rta, rl=step_rtl, s=step_s,
                 ln=step_ln, ln1=lambda: step_ln(1), ln2=lambda: step_ln(2), ln3=lambda: step_ln(3), fl=step_flag, po=step_poll, ck=step_chk, f=step_f, rr=step_rr, rs=step_rs)
    order = cfg.get('p0', 'x.par.t0.ra.rl.s.ln.s.t1.t2.c.fl.s.s.rr.su.po.ck.f.f.f.s.rs').split('.')

    def rt_stream():
        if 'rr' in order: return
        yield ('delay', cfg.get('rtdelay', 2))
        yield ('raw', rt_read, 10)
        yield ('delay', 3)
        yield ('call', lambda: (a.wait(lg=K['rtr']), st.__setitem__('rtread', True)))
    def rt_stores(cond, SPR):
        pub = ('onbar', [('vm', f'buffer_store_dword v{vT}, v{SPR+2}, s[{SF}:{SF+3}], 0 offen sc1', None), sitem('f1pub'), ('mark', 'f1pub')])
        if 'rs' in order:
            yield ('after', cfg.get('f1delay', 40), [('wvi', K['p0st']), pub]); return
        sts = [('vm', f'buffer_store_dwordx2 v[210:211], v232, s[{SW}:{SW+3}], 0 offen sc1', 'p0st')]
        sts += [('vm', f'buffer_store_dwordx4 v[{RT+4*q}:{RT+4*q+3}], v{vL16}, s[{SW}:{SW+3}], s{36+q} offen sc1', 'p0st') for q in range(4)]
        d0 = cfg.get('stdelay', 1); g = cfg.get('stgap', 1)
        for k, it in enumerate(sts[:-1]): yield ('when', cond, d0 + g * k, [it])
        yield ('when', cond, d0 + g * 4, [sts[-1], ('mark', 'rtst'), ('after', cfg.get('f1delay', 40), [('wv', 'p0st'), pub])])

    setup = f'''s_mul_i32 s15, s{sD1}, {AGS}
s_add_u32 s15, s15, {AGG_OFF}
s_mov_b32 s{SH}, s{P_WS}
s_mov_b32 s{SH+1}, s{P_WS+1}
s_mov_b32 s{SH+3}, 0x00020000
s_lshl_b32 s{sHB}, s{sRB}, 1
s_lshr_b32 s{sT0}, s3, 1
s_add_u32 s{sHB}, s{sHB}, s{sT0}
s_mul_i32 s{sHB}, s{sHB}, {NKS*4096}
s_and_b32 s{sT0}, s3, 1
s_lshl_b32 s{sT0}, s{sT0}, 11
s_add_u32 s{sHB}, s{sHB}, s{sT0}
s_add_u32 s{sHB}, s{sHB}, {HF_OFF}
s_and_b32 s{sT0}, s2, 1
s_lshl_b32 s{sT1}, s{sRBP}, 1
s_add_u32 s{sT1}, s{sT1}, s{sT0}
s_lshl_b32 s{sT0}, s{sT0}, 2
s_add_u32 s{sT0}, s{sT0}, s3
s_mul_i32 s{sW2}, s{sNB}, {NKS}
s_add_u32 s{sW2}, s{sW2}, s{sT0}
s_mul_i32 s{sW2}, s{sW2}, 5120
s_add_u32 s{sW2}, s{sW2}, {W2F_OFF}
s_lshl_b32 s{sT0}, s{sT0}, 12
s_add_u32 s{sT0}, s{sT0}, {HF_OFF}
s_mul_i32 s{sH2[1]}, s{sT1}, {NKS*4096}
s_add_u32 s{sH2[1]}, s{sH2[1]}, s{sT0}
s_xor_b32 s{sH2[0]}, s{sT1}, 1
s_mul_i32 s{sH2[0]}, s{sH2[0]}, {NKS*4096}
s_add_u32 s{sH2[0]}, s{sH2[0]}, s{sT0}
s_mul_i32 s{sHL}, s{sT1}, {NKS*4096}
s_add_u32 s{sHL}, s{sHL}, s{sM0B}
s_add_u32 s{sHL}, s{sHL}, {HF_OFF+62*4096}
s_mul_i32 s{sWL}, s{sNB}, {NKS}
s_add_u32 s{sWL}, s{sWL}, s3
s_mul_i32 s{sWL}, s{sWL}, 5120
s_add_u32 s{sWL}, s{sWL}, {W2F_OFF+62*5120}
s_lshl_b32 s{sT1}, s{sT1}, 2
s_add_u32 s{sT1}, s{sT1}, s3
s_lshl_b32 s{sSTO}, s{sT1}, 7
s_add_u32 s{sSTO}, s{sSTO}, {STAT_OFF}
s_mul_i32 s{sXO2}, s{sT1}, 20480
s_mul_i32 s{sDKO}, s{sNB}, 160
s_add_u32 s{sXO2}, s{sXO2}, s{sDKO}
s_lshl_b32 s{sOO}, s{sXO2}, 1
s_lshl_b32 s{sT0}, s2, 2
s_add_u32 s{sT0}, s{sT0}, s3
s_mul_i32 s{sXS}, s{sT0}, 5120
s_add_u32 s{sXS}, s{sXS}, {XCH_OFF}
s_xor_b32 s{sT0}, s{sT0}, 4
s_mul_i32 s{sXL}, s{sT0}, 5120
s_add_u32 s{sXL}, s{sXL}, {XCH_OFF}
s_mov_b32 s{sNEEDA}, -1
s_mov_b32 s{sNEEDA+1}, 0xfff
v_and_b32 v{GOF}, 31, v1
v_lshrrev_b32 v{GOF+2}, 5, v1
v_bfe_u32 v{GOF+1}, v1, 2, 1
v_lshlrev_b32 v{GOF+1}, 10, v{GOF+1}
v_lshl_add_u32 v{GOF+1}, v{GOF+2}, 8, v{GOF+1}
v_bfe_u32 v{GOF+3}, v1, 3, 2
v_lshl_add_u32 v{GOF+1}, v{GOF+3}, 6, v{GOF+1}
v_and_b32 v{GOF+3}, 3, v1
v_lshl_add_u32 v{vHG}, v{GOF+3}, 4, v{GOF+1}
s_lshl_b32 s{sT0}, s3, 9
s_add_u32 s{sT0}, s{sT0}, {SCR}
v_lshl_add_u32 v{vAGW}, v1, 3, s{sT0}
v_lshlrev_b32 v{GOF+1}, 3, v{GOF}
v_add_u32 v{vAGR}, {SCR}, v{GOF+1}
s_mul_i32 s{sT0}, s3, 2560
s_add_u32 s{sT0}, s{sT0}, {SCR+4096}
v_mul_u32_u24 v{GOF+1}, 80, v{GOF}
v_lshl_add_u32 v{GOF+1}, v{GOF+2}, 5, v{GOF+1}
v_add_u32 v{vTW}, s{sT0}, v{GOF+1}
v_lshrrev_b32 v{GOF+1}, 4, v1
v_bfe_u32 v{GOF+4}, v1, 2, 2
v_lshl_add_u32 v{GOF+1}, v{GOF+1}, 3, v{GOF+4}
v_mul_u32_u24 v{GOF+1}, 80, v{GOF+1}
v_lshl_add_u32 v{GOF+1}, v{GOF+3}, 3, v{GOF+1}
v_add_u32 v{vTR}, s{sT0}, v{GOF+1}
'''
    def setup_scc(a):
        a.e(f'''s_add_u32 s{SA1}, s{P_WS}, s15
s_addc_u32 s{SA1+1}, s{P_WS+1}, 0
s_add_u32 s{SA2}, s{SA1}, {AGS}
s_addc_u32 s{SA2+1}, s{SA1+1}, 0''')
    def setup_scc2(a):
        a.e(f'''s_cmp_eq_u32 s{sT1}, 1
s_cselect_b32 s{sT0}, 8192, s{sOOBK}
s_cmp_eq_u32 s3, 0
s_cselect_b32 s{sT0}, s15, s{sT0}
s_cselect_b32 s{sZM}, -1, 0''')
    def setup_scc3(a):
        a.e(f'''s_cmp_eq_u32 s{sSL}, 10
s_cselect_b32 s{SH+2}, 0, {WS_BYTES}
s_cselect_b32 s{sT0}, s{sOOBK}, s{sT0}''')
    setup1b = f'''s_mov_b32 s{SA1+2}, {AGS}
s_mov_b32 s{SA1+3}, 0x00020000
s_mov_b32 s{SA2+2}, {AGS}
s_mov_b32 s{SA2+3}, 0x00020000
s_lshl_b32 s15, s{sRB}, 9
s_or_b32 s{sT1}, s15, s3
s_mov_b32 s{sOOBK}, 0x100000
'''
    setup2 = f'''v_lshlrev_b32 v{GOF+1}, 4, v{GOF}
v_add_u32 v{vPUB}, s{sT0}, v{GOF+1}
s_sub_u32 s15, s15, 512
v_add_u32 v{EXP}, 8192, v{GOF+1}
v_add_u32 v{GOF+1}, s15, v{GOF+1}
v_lshlrev_b32 v{GOF+2}, 9, v{GOF+2}
v_sub_u32 v{GOF}, v{GOF+1}, v{GOF+2}
s_lshr_b32 s{sOOBK}, s3, 1
s_and_b32 s{sOOBK}, s{sOOBK}, s2
s_lshl_b32 s{sOOBK}, s{sOOBK}, 30
'''
    for j in range(1, 8): setup2 += f'v_subrev_u32 v{GOF+j}, {1024*j}, v{GOF}\n'
    for j in range(8): setup2 += f'v_min_u32 v{GOF+j}, v{GOF+j}, v{EXP}\n'
    def mask_items():
        for j in range(1, 8):
            m = sMASK + 2 * (j - 1)
            yield ('raw', lambda a, j=j, m=m: a.e(f's_cmp_eq_u32 s3, {j>>1}\ns_cselect_b32 s{m+(j&1)}, -1, 0\ns_mov_b32 s{m+1-(j&1)}, 0'), 3)
    def f1_pub(SPR):
        vF1P = SPR + 2
        yield ('raw', lambda a: a.e(f's_lshl_b32 s{sT0}, s2, 4\ns_add_u32 s{sT0}, s{sT0}, {F1_OFF}\ns_cmp_lg_u32 s3, 0\ns_cselect_b32 s{sT0}, {OOB}, s{sT0}\nv_mov_b32 v{vF1P}, {OOB}\nv_writelane_b32 v{vF1P}, s{sT0}, 0'), 6)
        yield ('raw', lambda a: a.e(f's_or_b32 s{sT0}, s2, s3\ns_cselect_b32 s{sT0}, {OOB}, {NONCE_OFF}\nv_mov_b32 v{SPR+4}, {OOB}\nv_writelane_b32 v{SPR+4}, s{sT0}, 0'), 4)
        yield ('s', f's_lshl_b32 s{sT0}, s3, 10')
        yield ('s', f's_add_u32 s{sT0}, s{sT0}, {F1_OFF}')
        yield ('v', f'v_add_u32 v{SPR+1}, s{sT0}, v{vL16}')
    def f1_chk(SPR):
        yield ('vm', poll_load(SPR, SPR + 1, 0), 'f1')
        yield ('after', cfg.get('polld', 28), [('req', 'f1pub'), ('wv', 'f1'), sitem('f1w'), ('raw', poll_check(SPR, SPR + 1, 0, None), 4),
               ('onbar', [('vm', f'buffer_store_dword v{vT}, v{SPR+4}, s[{SW}:{SW+3}], 0 offen sc1', None), ('call', lambda: st.__setitem__('f1ok', True)), sitem('f1ok')])])

    def build(units):
        stages = []; groups = []
        for ui, (kind, acc, soff) in enumerate(units):
            ns = 5 if kind == 'D' else 10
            for s in range(ns):
                n = len(stages); stages.append((kind, soff))
                for g in range(4): groups.append((ui, kind, acc, n, s, g))
        return stages, groups
    bars = list(range(0, 25, 2))
    dmaq = []
    def reads(G, groups):
        ui, kind, acc, n, s, g = groups[G]
        slot = n % NS; win = slot // 4; base = (slot % 4) * 16384
        buf = WB + 16 * (G % 3)
        out = []
        if kind == 'Q':
            for m in range(4):
                jh, mat = m >> 1, m & 1
                out.append([f'ds_read_b64_tr_b16 {R(buf+4*m+2*e,2)}, v{vRQ[jh][win]} offset:{base+g*4096+mat*2048+e*512}' for e in range(2)])
        else:
            for m in range(4):
                ks, mat = 2 * g + (m >> 1), m & 1
                out.append([f'ds_read_b128 {R(buf+4*m,4)}, v{vRD[ks&3]} offset:{base+(ks>>2)*8192+mat*4096}'])
        return out, (win if kind == 'D' else None)
    def barrier_for(n, stages, sch):
        nxt = min([b for b in bars if b > n] + [len(stages)])
        a.wait(vm=stage_last[min(nxt, len(stages)) - 1])
        a.e('s_barrier')
        sch.on_barrier()
        while st['issued'] < len(stages) and st['issued'] <= n + NS - 2:
            m = st['issued']; dmaq.extend(dma_items(m, *stages[m])); st['issued'] += 1
    def set_dwin(w):
        if w is not None and w != st['dwin']:
            d = (w - st['dwin']) * 65536
            for r in vRD: a.e(f'v_add_u32 v{r}, {d & 0xffffffff}, v{r}')
            st['dwin'] = w

    class P2: pass
    def p2_load(p, kind, i, j, reg):
        late = i >= 8
        if kind == 'W': off, sb, sreg = ((i - 8) * 20480, sWL, sP1) if late else (i * 40960, sW2, sP1)
        else: off, sb, sreg = ((i - 8) * 16384, sHL, sP0) if late else (i * 32768, sH2[int(kind[1])], sP0)
        key = (kind, i, j // 4)
        assert st.get('f1ok')
        if kind != 'W': assert st.get('lvl', 0) >= (1 if i < 2 else 2 if i < 8 else 3), (kind, i)
        if p.cur.get(sreg) != key:
            a.e(f's_add_u32 s{sreg}, s{sb}, {off + (j // 4) * 4096}')
            if i == 7: a.e(f's_add_u32 s{sreg}, s{sreg}, s{sOOBK}')
            p.cur[sreg] = key
        p.buf[kind, i, j] = reg
        p.id[kind, i, j] = a.vm(f'buffer_load_dwordx4 {R(reg,4)}, v{vL16}, s[{SW}:{SW+3}], s{sreg} offen offset:{1024*(j%4)} sc1')

    def emit_groups(stages, groups, sch, fillers, xq, pre_load, pool, on_unit):
        lastu = groups[-1][0]
        freed = set()
        for G in range(len(groups)):
            ui, kind, acc, n, s, g = groups[G]
            if s == 0 and g == 0:
                on_unit(ui)
                if ui in fillers: sch.add(fillers[ui])
                stamp(a, f'U{ui+1}')
            if cfg.get('gst') and g == 0 and s > 0 and str(ui + 1) in str(cfg['gst']): stamp(a, f'u{ui+1}s{s}')
            nx = G + 2
            rd = None
            if nx < len(groups): rd, win = reads(nx, groups)
            buf = WB + 16 * (G % 3)
            for m in range(4):
                if kind == 'Q': ks = 4 * s + g; d = acc + 16 * m
                else: ks = 8 * s + 2 * g + (m >> 1); d = acc + 16 * (m & 1)
                a.wait(lg=st['rid'][G] if m == 0 else None, vm=(xid[ks] if ui == 0 else None))
                c = '0' if ks == 0 else V(d, 16)
                if kind == 'Q': a.e(f'v_mfma_f32_32x32x16_bf16 {V(d,16)}, {R(buf+4*m,4)}, {R(XF+4*ks,4)}, {c}')
                else: a.e(f'v_mfma_f32_32x32x16_bf16 {V(d,16)}, {R(XF+4*ks,4)}, {R(buf+4*m,4)}, {c}')
                n0 = len(a.lines); budget = 0
                if m == 0 and rd and groups[nx][5] == 0 and groups[nx][3] in bars:
                    barrier_for(groups[nx][3], stages, sch); budget -= 2
                if rd:
                    for t_ in rd[m]: st['rid'][nx] = a.lds(t_)
                if ui == lastu and ks >= 1 and ks - 1 not in freed:
                    freed.add(ks - 1); pool.append(XF + 4 * (ks - 1))
                dma_ok = dmaq and not (dmaq[0].stage == 8 and not st.get('rtread'))
                lead = (dmaq[0].stage - n) if dmaq else 99
                did = False
                if m in (1, 3):
                    if xq: xq.pop(0)(); did = True
                    elif dma_ok and (m == 3 or lead <= cfg.get('lead2', 5)): dmaq.pop(0)(); did = True
                    elif not sch.head_vm() and not st.get('fvm'): did = pre_load()
                elif m == 2:
                    if dma_ok and lead <= cfg.get('minlead', 3): dmaq.pop(0)(); did = True
                if m == 3 and G + 3 < len(groups): set_dwin(reads(G + 3, groups)[1])
                v0_ = a.vm_n
                sch.fill(cfg['slots'] - (len(a.lines) - n0) - (1 if (m == 3 or (ui == 0 and m == 1)) else 0), vm_ok=not did)
                st['fvm'] = a.vm_n > v0_

    unitsA = [('D', ACC_D, sDOFF1), ('Q', ACC_A, sQOFF1), ('Q', ACC_B, sQOFF2)]
    unitsB = [('D', ACC_D, sDOFF1), ('D', ACC_A, sDOFF2), ('Q', ACC_B, sQOFF1)]
    a.e(f's_cmp_ge_u32 s{sSL}, 11\ns_cbranch_scc1 L_typeB')
    st0 = copy.deepcopy(st); as0 = a.state()
    for typ, units in (('A', unitsA), ('B', unitsB)):
        if typ == 'B':
            a.label('L_typeB')
            a.restore(as0); st.clear(); st.update(copy.deepcopy(st0)); stage_last.clear(); xid.clear(); K.clear(); dum[0] = DUM
        stages, groups = build(units)
        xq1 = list(xq)
        cur.update(units=units, stages=stages, xq=xq1, typ=typ)
        for stp in order: steps[stp]()
        sch = Sched(a)
        p = P2(); p.buf = {}; p.id = {}; p.cur = {}
        SPR = TMP + 30
        FL = vD[2]
        H = lambda ps, i: [(f'H{ps}', i, j) for j in range(4)]
        Wf = lambda i: [('W', i, j) for j in range(5)]
        HR = lambda ps, ii: [(f'H{ps}', i, j) for j in range(4) for i in ii]
        pool = [256 + 208 + 4 * k for k in range(12)]
        poolB = []
        lq = H(0, 0) + H(0, 1) + H(1, 0) + H(1, 1) + sum([Wf(i) for i in range(8)], []) + sum([H(0, i) for i in range(2, 5)], []) + HR(0, (5, 6, 7)) + sum([Wf(i) for i in range(8, 16)], [])[:cfg.get('wlpre', 10)]
        def lv(it): return 0 if it[0] == 'W' else (1 if it[1] < 2 else 2 if it[1] < 8 else 3)
        def pre_load():
            if not st.get('f1ok'): return False
            for k, it in enumerate(lq):
                if lv(it) > st.get('lvl', 0): continue
                pl = poolB if (it[0] == 'H0' and poolB) else pool
                if not pl: continue
                lq.pop(k); p2_load(p, it[0], it[1], it[2], pl.pop(0)); return True
            return False
        polld = cfg.get('polld', 20); ackd = cfg.get('ackd', 28)
        assert all(order.index(z) < order.index('su') for z in ('x', 'ra', 'rl', 'rr', 'par', 'ln') + tuple(z for z in ('t0', 't1', 't2') if z in order))
        u1 = chain(rt_stores(lambda: len(xq1) <= cfg.get('stx', 0), SPR))
        spare1, spare2 = vD[0], vD[1]
        chk_d = ('call', lambda: (_ for _ in ()).throw(AssertionError('D dma pending')) if any(stages[th.stage][0] == 'D' for th in dmaq) or any(k == 'D' for k, _ in stages[st['issued']:]) else None)
        BQ = list(range(28, 48, 4))
        def _fs():
            assert st.get('f1ok'); pool.extend(range(48, 96, 4))
        free_ssm = ('call', _fs)
        EAr, EAo, EAw, vXP, vXL = 15, 16, 17, 18, 7
        def epbase():
            t_ = 116
            yield ('raw', lambda a: a.srd(SXX, P_X, 2621440), 4)
            yield ('raw', lambda a: a.srd(SDK, P_DSK, 1280), 4)
            yield from items(f'''v_lshrrev_b32 v{t_}, 2, v1
v_and_b32 v{t_+1}, 3, v1
v_lshlrev_b32 v{t_+2}, 3, v{t_+1}
v_mul_u32_u24 v{t_+3}, 1280, v{t_}
v_add_u32 v{t_+3}, v{t_+3}, v{t_+2}
v_lshlrev_b32 v{t_+4}, 3, v{t_}''')
            adr = list(items(f'''v_lshlrev_b32 v{EAo}, 1, v{t_+3}
v_bfe_u32 v{t_+5}, v1, 3, 2
v_xor_b32 v{t_+5}, v{t_+5}, v{t_+1}
v_mul_u32_u24 v{EAr}, 320, v{t_}
v_lshl_add_u32 v{EAr}, v{t_+5}, 4, v{EAr}
s_mul_i32 s{sT1}, s3, 5120
v_add_u32 v{EAr}, s{sT1}, v{EAr}
v_and_b32 v{EAw}, 15, v1
v_mul_u32_u24 v{EAw}, 320, v{EAw}
v_lshrrev_b32 v{t_+5}, 4, v1
v_bfe_u32 v{t_+8}, v1, 1, 2
v_xor_b32 v{t_+5}, v{t_+5}, v{t_+8}
v_lshl_add_u32 v{EAw}, v{t_+5}, 4, v{EAw}
s_mul_i32 s{sT0}, s3, 20480
v_add_u32 v{EAw}, s{sT0}, v{EAw}
s_lshl_b32 s{sT0}, s2, 7
s_lshl_b32 s{sT1}, s3, 2
s_add_u32 s{sT0}, s{sT0}, s{sT1}
s_add_u32 s{sT0}, s{sT0}, {FX_OFF}
v_mov_b32 v{vXP}, {OOB}
v_writelane_b32 v{vXP}, s{sT0}, 0
s_xor_b32 s{sZM}, s{sT0}, 128'''))
            lds_ = [('vm', f'buffer_load_dwordx2 {P(t_+6)}, v{t_+4}, s[{SW}:{SW+3}], s{sSTO} offen sc1', 'bs')]
            for i in range(5):
                lds_.append(('vm', f'buffer_load_dwordx2 {P(96+4*i)}, v{t_+3}, s[{SXX}:{SXX+3}], s{sXO2} offen offset:{32*i}', f'bx{i}'))
                lds_.append(('vm', f'buffer_load_dwordx2 {P(98+4*i)}, v{t_+2}, s[{SDK}:{SDK+3}], s{sDKO} offen offset:{32*i}', f'bd{i}'))
            for k, it in enumerate(lds_):
                yield it
                yield from adr[2 * k:2 * k + 2]
            yield ('delay', cfg.get('bdelay', 14))
            yield sitem('bw0')
            yield ('wv', 'bd0')
            yield sitem('bw1')
            yield ('v', f'v_mul_f32 v{t_+6}, v{t_+6}, v{t_+7}')
            for i in range(5):
                b = BQ[i]; x = 96 + 4 * i
                yield ('wv', f'bd{i}')
                for k in range(4):
                    un = (lambda d, s_: f'v_and_b32 v{d}, 0xffff0000, v{s_}') if k & 1 else (lambda d, s_: f'v_lshlrev_b32 v{d}, 16, v{s_}')
                    yield ('v', un(b + k, x + (k >> 1)))
                    yield ('v', un(t_, x + 2 + (k >> 1)))
                    yield ('v', f'v_fma_f32 v{t_+1}, v{b+k}, v{t_+7}, v{t_+6}')
                    yield ('v', f'v_fmac_f32 v{b+k}, v{t_+1}, v{t_}')
            yield sitem('bend')
            yield ('call', lambda: st.__setitem__('base', True))
        def lchk2(level, d):
            yield ('vm', poll_load(FL, vFL2, 128 * level), f'l{level}')
            yield ('after', d, [sitem(f'l{level}a'), ('wv', f'l{level}'), sitem(f'l{level}w'), ('raw', poll_check(FL, vFL2, 128 * level, sNEEDA if level == 1 else None), 4), sitem(f'l{level}ok'),
                   ('call', lambda: st.__setitem__('lvl', level))])
        if typ == 'A':
            G = [64, 68, 72, 76, 44, 48, 52, 56]
            u2 = chain([('delay', 3)], f_agg(ACC_D, C1, 0, SA1, 'a1'), [chk_d], f_coef(ACC_D, C1, spare1), f1_chk(SPR),
                       [('delay', cfg.get('gdelay0', 2))], f_gather_issue(G, SA1, 'a1'), [('delay', cfg.get('gdelay', 16))],
                       f_carry(G, ACC_D, C1, spare1, SA1, sD1, 'a1'), [('mark', 'ssm'), free_ssm], f_publish(1, ackd),
                       [('when', lambda: sch.keys.get('pub1'), cfg.get('visd', 40), list(lchk2(1, polld)))])
            u3 = chain([('delay', 3)], f_epiq(ACC_A, 40), f_publish(2, ackd), epbase())
            tailg = chain(f_epiq(ACC_B, 72))
        else:
            G = [ACC_A + 32 + 4 * j for j in range(8)]; G2 = [ACC_D + 4 * j for j in range(8)]
            u2 = chain([('delay', 3)], f_agg(ACC_D, C1, 0, SA1, 'a1'), f1_chk(SPR), [chk_d], f_coef(ACC_D, C1, spare1))
            ag2 = f_agg(ACC_A, C2, 2048, SA2, 'a2'); cf2 = f_coef(ACC_A, C2, spare2)
            u3 = chain([('delay', 3)], f_gather_issue(G, SA1, 'a1', ag2), ag2,
                       f_carry(G, ACC_D, C1, spare1, SA1, sD1, 'a1'), f_gather_issue(G2, SA2, 'a2', cf2), cf2, [('delay', 12)],
                       f_carry(G2, ACC_A, C2, spare2, SA2, sD2, 'a2'), [('mark', 'ssm'), free_ssm], f_publish(2, cfg.get('ackb', 24)))
            tailg = chain(lchk2(1, 20), f_epiq(ACC_B, 40), [('flush',)], f_publish(3, 1000), epbase(), [('flush',), ('call', lambda: [pre_load() for _ in range(cfg.get('bpre', 16))])])
        def on_unit(ui):
            if ui == 2:
                assert 'rs' in order or sch.keys.get('rtst')
        barrier_for(0, stages, sch)
        for G0 in (0, 1):
            rd, win = reads(G0, groups)
            for lst in rd:
                for t_ in lst: st['rid'][G0] = a.lds(t_)
        emit_groups(stages, groups, sch, {0: u1, 1: u2, 2: u3}, xq1, pre_load, pool, on_unit)
        assert not dmaq
        stamp(a, 'T')
        pool += [XF + 156] + [WB + 4 * k for k in range(12)]
        sch.drain(every=(cfg.get('yevery', 24), pre_load))
        stamp(a, 'T2')
        a.e('s_nop 7\ns_nop 3')
        pid = {}
        tl_ = list(tailg)
        kp = (len(tl_) * cfg.get('p2pos', 7)) // 8 if typ == 'A' else len(tl_)
        def p2i():
            while sch.timers: sch.tick(True)
            pid[2] = a.vm(poll_load(FL, vFL2, 256))
        sch.add(chain(tl_[:kp], [('call', p2i)], tl_[kp:])); sch.drain(every=(cfg.get('yevery', 24), pre_load))
        while sch.timers: sch.tick(True)
        assert st.get('lvl') == 1
        stamp(a, 'Y')
        ACC = (96, 176)
        FL3 = FL
        assert st.get('base')
        a.srd(SO, P_OUT, 5242880)
        a.e(f'v_mov_b32 v{vXL}, s{sZM}')
        nb_ = lambda ps, i: (ps, [(i, rt) for rt in range(4)])
        rb_ = lambda ps, ii: [(ps, [(i, rt) for i in ii]) for rt in range(4)]
        blocks = [nb_(0, 0), nb_(0, 1), nb_(1, 0), nb_(1, 1)] + [nb_(0, i) for i in range(2, 5)] + rb_(0, (5, 6, 7)) + [nb_(1, i) for i in range(2, 13)] + rb_(1, (13, 14, 15))
        pd = cfg.get('pd', 10)
        l_a = [x for x in lq if lv(x) <= 1 and x[1] < 8]; l_b = [x for x in lq if lv(x) == 2]
        rest = sum([H(1, i) for i in range(2, 8)], [])
        wl = [x for x in sum([Wf(i) for i in range(8, 16)], []) if x not in p.id]
        n2 = cfg.get('w2', 8)
        mid = rest[:8]; rest = rest[8:]
        w0 = wl[:n2]; wl = wl[n2:]
        nlate = cfg.get('wlate', 10)
        wz = wl[len(wl) - nlate:]; wl = wl[:len(wl) - nlate]
        while rest or wl:
            mid += rest[:4] + wl[:3]; rest = rest[4:]; wl = wl[3:]
        hl = sum([H(1, i) for i in range(8, 13)], [])
        lq = l_a + w0 + [('Pc', 2)] + l_b + mid[:len(mid) - pd] + [('Pi', 3)] + mid[len(mid) - pd:] + [('Pc', 3)] \
            + hl[:12] + wz[:5] + hl[12:16] + wz[5:] + hl[16:] + HR(1, (13, 14, 15))
        s2 = sch
        if typ == 'A': s2.add(f_publish(3, cfg.get('pubat', 60)))
        BX = {'b': BQ, 'p': list(range(ACC[0], ACC[0] + 20, 4))}
        def next_load():
            if not lq: return False
            it = lq[0]
            if it[0] in ('H0', 'H1', 'W'):
                pl = poolB if (it[0] == 'H0' and poolB) else pool
                if not pl: return False
                if a.vm_n - a.vm_done >= cfg.get('maxout', 40): return False
                lq.pop(0); p2_load(p, it[0], it[1], it[2], pl.pop(0)); return True
            if it[0] == 'Pi':
                lq.pop(0); pid[it[1]] = a.vm(poll_load(FL3, vFL2, 128 * it[1])); return True
            if it[0] == 'Pc':
                lq.pop(0)
                assert sch.keys.get('pub2') and (it[1] == 2 or sch.keys.get('pub3'))
                a.wait(vm=pid[it[1]]); stamp(a, f'l{it[1]}w')
                poll_check(FL3, vFL2, 128 * it[1], None)(a)
                if it[1] == 2: a.e('s_barrier')
                stamp(a, f'l{it[1]}ok'); st['lvl'] = it[1]
                for _ in range(cfg.get('burst', 4)):
                    if lq and lq[0][0] not in ('Pc', 'B'): next_load()
                return True
        def red_writes(ps, rt):
            yield ('delay', 4)
            for ct in range(5):
                yield ('lds', f'ds_write_b128 v{EAw}, {V(ACC[ps]+4*(rt*5+ct),4)} offset:{rt*5120+ct*64}', f'rw{ps}')
        def red0_rest():
            A0 = ACC[0]
            yield ('delay', 3)
            yield ('wl', 'rw0')
            yield ('forcebar',)
            for i in range(5):
                for q in range(4):
                    yield ('lds', f'ds_read_b128 {V(A0+16*i+4*q,4)}, v{EAr} offset:{q*20480+64*i}', f'rr{i}')
            yield ('delay', 2)
            for i in range(5):
                b = A0 + 16 * i
                yield ('wl', f'rr{i}')
                for k in range(4): yield ('v', f'v_add_f32 v{b+k}, v{b+k}, v{b+4+k}')
                for k in range(4): yield ('v', f'v_add_f32 v{b+8+k}, v{b+8+k}, v{b+12+k}')
                for k in range(4): yield ('v', f'v_add_f32 v{b+k}, v{b+k}, v{b+8+k}')
                if i == 4: yield ('s', f's_add_u32 s{sXS}, s{sXS}, 4096')
                yield ('vm', f'buffer_store_dwordx4 {V(b,4)}, v{vL16}, s[{SW}:{SW+3}], s{sXS} offen offset:{1024*(i%4)} sc1', 'xst')
            yield ('forcebar',)
            yield sitem('xst')
            yield ('call', lambda: (st.__setitem__('red0', True), pool.extend(range(A0 + 20, A0 + 80, 4))))
            yield ('after', cfg.get('xdelay', 70), [('wv', 'xst'), ('vm', f'buffer_store_dword v{vT}, v{vXP}, s[{SF}:{SF+3}], 0 offen sc1', None), sitem('xpub'), ('mark', 'xpub')])
        def xch_load():
            yield ('flush',)
            yield ('req', 'xpub')
            yield ('wv', 'xp')
            yield sitem('xw')
            yield ('raw', poll_check(FL3, vXL, 0, None), 4)
            yield sitem('xok')
            for i in range(5):
                if i == 4: yield ('s', f's_add_u32 s{sXL}, s{sXL}, 4096')
                yield ('vm', f'buffer_load_dwordx4 {V(BX["p"][i],4)}, v{vL16}, s[{SW}:{SW+3}], s{sXL} offen offset:{1024*(i%4)} sc1', f'xl{i}')
        for _ in range(cfg.get('ypre', 2)): next_load()
        cnt = 0; ratio = cfg.get('ratio', 4)
        wuse = {i: 0 for i in range(16)}
        for bn, (ps, blk) in enumerate(blocks):
            need = [(f'H{ps}', i, rt) for i, rt in blk] + [('W', i, j) for i, rt in blk for j in range(5)]
            guard = 0
            while any(k not in p.id for k in need):
                if not next_load():
                    a.wait(vm=a.vm_done + 4)
                guard += 1; assert guard < 2000, (bn, lq[:3], len(pool))
            if bn in (0, 4, 11, 17, 22): stamp(a, f'b{bn}')
            if bn == 22: assert st.get('red0')
            if bn == cfg.get('xpat', 21):
                assert st['lvl'] == 3
                sch.keys['xp'] = a.vm(poll_load(FL3, vXL, 0))
            for i, rt in blk:
                a.wait(vm=max(p.id[k] for k in [(f'H{ps}', i, rt)] + [('W', i, j) for j in range(5)]))
                for ct in range(5):
                    d = ACC[ps] + 4 * (rt * 5 + ct)
                    c = '0' if i == 0 else V(d, 4)
                    a.e(f'v_mfma_f32_16x16x32_bf16 {V(d,4)}, {R(p.buf["W",i,ct],4)}, {R(p.buf[f"H{ps}",i,rt],4)}, {c}')
                    cnt += 1
                    did = next_load() if cnt % ratio == 0 else False
                    s2.fill(0 if did else cfg.get('b2', 2))
                r = p.buf[f'H{ps}', i, rt]
                pool.append(r)
                wuse[i] += 1
                if wuse[i] == (8 if i < 8 else 4):
                    for ct in range(5): pool.append(p.buf['W', i, ct])
            if len(blk) == 3:
                s2.add(red_writes(ps, blk[0][1]))
                if bn == 10: s2.add(red0_rest())
            if bn == cfg.get('xlat', 23): s2.add(xch_load())
        assert not lq
        stamp(a, 'mfend')
        a.e('s_nop 7')
        s2.tick(True); s2.drain()
        assert st.get('base') and not s2.timers and not s2.barq
        a.wait_all(vm=False)
        a.e('s_barrier')
        A1 = ACC[1]
        rd = {}
        for i in range(5):
            for q in range(4):
                rd[i, q] = a.lds(f'ds_read_b128 {V(A1+16*i+4*q,4)}, v{EAr} offset:{q*20480+64*i}')
        for i in range(5):
            a.wait(vm=sch.keys[f'xl{i}'])
            B = BX['b'][i]; X = BX['p'][i]
            for k in (0, 2): a.e(f'v_pk_add_f32 {P(B+k)}, {P(B+k)}, {P(X+k)}')
        for i in range(5):
            a.wait(lg=rd[i, 3])
            b = A1 + 16 * i; B = BX['b'][i]
            for k in (0, 2):
                a.e(f'v_pk_add_f32 {P(b+k)}, {P(b+k)}, {P(b+4+k)}\nv_pk_add_f32 {P(b+8+k)}, {P(b+8+k)}, {P(b+12+k)}')
            for k in (0, 2): a.e(f'v_pk_add_f32 {P(B+k)}, {P(B+k)}, {P(b+k)}')
            for k in (0, 2): a.e(f'v_pk_add_f32 {P(B+k)}, {P(B+k)}, {P(b+8+k)}')
            a.vm(f'buffer_store_dwordx4 {V(B,4)}, v{EAo}, s[{SO}:{SO+3}], s{sOO} offen offset:{64*i}')
        stamp(a, 'st')
        stamp_out(a)
        a.e('s_endpgm')
    for s in a.cold: a.e(s)
    a.label('L_end')
    a.e('s_endpgm')
    return a

HEADER = open('parallel_sum__ssm_conv_s5__glu_gated_glu__prompt.s.ref').read().split('; Override launch')[0]
def assemble(a):
    out = HEADER + '; @launch grid=(256,1,1) block=(256,1,1) lds=163840\n'
    out += '.amdgcn_target "amdgcn-amd-amdhsa--gfx950"\n.text\n'
    errs = check_hazards(a.lines)
    for e in errs: print('HAZARD', e)
    assert not errs
    out += a.text()
    out += f'''.section .rodata,"a"
.p2align 6
.amdhsa_kernel {KNAME}
  .amdhsa_next_free_vgpr 512
  .amdhsa_next_free_sgpr 102
  .amdhsa_accum_offset 256
  .amdhsa_group_segment_fixed_size 0
  .amdhsa_kernarg_size 128
  .amdhsa_user_sgpr_count 2
  .amdhsa_user_sgpr_kernarg_segment_ptr 1
  .amdhsa_system_sgpr_workgroup_id_x 1
.end_amdhsa_kernel
'''
    return out
if __name__ == '__main__':
    cfg = dict(k1map='R', slots=6, tmall=1)
    for kv in sys.argv[2:]:
        k, v = kv.split('=')
        if k == 'stamp': STAMP[0] = True
        elif k == 'sleep': SLEEP[0] = int(v)
        elif k == 'only': STAMP[0] = True; ONLY[0] = v.split('.'); cfg['only'] = v
        else: cfg[k] = int(v) if v.isdigit() else v
    txt = assemble(kernel(cfg))
    if STAMP[0]: txt = '; STAMPS ' + ','.join(SNAMES) + '\n; CFG ' + str(cfg) + '\n' + txt
    open(sys.argv[1], 'w').write(txt)
```

```python
import sys, copy
from asmlib import *

KNAME = 'parallel_sum__ssm_conv_s5__glu_gated_glu__prompt_kernel'
XNF_OFF = 0
HF_OFF = 4 << 20
W2F_OFF = 20 << 20
AGG_OFF = 24 << 20
NONCE_OFF = 25 << 20
FLG_OFF = (25 << 20) + 131072
DIAG_OFF = 26 << 20
WS_BYTES = 32 << 20
NKS = 94
GOLD = 0x9e3779b9
P_X, P_LRE, P_LIM, P_BRE, P_BIM, P_CRE, P_CIM, P_LDT, P_DSK, P_BX, P_WG, P_WU, P_WD, P_OUT, P_DBG, P_WS = [16 + 2 * i for i in range(16)]
NS = 9
SCR = NS * 16384
LOG2E = 0x3fb8aa3b
NLOG2E = 0xbfb8aa3b
OOB = 0x40000000
STAT_OFF = (25 << 20) + 4096
XCH_OFF = 27 << 20
F1_OFF, FX_OFF = 131072, 163840
SW, SG, SU, SB, SA1, SA2, SH, SF = 48, 52, 56, 60, 64, 68, 72, 76
SP, SR = SA1, SA2
SO, SXX, SDK = SG, SA1, SB
sRB, sSL, sD1, sD2 = 4, 5, 6, 7
sRBP, sNB = 8, 9
sDOFF1, sDOFF2, sQOFF1, sQOFF2 = 10, 11, 12, 13
sHB = 14
sT0, sT1 = 80, 81
sM0B, sXO = 82, 83
sMASK = 84
sCNT, sOOBK = 98, 99
sH2 = (18, 19); sW2, sOO = 20, 21
sXS, sXL = 22, 23
sSTO, sDKO, sXO2 = 24, 25, 26
sHL, sWL = 27, 30
sZM = 31
AGS = 8704
sNEEDA = 28
sTP = 34
sP0, sP1 = 44, 45
vD = [3, 4, 5, 6]; vQ = [7, 8]
vRQ = [[9, 10, 11], [12, 13, 14]]
vRD = [15, 16, 17, 18]
vHG, vL16, vAGW, vAGR, vPUB, vTW, vTR, vT = 19, 20, 21, 22, 23, 24, 25, 26
vFP = 27
C1, C2 = 28, 44
TMP = 60
GOF = TMP + 20; EXP = TMP + 28
ACC_D, ACC_A, ACC_B = 96, 128, 192
XF = 256; WB = 256 + 160
cLr, cLi, cnLi, cP, cQn, cnP, c16r, c16i, c128r, c128i, c256r, c256i, cqr, cqi, cPr, cPi = range(16)

STAMP = [False]
SNAMES = []
ONLY = [None]
def stamp(a, nm, real=False):
    if not STAMP[0]: return
    if ONLY[0] is not None:
        if nm not in ONLY[0] and nm not in ('rt0', 'rt1', 't0', 'end'): return
        if nm not in ('t0', 'end'): real = True
    if nm not in SNAMES: SNAMES.append(nm)
    i = SNAMES.index(nm); assert i < 64
    a.e(f'{"s_memrealtime" if real else "s_memtime"} s[100:101]')
    a.wait_all(vm=False)
    a.e(f'v_writelane_b32 v0, s100, {i}')
def stamp_out(a):
    if not STAMP[0]: return
    a.e('s_waitcnt vmcnt(0)')
    stamp(a, 'end'); stamp(a, 'rt1', True)
    a.e(f'''s_lshl_b32 s100, s2, 2
s_add_u32 s100, s100, s3
s_lshl_b32 s100, s100, 8
s_add_u32 s100, s100, {DIAG_OFF}
v_lshlrev_b32 v4, 2, v1
buffer_store_dword v0, v4, s[{SW}:{SW+3}], s100 offen''')
def sitem(nm): return ('raw', lambda a: stamp(a, nm), 0)

def items(text, kind=None):
    for ln in text.strip().split('\n'):
        ln = ln.strip()
        if not ln: continue
        op = ln.split()[0]
        if op in TRANS: yield ('t', ln)
        elif op.startswith('s_'): yield ('s', ln)
        else: yield ('v', ln)
def chain(*gens):
    for g in gens: yield from g

def bfround_t(d, s): return f'v_cvt_pk_bf16_f32 v{d}, v{s}, v{s}\nv_lshlrev_b32 v{d}, 16, v{d}\n'
def cmul_sq(dr, di, sr, si, t):
    return f'v_mul_f32 v{t}, v{si}, v{si}\nv_mul_f32 v{di}, v{sr}, v{si}\nv_fma_f32 v{dr}, v{sr}, v{sr}, -v{t}\nv_add_f32 v{di}, v{di}, v{di}\n'
def ssm_consts(C, l0):
    t = TMP + 8
    s = f'''v_lshlrev_b32 v{l0+2}, 16, v{l0+2}
v_mul_f32 v{l0+2}, {LOG2E}, v{l0+2}
v_exp_f32 v{l0+2}, v{l0+2}
v_lshlrev_b32 v{l0}, 16, v{l0}
v_lshlrev_b32 v{l0+1}, 16, v{l0+1}
''' + bfround_t(l0 + 2, l0 + 2) + f'''v_mul_f32 v{t}, v{l0+2}, v{l0}
v_mul_f32 v{t+1}, v{l0+2}, v{l0+1}
v_mul_f32 v{t}, {LOG2E}, v{t}
v_mul_f32 v{t+1}, 0.15915494, v{t+1}
v_exp_f32 v{t}, v{t}
v_fract_f32 v{t+1}, v{t+1}
v_cos_f32 v{t+2}, v{t+1}
v_sin_f32 v{t+3}, v{t+1}
v_mul_f32 v{t+4}, v{l0}, v{l0}
v_fmac_f32 v{t+4}, v{l0+1}, v{l0+1}
v_mul_f32 v{C+cLr}, v{t}, v{t+2}
v_mul_f32 v{C+cLi}, v{t}, v{t+3}
v_rcp_f32 v{t+4}, v{t+4}
v_sub_f32 v{C+cnLi}, 0, v{C+cLi}
v_add_f32 v{t+5}, -1.0, v{C+cLr}
v_add_f32 v{t+4}, v{t+4}, v{t+4}
v_mul_f32 v{t+6}, v{t+5}, v{l0}
v_fmac_f32 v{t+6}, v{C+cLi}, v{l0+1}
v_mul_f32 v{t+7}, v{t+5}, v{l0+1}
v_fmac_f32 v{t+7}, v{C+cnLi}, v{l0}
v_mul_f32 v{C+cP}, v{t+6}, v{t+4}
v_mul_f32 v{C+cQn}, v{t+7}, v{t+4}
v_sub_f32 v{C+cnP}, 0, v{C+cP}
'''
    s += cmul_sq(t, t + 1, C + cLr, C + cLi, t + 8) + cmul_sq(t + 2, t + 3, t, t + 1, t + 8) + cmul_sq(t, t + 1, t + 2, t + 3, t + 8)
    s += cmul_sq(C + c16r, C + c16i, t, t + 1, t + 8) + cmul_sq(t, t + 1, C + c16r, C + c16i, t + 8) + cmul_sq(t + 2, t + 3, t, t + 1, t + 8)
    s += cmul_sq(C + c128r, C + c128i, t + 2, t + 3, t + 8) + cmul_sq(C + c256r, C + c256i, C + c128r, C + c128i, t + 8)
    s += f'''s_mov_b32 s{sT0}, 0
s_mov_b32 s{sT1}, -1
v_cndmask_b32 v{C+cqr}, 1.0, v{C+c16r}, s[{sT0}:{sT1}]
v_cndmask_b32 v{C+cqi}, 0, v{C+c16i}, s[{sT0}:{sT1}]
'''
    for bit, (pr, pi) in ((0, (t, t + 1)), (1, (t + 2, t + 3))):
        s += f'''s_bfe_i32 s{sT0}, s3, {0x10000 | bit}
s_mov_b32 s{sT1}, s{sT0}
v_cndmask_b32 v{t+4}, 1.0, v{pr}, s[{sT0}:{sT1}]
v_cndmask_b32 v{t+5}, 0, v{pi}, s[{sT0}:{sT1}]
v_mul_f32 v{t+6}, v{C+cqr}, v{t+4}
v_mul_f32 v{t+7}, v{C+cqr}, v{t+5}
v_fma_f32 v{C+cqr}, -v{C+cqi}, v{t+5}, v{t+6}
v_fma_f32 v{C+cqi}, v{C+cqi}, v{t+4}, v{t+7}
'''
    s += f'v_mov_b32 v{C+cPr}, 0\nv_mov_b32 v{C+cPi}, 0\n'
    return s

def cfma(dr, di, lr, li, sr, si):
    yield ('v', f'v_fmac_f32 v{dr}, v{lr}, v{sr}')
    yield ('v', f'v_fmac_f32 v{di}, v{lr}, v{si}')
    yield ('v', f'v_fma_f32 v{dr}, -v{li}, v{si}, v{dr}')
    yield ('v', f'v_fmac_f32 v{di}, v{li}, v{sr}')

def f_agg(acc, C, area, SA, tag):
    sr, si = acc, acc + 16
    for r in range(1, 16):
        t = TMP + 2 * (r & 1)
        yield ('v', f'v_fma_f32 v{t}, v{C+cLr}, v{sr}, v{acc+r}')
        yield ('v', f'v_fma_f32 v{t+1}, v{C+cLr}, v{si}, v{acc+16+r}')
        yield ('v', f'v_fmac_f32 v{t}, v{C+cnLi}, v{si}')
        yield ('v', f'v_fmac_f32 v{t+1}, v{C+cLi}, v{sr}')
        sr, si = t, t + 1
    yield ('lds', f'ds_write_b64 v{vAGW}, v[{sr}:{si}] offset:{area}', tag + 'w')
    yield ('delay', 2)
    yield ('wl', tag + 'w')
    yield ('forcebar',)
    g = TMP + 4
    for j in range(8):
        yield ('lds', f'ds_read_b64 v[{g+2*j}:{g+2*j+1}], v{vAGR} offset:{area+256*j}', tag + f'r{j}')
    yield ('delay', 3)
    yield ('wl', tag + 'r7')
    for j in range(1, 8):
        pr, pi = g + 2 * (j - 1), g + 2 * (j - 1) + 1
        yield from cfma(g + 2 * j, g + 2 * j + 1, C + c16r, C + c16i, pr, pi)
    yield ('v', f'v_and_b32 v{TMP}, s{sZM}, v{g+14}')
    yield ('v', f'v_mov_b32 v{TMP+1}, v{vT}')
    yield ('v', f'v_and_b32 v{TMP+2}, s{sZM}, v{g+15}')
    yield ('v', f'v_mov_b32 v{TMP+3}, v{vT}')
    yield ('vm', f'buffer_store_dwordx4 v[{TMP}:{TMP+3}], v{vPUB}, s[{SA}:{SA+3}], 0 offen sc1', tag + 'pub')
    yield sitem(tag + 'pub')
    for j in range(1, 8):
        pr, pi = g + 2 * (j - 1), g + 2 * (j - 1) + 1
        m = sMASK + 2 * (j - 1)
        yield ('v', f'v_cndmask_b32 v{C+cPr}, v{C+cPr}, v{pr}, s[{m}:{m+1}]')
        yield ('v', f'v_cndmask_b32 v{C+cPi}, v{C+cPi}, v{pi}, s[{m}:{m+1}]')

def ren(acc, spare): return [spare] + [acc + r for r in range(15)]
def f_coef(acc, C, spare):
    an = ren(acc, spare)
    for r in range(16):
        ar, br = acc + r, acc + 16 + r
        yield ('v', f'v_mul_f32 v{an[r]}, v{C+cP}, v{ar}')
        yield ('v', f'v_fmac_f32 v{an[r]}, v{C+cQn}, v{br}')
        yield ('v', f'v_mul_f32 v{br}, v{C+cnP}, v{br}')
        yield ('v', f'v_fmac_f32 v{br}, v{C+cQn}, v{ar}')
def f_gather_issue(G, SA, tag, fill=None):
    for j in range(8):
        yield ('vm', f'buffer_load_dwordx4 {V(G[j],4)}, v{GOF+j}, s[{SA}:{SA+3}], 0 offen sc1', tag + f'g{j}')
        if fill is not None:
            for _ in range(6):
                x = next(fill, None)
                if x is not None: yield x
        else: yield ('delay', 1)
SPIN = 20000
SLEEP = [4]
def tagchk(G):
    L = [f'v_bitop3_b32 v{G[j]+1}, v{G[j]+1}, v{G[j]+3}, v{vT} bitop3:0x7e' for j in range(8)]
    L += [f'v_or3_b32 v{G[0]+1}, v{G[0]+1}, v{G[1]+1}, v{G[2]+1}', f'v_or3_b32 v{G[3]+1}, v{G[3]+1}, v{G[4]+1}, v{G[5]+1}',
          f'v_or3_b32 v{G[0]+1}, v{G[0]+1}, v{G[6]+1}, v{G[7]+1}', f'v_or_b32 v{G[0]+1}, v{G[0]+1}, v{G[3]+1}']
    return L
def f_carry(G, acc, C, spare, SA, sD, tag, kb=0):
    yield ('wv', tag + 'g7')
    for ln in tagchk(G): yield ('v', ln)
    t0 = G[0] + 1
    def chk(a):
        slow = a.newlabel('slow'); ok = a.newlabel('ok')
        a.e(f'v_cmp_ne_u32 vcc, 0, v{t0}\ns_nop 1\ns_cmp_lg_u64 vcc, 0\ns_cbranch_scc1 {slow}')
        a.label(ok)
        s = f'{slow}:\ns_mov_b32 s{sCNT}, 0\n{slow}_l:\ns_sleep {SLEEP[0]}\n'
        for j in range(8):
            s += f'buffer_load_dwordx4 {V(G[j],4)}, v{GOF+j}, s[{SA}:{SA+3}], 0 offen sc1\n'
        s += 's_waitcnt vmcnt(0)\n' + '\n'.join(tagchk(G)) + '\n'
        s += f'''v_cmp_ne_u32 vcc, 0, v{t0}
s_add_u32 s{sCNT}, s{sCNT}, 1
s_cmp_gt_u32 s{sCNT}, {SPIN}
s_cbranch_scc1 {ok}
s_cmp_lg_u64 vcc, 0
s_cbranch_scc1 {slow}_l
s_branch {ok}
'''
        a.cold.append(s)
    yield sitem(tag + 'w')
    yield ('raw', chk, 4)
    yield sitem(tag + 'ok')
    for j in range(6, -1, -1):
        yield from cfma(G[j], G[j] + 2, C + c256r, C + c256i, G[j + 1], G[j + 1] + 2)
    g0, g1 = G[0], G[1]
    yield ('v', f'v_mov_b32 v{g1}, v{g0}')
    yield ('v', f'v_mov_b32 v{g1+2}, v{g0+2}')
    yield ('s', f's_lshl_b32 s{sT0}, s{sD}, 13')
    yield ('s', f's_add_u32 s{sT0}, s{sT0}, s{sHB}')
    yield ('v', f'v_permlane32_swap_b32 v{g0}, v{g1}')
    yield ('v', f'v_permlane32_swap_b32 v{g0+2}, v{g1+2}')
    yield ('s', 's_nop 0')
    yield ('s', f's_add_u32 s{sT1}, s{sT0}, 4096')
    yield from cfma(g0, g0 + 2, C + c128r, C + c128i, g1, g1 + 2)
    yield from cfma(C + cPr, C + cPi, C + cqr, C + cqi, g0, g0 + 2)
    yield ('v', f'v_mul_f32 v{g0}, v{C+cP}, v{C+cPr}')
    yield ('v', f'v_mul_f32 v{g0+1}, v{C+cQn}, v{C+cPr}')
    yield ('v', f'v_fmac_f32 v{g0}, v{C+cQn}, v{C+cPi}')
    yield ('v', f'v_fmac_f32 v{g0+1}, v{C+cnP}, v{C+cPi}')
    an = ren(acc, spare)
    pr, pi = g0, g0 + 1
    for r in range(16):
        ar, br = an[r], acc + 16 + r
        yield ('v', f'v_fmac_f32 v{ar}, v{C+cLr}, v{pr}')
        yield ('v', f'v_fmac_f32 v{br}, v{C+cLr}, v{pi}')
        yield ('v', f'v_fmac_f32 v{ar}, v{C+cLi}, v{pi}')
        yield ('v', f'v_fmac_f32 v{br}, v{C+cnLi}, v{pr}')
        pr, pi = ar, br
    for comp in range(2):
        src = an if comp == 0 else [acc + 16 + r for r in range(16)]
        for k in range(8):
            yield ('v', f'v_cvt_pk_bf16_f32 v{G[2*comp+(k>>2)]+(k&3)}, v{src[2*k]}, v{src[2*k+1]}')
        yield ('lds', f'ds_write_b128 v{vTW}, {V(G[2*comp],4)}', tag + f'tw{comp}a')
        yield ('lds', f'ds_write_b128 v{vTW}, {V(G[2*comp+1],4)} offset:16', tag + f'tw{comp}b')
        yield ('delay', 0)
        for h2 in range(2):
            for e in range(2):
                d = G[4 + 2 * comp + h2] + 2 * e
                yield ('lds', f'ds_read_b64_tr_b16 v[{d}:{d+1}], v{vTR} offset:{h2*32+e*320}', tag + f'tr{comp}{h2}{e}')
            yield ('delay', 0)
    yield ('delay', 4)
    yield ('wl', tag + 'tr111')
    for comp in range(2):
        for h2 in range(2):
            yield ('vm', f'buffer_store_dwordx4 {V(G[4+2*comp+h2],4)}, v{vL16}, s[{SH}:{SH+3}], s{sT0+comp} offen offset:{h2*1024} sc1', 'lastH')
            yield ('delay', 0)

def f_epiq(acc, kbase):
    yield ('s', f's_lshl_b32 s{sXO}, s{sSL}, 13')
    yield ('s', f's_add_u32 s{sXO}, s{sXO}, s{sHB}')
    yield ('s', f's_add_u32 s{sXO}, s{sXO}, {4096*kbase}')
    g = lambda e: acc + 32 * (e >> 4) + (e & 15)
    for n in range(32 + 4):
        if n < 32: yield ('v', f'v_mul_f32 v{g(n)}, {NLOG2E}, v{g(n)}')
        if 0 <= n - 1 < 32: yield ('t', f'v_exp_f32 v{g(n-1)}, v{g(n-1)}')
        if 0 <= n - 2 < 32: yield ('v', f'v_add_f32 v{g(n-2)}, 1.0, v{g(n-2)}')
        if 0 <= n - 3 < 32: yield ('t', f'v_rcp_f32 v{g(n-3)}, v{g(n-3)}')
        e = n - 4
        if n >= 34: yield ('s', 's_nop 0')
        if 0 <= e < 32:
            yield ('v', f'v_mul_f32 v{g(e)}, v{g(e)}, v{g(e)+16}')
            if e & 1:
                U = acc + 32 * (e >> 4) + 16; c = (e >> 3) & 1
                yield ('v', f'v_cvt_pk_bf16_f32 v{U+8*c+((e&7)>>1)}, v{g(e-1)}, v{g(e)}')
                if (e & 7) == 7:
                    yield ('vm', f'buffer_store_dwordx4 v[{U+8*c}:{U+8*c+3}], v{vHG}, s[{SW}:{SW+3}], s{sXO} offen offset:{512*c} sc1', 'lastH')
                    if e == 15: yield ('s', f's_add_u32 s{sXO}, s{sXO}, 4096')

def f_publish(level, delay):
    yield sitem(f'st{level}')
    yield ('after', delay, [sitem(f'ak{level}'), ('wv', 'lastH'), ('vm', f'buffer_store_dword v{vT}, v{vFP}, s[{SF}:{SF+3}], 0 offen offset:{128*level} sc1', None), sitem(f'pub{level}'), ('mark', f'pub{level}')])

def poll_load(dst, vaddr, off, n=1):
    x = '' if n == 1 else f'x{n}'
    return f'buffer_load_dword{x} {V(dst,n)}, v{vaddr}, s[{SF}:{SF+3}], 0 offen offset:{off} sc1'
def poll_check(dst, vaddr, off, need, n=1):
    def cmp_txt():
        s = ''
        if n > 1:
            s += f'v_xor_b32 v{dst}, v{dst}, v{vT}\n'
            for k in range(1, n): s += f'v_bitop3_b32 v{dst}, v{dst}, v{dst+k}, v{vT} bitop3:0xf6\n'
            s += f'v_cmp_ne_u32 vcc, 0, v{dst}\n'
        else: s += f'v_cmp_ne_u32 vcc, v{dst}, v{vT}\n'
        s += 's_nop 1\n'
        s += f's_and_b64 s[{sTP}:{sTP+1}], vcc, s[{need}:{need+1}]\n' if need else 's_cmp_lg_u64 vcc, 0\n'
        return s
    def chk(a):
        slow = a.newlabel('slow'); ok = a.newlabel('ok')
        a.e(cmp_txt() + f's_cbranch_scc1 {slow}')
        a.label(ok)
        a.cold.append(f'''{slow}:
s_mov_b32 s{sCNT}, 0
{slow}_l:
s_add_u32 s{sCNT}, s{sCNT}, 1
s_cmp_gt_u32 s{sCNT}, {SPIN}
s_cbranch_scc1 {ok}
s_sleep {SLEEP[0]}
{poll_load(dst, vaddr, off, n)}
s_waitcnt vmcnt(0)
{cmp_txt()}s_cbranch_scc1 {slow}_l
s_branch {ok}
''')
    return chk

class Sched:
    def __init__(self, a):
        self.a = a; self.keys = {}
        self.stream = None; self.pend = None; self.delay = 0; self.blocked = False
        self.timers = []; self.barq = []; self.maxlds = 2
    def tick(self, force=False):
        used = 0
        for tm in list(self.timers):
            if len(tm) > 2 and not tm[2]() and not force: continue
            tm[0] -= 1
            if tm[0] <= 0 or force:
                self.timers.remove(tm)
                for it in tm[1]: used += self.emit_item(it)
        return used
    def add(self, gen):
        self.stream = gen if self.stream is None else chain(self.stream, gen)
    def push(self, gen):
        rest = ([self.pend] if self.pend is not None else [])
        self.pend = None; self.delay = 0
        self.stream = chain(gen, rest, self.stream if self.stream is not None else [])
    def peek(self):
        if self.pend is None and self.stream is not None:
            self.pend = next(self.stream, None)
            if self.pend is None: self.stream = None
        return self.pend
    def emit_item(self, it):
        a = self.a; k = it[0]
        if k in ('v', 's'): a.e(it[1]); return 1
        if k == 't': a.e(it[1]); return 2
        if k == 'lds': self.keys[it[2]] = a.lds(it[1]); return 1
        if k == 'vm': self.keys[it[2]] = a.vm(it[1]); return 1
        if k == 'wl': return 1 if a.wait(lg=self.keys[it[1]]) else 0
        if k == 'wv': return 1 if a.wait(vm=self.keys[it[1]]) else 0
        if k == 'raw': it[1](a); return it[2]
        if k == 'forcebar': a.e('s_barrier'); return 1
        if k == 'call': it[1](); return 0
        if k == 'after':
            its = [((x[0] + 'i', self.keys[x[1]]) if x[0] in ('wv', 'wl') else x) for x in it[2]]
            self.timers.append([it[1], its]); return 0
        if k == 'when': self.timers.append([it[2], it[3], it[1]]); return 0
        if k == 'wvi': return 1 if a.wait(vm=it[1]) else 0
        if k == 'wli': return 1 if a.wait(lg=it[1]) else 0
        if k == 'onbar': self.barq.append(it[1]); return 0
        if k == 'flush': return self.tick(True)
        if k == 'mark': self.keys[it[1]] = True; return 0
        if k == 'req': assert self.keys.get(it[1]), it[1]; return 0
        raise ValueError(k)
    def head_vm(self):
        return self.delay <= 0 and not self.blocked and self.peek() is not None and self.pend[0] == 'vm'
    def fill(self, budget, vm_ok=True):
        budget -= self.tick()
        if self.delay > 0: self.delay -= 1; return
        if budget <= 0: return
        used = 0; valu_seen = False; self.nl = 0
        while not self.blocked:
            it = self.peek()
            if it is None: return
            k = it[0]
            if k == 'delay': self.delay = it[1]; self.pend = None; return
            if k == 'needbar': self.blocked = True; self.pend = None; return
            if k == 'until':
                if not it[1](): return
                self.pend = None; continue
            if k in ('lds', 'vm') and valu_seen: return
            if k == 'vm':
                if not vm_ok: return
                vm_ok = False
            if k == 'lds':
                nl = getattr(self, 'nl', 0)
                if nl >= self.maxlds: return
                self.nl = nl + 1
            cost = 2 if k == 't' else it[2] if k == 'raw' else 1 if k in ('v', 's', 'lds', 'vm', 'wl', 'wv', 'forcebar') else 0
            if used + cost > budget and (used > 0 or (k == 't' and budget < 2)): return
            self.pend = None
            used += self.emit_item(it)
            if k in ('v', 't', 'raw'): valu_seen = True
    def on_barrier(self):
        self.blocked = False
        q = self.barq; self.barq = []
        for its in q:
            for it in its: self.emit_item(it)
    def drain(self, every=None):
        n = 0
        while True:
            if self.blocked:
                self.a.e('s_barrier'); self.blocked = False
            it = self.peek()
            if it is None: return
            self.pend = None
            if it[0] in ('delay', 'until'): continue
            if it[0] == 'needbar': self.blocked = True; continue
            c = self.emit_item(it); n += c
            self.acc = getattr(self, 'acc', 0) + c
            if self.acc >= 6: self.acc = 0; self.tick()
            if every and n >= every[0]:
                n = 0; every[1]()

def P(r): return f'v[{r}:{r+1}]'

def kernel(cfg):
    a = Asm(); a.cold = []
    name = KNAME
    ntx = ' nt' if cfg.get('ntx') else ''
    ntw = ' nt' if cfg.get('ntw') else ''
    a.e(f'.globl {name}\n.p2align 8\n.type {name},@function')
    a.label(name)
    a.e(f's_cmp_ge_u32 s2, 256\ns_cbranch_scc1 L_end')
    if cfg.get('dbg'): a.e('s_memrealtime s[100:101]')
    a.e('''s_load_dwordx16 s[16:31], s[0:1], 0
s_load_dwordx16 s[32:47], s[0:1], 64
v_lshrrev_b32 v2, 6, v0
v_and_b32 v1, 63, v0
v_readfirstlane_b32 s3, v2''')
    if cfg.get('scr'):
        a.e('s_lshr_b32 s10, s2, 3\ns_lshl_b32 s11, s2, 5\ns_or_b32 s2, s10, s11\ns_and_b32 s2, s2, 255')
    a.e('s_and_b32 s10, s2, 7\ns_lshr_b32 s11, s2, 3')
    mp = cfg['k1map']
    lgr = {'T': 1, 'P': 2, 'R': 3, 'S': 4}[mp]
    lx = 4 - lgr
    ls = 3 - lx
    sSH = 15
    a.e(f'''s_lshr_b32 s{sSH}, s11, {5-lgr}
s_lshr_b32 s{sRB}, s10, {ls}
s_lshl_b32 s{sRB}, s{sRB}, {lgr}
s_add_u32 s{sRB}, s{sRB}, s{sSH}
s_and_b32 s{sSL}, s11, {(32>>lgr)-1}
s_lshl_b32 s{sSL}, s{sSL}, {ls}
s_and_b32 s12, s10, {(1<<ls)-1}
s_add_u32 s{sSL}, s{sSL}, s12
s_lshr_b32 s{sRBP}, s10, 1
s_lshl_b32 s{sRBP}, s{sRBP}, 2
s_lshr_b32 s12, s11, 3
s_add_u32 s{sRBP}, s{sRBP}, s12
s_and_b32 s{sNB}, s11, 7
s_lshl_b32 s10, s{sSL}, 1
s_sub_u32 s11, s10, 12
s_min_u32 s13, s{sSL}, 9
s_cmp_ge_u32 s{sSL}, 11
s_cselect_b32 s{sD1}, s11, s13
s_add_u32 s{sD2}, s{sD1}, 1''')
    nsh = 16 if cfg.get('tmall') else (1 << lgr)
    if cfg.get('tmall'): a.e(f's_mov_b32 s{sSH}, s{sRB}')
    RT = 192
    vRTR, vRTL = 208, 209
    XV, XR, DV = 96, 116, 212
    tl = 128
    vJ, vRHO, vXA, vLW, vLR, vXS, vFL0, vSTA, vTQ, vTD, vPAR, vZ = range(tl + 8, tl + 20)
    DUM = 240
    sU, sKS, sCG, sRO, sROLE, sRLO, sRST = 84, 85, 86, 87, 99, 96, 97
    sXS0, sXS1, sXS2 = 89, 90, 91
    t = tl
    a.e(f'''s_lshl_b32 s12, s{sRB}, 2
s_lshr_b32 s10, s{sSL}, 2
s_add_u32 s12, s12, s10
s_and_b32 s13, s{sSL}, 3
v_and_b32 v{vJ}, 31, v1
v_lshrrev_b32 v{t}, 5, v1
s_lshl_b32 s10, s3, 1
v_add_u32 v{vRHO}, s10, v{t}
v_and_b32 v{t}, 3, v{vRHO}
v_lshrrev_b32 v{t+1}, 2, v{vRHO}
v_lshlrev_b32 v{t+1}, 4, v{t+1}
v_add_u32 v{t}, v{t}, v{t+1}
s_lshl_b32 s10, s12, 5
s_lshl_b32 s11, s13, 2
s_add_u32 s10, s10, s11
v_add_u32 v{t}, s10, v{t}
v_lshlrev_b32 v{t+1}, 3, v{vJ}
v_mul_u32_u24 v{vXA}, 1280, v{t}
v_add_u32 v{vXA}, v{vXA}, v{t+1}
v_lshlrev_b32 v{t}, 3, v{t}
v_add_u32 v{t}, {STAT_OFF}, v{t}
v_cmp_eq_u32 vcc, 0, v{vJ}
v_mov_b32 v{vSTA}, {OOB}
v_lshlrev_b32 v{vL16}, 4, v1
v_cndmask_b32 v{vSTA}, v{vSTA}, v{t}, vcc
v_mov_b32 v{vZ}, {NONCE_OFF}
s_lshl_b32 s{sM0B}, s3, 12
s_mul_i32 s{sXS0}, s12, 40960
s_lshl_b32 s13, s13, 7
s_add_u32 s{sXS0}, s{sXS0}, s13
s_add_u32 s{sXS0}, s{sXS0}, s{sM0B}
s_add_u32 s{sXS1}, s{sXS0}, 16384
s_cmp_ge_u32 s3, 2
s_cselect_b32 s{sXS2}, {OOB}, 32768
s_add_u32 s{sXS2}, s{sXS2}, s{sXS0}''')
    a.e(f'''v_lshrrev_b32 v{t}, 3, v1
v_and_b32 v{t+1}, 7, v1
v_lshrrev_b32 v{t+2}, 1, v{t}
v_xor_b32 v{t+3}, v{t+1}, v{t+2}
v_lshlrev_b32 v{t+3}, 4, v{t+3}
v_mul_u32_u24 v{t+4}, 1280, v{t}
v_add_u32 v{vD[0]}, v{t+4}, v{t+3}
v_xor_b32 v{t+3}, 64, v{t+3}
v_add_u32 v{vD[1]}, v{t+4}, v{t+3}
v_add_u32 v{vD[1]}, {10240-1024}, v{vD[1]}
v_add_u32 v{vD[2]}, {2*(10240-1024)}, v{vD[0]}
v_add_u32 v{vD[3]}, {2*(10240-1024)}, v{vD[1]}
v_lshl_add_u32 v{vRTL}, v{t+1}, 4, v{t+4}
v_and_b32 v{t+2}, 1, v{t+2}
v_lshlrev_b32 v{t+2}, 2, v{t+2}
v_xor_b32 v{t+3}, v{t+1}, v{t+2}
v_lshlrev_b32 v{t+3}, 4, v{t+3}
v_mul_u32_u24 v{t+4}, 3456, v{t}
v_add_u32 v{vQ[0]}, v{t+4}, v{t+3}
v_add_u32 v{vQ[1]}, {8*3456-1024}, v{vQ[0]}
v_xor_b32 v{t+3}, v{t}, v{t+1}
v_lshlrev_b32 v{t+3}, 4, v{t+3}
v_lshl_add_u32 v{t+3}, v{t}, 7, v{t+3}
s_lshl_b32 s14, s3, 10
s_add_u32 s14, s14, {SCR}
v_add_u32 v{vLR}, s14, v{t+3}
v_lshlrev_b32 v{t+1}, 4, v{t+1}
v_lshl_add_u32 v{vXS}, v{t}, 9, v{t+1}
s_lshr_b32 s14, s3, 1
s_lshl_b32 s10, s{sSH}, 1
s_add_u32 s{sSH}, s10, s14
s_lshl_b32 s14, s14, 7
s_mul_i32 s{sDOFF1}, s{sD1}, 40960
s_add_u32 s{sDOFF1}, s{sDOFF1}, s14
s_add_u32 s{sDOFF2}, s{sDOFF1}, 40960
s_mul_i32 s14, s3, {16*3456}
s_lshl_b32 s{sQOFF1}, s{sSL}, 7
s_add_u32 s{sQOFF1}, s{sQOFF1}, s14
s_add_u32 s{sQOFF2}, s{sQOFF1}, 2048
s_lshl_b32 s{sXO}, s{sRB}, 2
s_add_u32 s{sXO}, s{sXO}, s3
s_mul_i32 s{sXO}, s{sXO}, 40960''')
    assert XNF_OFF == 0
    RQ = 320 // nsh; RD = 160 // nsh
    nq = -(-RQ // 64); rq = RQ // nq
    a.e(f'''s_mul_i32 s14, s{sSH}, {RQ}
v_add_u32 v{t}, s14, v1
v_mul_u32_u24 v{t}, 3456, v{t}
v_cmp_gt_u32 vcc, {rq}, v1
v_mov_b32 v{vTQ}, {OOB}
s_mul_i32 s14, s{sSH}, {RD}
v_cndmask_b32 v{vTQ}, v{vTQ}, v{t}, vcc
v_add_u32 v{t}, s14, v1
v_lshlrev_b32 v{t}, 7, v{t}
v_cmp_gt_u32 vcc, {min(RD,64)}, v1
v_mov_b32 v{vTD}, {OOB}
v_lshlrev_b32 v{vPAR}, 1, v{vJ}
v_cndmask_b32 v{vTD}, v{vTD}, v{t}, vcc''')
    assert RD <= 64 or True
    a.e(f'''v_lshrrev_b32 v{t}, 1, v{vJ}
v_and_b32 v{t+1}, 7, v{t}
v_xor_b32 v{t+1}, v{t+1}, v{vRHO}
v_lshlrev_b32 v{t+1}, 4, v{t+1}
v_lshl_add_u32 v{t}, v{t}, 7, v{t+1}
v_and_b32 v{t+1}, 1, v{vJ}
v_lshl_add_u32 v{t}, v{t+1}, 3, v{t}
v_add_u32 v{vLW}, {SCR}, v{t}
v_lshrrev_b32 v{t}, 2, v1
v_and_b32 v{t+1}, 3, v1
v_lshlrev_b32 v{t+1}, 2, v{t+1}
v_lshl_add_u32 v{t}, v{t}, 9, v{t+1}
s_lshl_b32 s14, s{sRBP}, 13
v_add_u32 v2, s14, v{t}
s_lshl_b32 s14, s{sRB}, 13
s_lshl_b32 s10, s3, 11
s_add_u32 s10, s10, s14
v_add_u32 v{t}, s10, v{t}
v_cmp_gt_u32 vcc, 16, v1
v_mov_b32 v{vFL0}, {OOB}
s_lshl_b32 s10, s{sSL}, 9
v_cndmask_b32 v{vFL0}, v{vFL0}, v{t}, vcc
s_add_u32 s14, s14, s10
s_lshl_b32 s10, s3, 2
s_add_u32 s14, s14, s10
v_mov_b32 v{vFP}, {OOB}
v_writelane_b32 v{vFP}, s14, 0''')
    vFL2 = 2
    a.e(f'''s_lshr_b32 s14, s3, 1
s_lshl_b32 s14, s14, 7
s_mul_i32 s{sDOFF1}, s{sD1}, 40960
s_add_u32 s{sDOFF1}, s{sDOFF1}, s14''')
    a.e(f'''v_lshrrev_b32 v{t}, 5, v1
v_bfe_u32 v{t+1}, v1, 2, 2
v_lshl_add_u32 v{t}, v{t}, 3, v{t+1}
v_lshlrev_b32 v{t}, 7, v{t}
v_bfe_u32 v{t+1}, v1, 3, 1
v_lshl_add_u32 v{t}, v{t+1}, 6, v{t}
v_bfe_u32 v{t+1}, v1, 4, 1
v_lshl_add_u32 v{t}, v{t+1}, 5, v{t}
v_and_b32 v{t+1}, 3, v1
v_lshl_add_u32 v{vRQ[0][0]}, v{t+1}, 3, v{t}
v_xor_b32 v{vRQ[1][0]}, 64, v{vRQ[0][0]}''')
    for jh in range(2):
        for wn in (1, 2): a.e(f'v_add_u32 v{vRQ[jh][wn]}, {65536*wn}, v{vRQ[jh][0]}')
    a.e(f'''v_bfe_u32 v{t}, v1, 1, 3
v_lshrrev_b32 v{t+1}, 5, v1
v_xor_b32 v{t}, v{t}, v{t+1}
v_lshlrev_b32 v{t}, 4, v{t}
v_lshl_add_u32 v{vRD[0]}, v{vJ}, 7, v{t}
v_xor_b32 v{vRD[1]}, 32, v{vRD[0]}
v_xor_b32 v{vRD[2]}, 64, v{vRD[0]}
v_xor_b32 v{vRD[3]}, 96, v{vRD[0]}''')
    a.e('s_waitcnt lgkmcnt(0)')
    stamp(a, 'rt0', True); stamp(a, 't0')
    def dbg(i):
        if cfg.get('dbg'):
            a.e('s_memrealtime s[0:1]'); a.wait_all(vm=False); a.e(f's_sub_u32 s0, s0, s100\nv_writelane_b32 v0, s0, {i}')
    if cfg.get('dbg'): a.e(f'v_mov_b32 v0, 0\ns_mov_b32 s101, s{P_DBG}\nv_writelane_b32 v0, s{P_DBG+1}, 63')
    dbg(0)

    stage_last = {}
    st = dict(dwin=0, issued=0, rid={})
    K = {}
    cur = {}
    def dma_items(n, kind, soff):
        slot = n % NS
        out = []
        for j in range(4):
            def th(j=j):
                if j == 0:
                    if n == 8: assert st.get('rtread')
                    a.e(f's_add_u32 m0, s{sM0B}, {slot*16384}')
                    first = n == 0 or cur['stages'][n - 1] != cur['stages'][n]
                    a.e('s_nop 0' if first else f's_add_u32 s{soff}, s{soff}, {256 if kind=="D" else 64*3456}')
                if kind == 'D': i = a.vm(f'buffer_load_dwordx4 v{vD[j]}, s[{SB}:{SB+3}], s{soff} offen offset:{1024*j} lds')
                else:
                    srd = SG if j < 2 else SU
                    i = a.vm(f'buffer_load_dwordx4 v{vQ[j&1]}, s[{srd}:{srd+3}], s{soff} offen offset:{1024*j} lds')
                if j == 3:
                    stage_last[n] = i
            th.stage = n
            out.append(th)
        return out
    dum = [DUM]
    def step_x():
        a.srd(SP, P_X, 2621440)
        K['x'] = [a.vm(f'buffer_load_dwordx2 v[{XR+2*n}:{XR+2*n+1}], v{vXA}, s[{SP}:{SP+3}], 0 offen offset:{256*n}{ntx}') for n in range(5)][-1]
        a.srd(SW, P_WS, WS_BYTES)
        K['n'] = a.vm(f'buffer_load_dword v{vT}, v{vZ}, s[{SW}:{SW+3}], 0 offen sc1')
        a.srd(SG, P_WG, 640 * 3456); a.srd(SU, P_WU, 640 * 3456 + 2048, add=-2048)
        a.e(f's_and_b32 s14, s3, 1\ns_cselect_b32 s{SB}, s{P_BIM}, s{P_BRE}\ns_cselect_b32 s{SB+1}, s{P_BIM+1}, s{P_BRE+1}\ns_mov_b32 s{SB+2}, 819200\ns_mov_b32 s{SB+3}, 0x00020000')
        a.e(f's_cselect_b32 s{SH}, s{P_WU}, s{P_WG}\ns_cselect_b32 s{SH+1}, s{P_WU+1}, s{P_WG+1}\ns_mov_b32 s{SH+2}, {640*3456}\ns_mov_b32 s{SH+3}, 0x00020000')
        a.srd(SF, P_WS, 262144, add=FLG_OFF)
    def step_t(u):
        kind, acc, soff = cur['units'][u]
        if kind == 'Q':
            for k in range(nq):
                a.e(f's_lshl_b32 s14, s{sSL}, 7')
                c = (2048 if soff == sQOFF2 else 0) + k * rq * 3456
                if c: a.e(f's_add_u32 s14, s14, {c}')
                a.vm(f'buffer_load_dword v{dum[0]}, v{vTQ}, s[{SH}:{SH+3}], s14 offen{ntw}'); dum[0] += 1
        else:
            for k in range(-(-RD // 64)):
                a.e(f's_mul_i32 s14, s{sD1 if soff == sDOFF1 else sD2}, 40960')
                if k: a.e(f's_add_u32 s14, s14, {k*(RD-64)*128}')
                a.vm(f'buffer_load_dword v{dum[0]}, v{vTD}, s[{SB}:{SB+3}], s14 offen{ntw}'); dum[0] += 1
    def step_par():
        a.e(f's_lshl_b32 s14, s{sD1}, 6')
        for i, p in enumerate((P_LRE, P_LIM, P_LDT)):
            a.srd(SP, p, 1280)
            a.vm(f'buffer_load_ushort v{TMP+i}, v{vPAR}, s[{SP}:{SP+3}], s14 offen')
            K['par'] = a.vm(f'buffer_load_ushort v{TMP+4+i}, v{vPAR}, s[{SP}:{SP+3}], s14 offen offset:64')
    def step_rta():
        Lc, Ld = a.newlabel('rt_c'), a.newlabel('rt_done')
        a.e(f's_lshl_b32 s{sU}, s2, 2\ns_add_u32 s{sU}, s{sU}, s3\ns_mov_b32 s{sROLE}, 1\ns_cmp_ge_u32 s{sU}, 540\ns_cbranch_scc1 {Lc}')
        a.sdiv(sKS, sU, 10, 540)
        a.e(f's_mul_i32 s{sCG}, s{sKS}, 10\ns_sub_u32 s{sCG}, s{sU}, s{sCG}')
        a.srd(SR, P_WD, 1728 * 1280)
        a.e(f'''s_mul_i32 s{sRLO}, s{sKS}, 40960
s_lshl_b32 s14, s{sCG}, 7
s_add_u32 s{sRLO}, s{sRLO}, s14
s_mov_b32 s{sRST}, {10240-1024}
v_lshrrev_b32 v{vRTR}, 5, v1
v_bfe_u32 v{RT}, v1, 4, 1
v_lshlrev_b32 v{RT}, 2, v{RT}
v_lshl_add_u32 v{vRTR}, v{vRTR}, 4, v{RT}
v_bfe_u32 v{RT}, v1, 2, 2
v_add_u32 v{vRTR}, v{vRTR}, v{RT}
v_lshlrev_b32 v{vRTR}, 7, v{vRTR}
v_and_b32 v{RT}, 3, v1
v_lshl_add_u32 v{vRTR}, v{RT}, 3, v{vRTR}
s_mul_i32 s{sKS}, s{sKS}, 5120
s_add_u32 s{sKS}, s{sKS}, {W2F_OFF+40*5120}''')
        for q in range(4):
            a.e(f's_lshl_b32 s14, s{sCG}, 2\ns_add_u32 s14, s14, {q}')
            a.sdiv(sRO, 14, 5, 40)
            a.e(f'''s_mul_i32 s{sRO}, s{sRO}, {NKS*5120-5120}
s_lshl_b32 s14, s14, 10
s_add_u32 s14, s14, s{sRO}
s_add_u32 s{36+q}, s14, s{sKS}''')
        a.e(f's_branch {Ld}')
        a.label(Lc)
        a.e(f's_mov_b32 s{sROLE}, 2\ns_sub_u32 s{sU}, s{sU}, 540\ns_cmp_ge_u32 s{sU}, 200\ns_cselect_b32 s{sKS}, 1, 0')
        a.e(f's_cselect_b32 s{SR}, s{P_CIM}, s{P_CRE}\ns_cselect_b32 s{SR+1}, s{P_CIM+1}, s{P_CRE+1}\ns_mov_b32 s{SR+2}, 819200\ns_mov_b32 s{SR+3}, 0x00020000')
        a.e(f's_mul_i32 s14, s{sKS}, 200\ns_sub_u32 s{sU}, s{sU}, s14')
        a.sdiv(sCG, sU, 5, 300)
        a.e(f's_mul_i32 s14, s{sCG}, 5\ns_sub_u32 s{sRO}, s{sU}, s14')
        a.e(f'''s_mul_i32 s{sRLO}, s{sCG}, 20480
s_lshl_b32 s14, s{sRO}, 8
s_add_u32 s{sRLO}, s{sRLO}, s14
s_mov_b32 s{sRST}, {5120-1024}
v_lshrrev_b32 v{RT}, 4, v1
v_and_b32 v{RT+1}, 15, v1
v_mul_u32_u24 v{vRTL}, 1280, v{RT}
v_lshl_add_u32 v{vRTL}, v{RT+1}, 4, v{vRTL}
v_lshlrev_b32 v{RT}, 4, v{RT}
v_lshl_add_u32 v{vRTR}, v{RT+1}, 8, v{RT}''')
        a.sdiv(sU, sCG, 5, 60)
        a.e(f'''s_mul_i32 s{sU}, s{sU}, {NKS*5120-5120}
s_lshl_b32 s14, s{sCG}, 10
s_add_u32 s{sU}, s{sU}, s14
s_lshl_b32 s14, s{sRO}, 3
s_add_u32 s14, s14, s{sKS}
s_mul_i32 s14, s14, 5120
s_add_u32 s{sU}, s{sU}, s14
s_cmp_ge_u32 s{sCG}, 40
s_cselect_b32 s14, {OOB}, {W2F_OFF}
s_add_u32 s36, s{sU}, s14
s_add_u32 s37, s36, 10240
s_add_u32 s38, s36, 20480
s_add_u32 s39, s36, 30720''')
        a.label(Ld)
        a.e(f's_add_u32 s14, s{sM0B}, {8*16384}\nv_add_u32 v{vRTR}, s14, v{vRTR}')
    def step_rtl():
        a.e(f's_add_u32 m0, s{sM0B}, {8*16384}\ns_nop 0')
        for j in range(4):
            K['rt'] = a.vm(f'buffer_load_dwordx4 v{vRTL}, s[{SR}:{SR+3}], s{sRLO} offen offset:{1024*j}{ntx} lds')
            if j < 3: a.e(f's_add_u32 s{sRLO}, s{sRLO}, s{sRST}')
    def rt_read(a):
        a.wait(vm=K['rt'])
        lc, ld = a.newlabel('rtc'), a.newlabel('rtd')
        a.e(f's_cmp_eq_u32 s{sROLE}, 2\ns_cbranch_scc1 {lc}')
        for q in range(4):
            for e in range(2): a.e(f'ds_read_b64_tr_b16 v[{RT+4*q+2*e}:{RT+4*q+2*e+1}], v{vRTR} offset:{q*32+e*1024}')
        a.e(f's_branch {ld}')
        a.label(lc)
        for q in range(4):
            for e in range(2): K['rtr'] = a.lds(f'ds_read_b64 v[{RT+4*q+2*e}:{RT+4*q+2*e+1}], v{vRTR} offset:{q*64+e*8}')
        a.label(ld)
    def step_s():
        for th in dma_items(st['issued'], *cur['stages'][st['issued']]): th()
        st['issued'] += 1
    def step_ln(nst=0):
        a.wait(vm=K['x'])
        stamp(a, 'x')
        l0 = len(a.lines)
        ln_body()
        if nst:
            body = a.lines[l0:cur['lnend']]; tail_ = a.lines[cur['lnend']:]
            vm_tail = a.vm_n - cur['vm0']
            a.lines = a.lines[:l0]; a.vm_n = cur['vm0']
            ths = []
            for _ in range(nst):
                ths += dma_items(st['issued'], *cur['stages'][st['issued']]); st['issued'] += 1
            step = len(body) // (len(ths) + 1)
            for k, ln_ in enumerate(body):
                a.lines.append(ln_)
                if ths and (k + 1) % step == 0: ths.pop(0)()
            assert not ths
            a.lines += tail_; a.vm_n += vm_tail; K['xst'] = a.vm_n - 1
    def ln_body():
        cur['vm0'] = a.vm_n
        for n in range(10):
            a.e(f'v_lshlrev_b32 v{XV+2*n}, 16, v{XR+n}\nv_and_b32 v{XV+2*n+1}, 0xffff0000, v{XR+n}')
        m_, q_ = tl, tl + 2
        a.e(f'v_pk_add_f32 {P(m_)}, {P(XV)}, {P(XV+2)}\nv_pk_add_f32 {P(q_)}, {P(XV+4)}, {P(XV+6)}')
        for n in range(4, 10, 2):
            a.e(f'v_pk_add_f32 {P(m_)}, {P(m_)}, {P(XV+2*n)}\nv_pk_add_f32 {P(q_)}, {P(q_)}, {P(XV+2*n+2)}')
        a.e(f'v_pk_add_f32 {P(m_)}, {P(m_)}, {P(q_)}\nv_add_f32 v{m_}, v{m_}, v{m_+1}')
        def red32(v, tt, fill):
            fill = iter(fill)
            def pad():
                x = next(fill, None); y = next(fill, None)
                if x is None: a.e('s_nop 1')
                else: a.e(x); a.e(y if y else 's_nop 0')
            for r in (8, 4, 2, 1):
                pad(); a.e(f'v_add_f32_dpp v{v}, v{v}, v{v} row_ror:{r} row_mask:0xf bank_mask:0xf')
            a.e(f'v_mov_b32 v{tt}, v{v}'); pad()
            a.e(f'v_permlane16_swap_b32 v{v}, v{tt}\ns_nop 0')
            a.e(f'v_add_f32 v{v}, v{v}, v{tt}')
            return fill
        red32(m_, m_ + 1, [])
        a.e(f'v_mul_f32 v{m_}, 0xbacccccd, v{m_}')
        sel = 'op_sel_hi:[1,0]'
        for n in range(10): a.e(f'v_pk_add_f32 {P(DV+2*n)}, {P(XV+2*n)}, {P(m_)} {sel}')
        a.e(f'v_pk_mul_f32 {P(q_)}, {P(DV)}, {P(DV)}\nv_pk_mul_f32 {P(tl+4)}, {P(DV+2)}, {P(DV+2)}')
        for n in range(2, 10, 2):
            a.e(f'v_pk_fma_f32 {P(q_)}, {P(DV+2*n)}, {P(DV+2*n)}, {P(q_)}\nv_pk_fma_f32 {P(tl+4)}, {P(DV+2*n+2)}, {P(DV+2*n+2)}, {P(tl+4)}')
        a.e(bfround_t(m_, m_))
        a.e(f'v_pk_add_f32 {P(q_)}, {P(q_)}, {P(tl+4)}\nv_add_f32 v{q_}, v{q_}, v{q_+1}')
        dfill = [f'v_pk_add_f32 {P(DV+2*n)}, {P(XV+2*n)}, {P(m_)} {sel}' for n in range(10)]
        if cfg.get('mimic', 0):
            dfill += [f'v_cvt_pk_bf16_f32 v{XR+n}, v{DV+2*n}, v{DV+2*n+1}' for n in range(10)]
            for n in range(10): dfill += [f'v_lshlrev_b32 v{DV+2*n}, 16, v{XR+n}', f'v_and_b32 v{DV+2*n+1}, 0xffff0000, v{XR+n}']
        rest = red32(q_, q_ + 1, dfill)
        chain_ops = [f'v_mul_f32 v{q_}, 0x3acccccd, v{q_}'] + bfround_t(q_, q_).split('\n')[:2] + [f'v_add_f32 v{q_}, 0x3727c5ac, v{q_}'] + bfround_t(q_, q_).split('\n')[:2] \
            + [f'v_sqrt_f32 v{q_}, v{q_}', 's_nop 0'] + bfround_t(q_, q_).split('\n')[:2] + [f'v_rcp_f32 v{m_+1}, v{q_}', 's_nop 0']
        for op in chain_ops:
            a.e(op)
            for _ in range(2):
                x = next(rest, None)
                if x: a.e(x)
        for x in rest: a.e(x)
        for n in range(10):
            a.e(f'v_pk_mul_f32 {P(DV+2*n)}, {P(DV+2*n)}, {P(m_)} op_sel:[0,1]')
        cur['lnend'] = len(a.lines)
        for n in range(10):
            a.e(f'v_cvt_pk_bf16_f32 v{XR+n}, v{DV+2*n}, v{DV+2*n+1}')
            if n & 1: a.lds(f'ds_write_b64 v{vLW}, v[{XR+n-1}:{XR+n}] offset:{2048*(n>>1)}')
        a.wait_all(vm=False)
        a.e('s_barrier')
        r3 = [a.lds(f'ds_read_b128 v[{DV+4*i}:{DV+4*i+3}], v{vLR} offset:{4096*i}') for i in range(3)]
        for i, so in enumerate((sXS0, sXS1, sXS2)):
            a.wait(lg=r3[i])
            K['xst'] = a.vm(f'buffer_store_dwordx4 v[{DV+4*i}:{DV+4*i+3}], v{vXS}, s[{SW}:{SW+3}], s{so} offen sc1')
        stamp(a, 'xnst')
    def step_flag():
        a.wait(vm=K['xst'])
        a.e(f'v_add_u32 v{vT}, {GOLD}, v{vT}')
        a.vm(f'buffer_store_dword v{vT}, v{vFP}, s[{SF}:{SF+3}], 0 offen sc1')
        a.e(f'v_mov_b32 v210, v{tl}\nv_mov_b32 v211, v{tl+1}\nv_mov_b32 v232, v{vSTA}')
        stamp(a, 'f0pub')
    def step_poll():
        K['poll'] = a.vm(poll_load(tl + 4, vFL0, 0))
    def step_chk():
        a.e(f's_mov_b32 s40, 0xffff\ns_mov_b32 s41, 0')
        a.wait(vm=K['poll'])
        stamp(a, 'f0w')
        poll_check(tl + 4, vFL0, 0, 40)(a)
        stamp(a, 'f0ok')
    xid = {}
    xq = []
    for s in range(40):
        def th(s=s):
            if s % 4 == 0 and s > 0: a.e(f's_add_u32 s{sXO}, s{sXO}, 4096')
            xid[s] = a.vm(f'buffer_load_dwordx4 {R(XF+4*s,4)}, v{vL16}, s[{SW}:{SW+3}], s{sXO} offen offset:{1024*(s%4)} sc1')
        xq.append(th)
    def step_f():
        for _ in range(4): cur['xq'].pop(0)()
    def step_rr():
        rt_read(a); a.wait(lg=K['rtr']); st['rtread'] = True
    def step_rs():
        K['p0st'] = a.vm(f'buffer_store_dwordx2 v[210:211], v232, s[{SW}:{SW+3}], 0 offen sc1')
        for q in range(4): K['p0st'] = a.vm(f'buffer_store_dwordx4 v[{RT+4*q}:{RT+4*q+3}], v{vL16}, s[{SW}:{SW+3}], s{36+q} offen sc1')
    def run_items(gen):
        tmp = Sched(a); tmp.add(gen); tmp.drain()
    def step_c():
        a.wait(vm=K['par'])
        run_items(chain(items(ssm_consts(C1, TMP)), items(ssm_consts(C2, TMP + 4)) if cur['typ'] == 'B' else []))
    def step_su():
        run_items(chain(items(setup), [('raw', setup_scc, 4)], items(setup1b), [('raw', setup_scc2, 5), ('raw', setup_scc3, 3)], items(setup2), mask_items(), f1_pub(TMP + 30)))
    steps = dict(c=step_c, su=step_su, x=step_x, t0=lambda: step_t(0), t1=lambda: step_t(1), t2=lambda: step_t(2), par=step_par, ra=step_rta, rl=step_rtl, s=step_s,
                 ln=step_ln, ln1=lambda: step_ln(1), ln2=lambda: step_ln(2), ln3=lambda: step_ln(3), fl=step_flag, po=step_poll, ck=step_chk, f=step_f, rr=step_rr, rs=step_rs)
    order = cfg.get('p0', 'x.par.t0.ra.rl.s.ln.s.t1.t2.c.fl.s.s.rr.su.po.ck.f.f.f.s.rs').split('.')

    def rt_stream():
        if 'rr' in order: return
        yield ('delay', cfg.get('rtdelay', 2))
        yield ('raw', rt_read, 10)
        yield ('delay', 3)
        yield ('call', lambda: (a.wait(lg=K['rtr']), st.__setitem__('rtread', True)))
    def rt_stores(cond, SPR):
        pub = ('onbar', [('vm', f'buffer_store_dword v{vT}, v{SPR+2}, s[{SF}:{SF+3}], 0 offen sc1', None), sitem('f1pub'), ('mark', 'f1pub')])
        if 'rs' in order:
            yield ('after', cfg.get('f1delay', 40), [('wvi', K['p0st']), pub]); return
        sts = [('vm', f'buffer_store_dwordx2 v[210:211], v232, s[{SW}:{SW+3}], 0 offen sc1', 'p0st')]
        sts += [('vm', f'buffer_store_dwordx4 v[{RT+4*q}:{RT+4*q+3}], v{vL16}, s[{SW}:{SW+3}], s{36+q} offen sc1', 'p0st') for q in range(4)]
        d0 = cfg.get('stdelay', 1); g = cfg.get('stgap', 1)
        for k, it in enumerate(sts[:-1]): yield ('when', cond, d0 + g * k, [it])
        yield ('when', cond, d0 + g * 4, [sts[-1], ('mark', 'rtst'), ('after', cfg.get('f1delay', 40), [('wv', 'p0st'), pub])])

    setup = f'''s_mul_i32 s15, s{sD1}, {AGS}
s_add_u32 s15, s15, {AGG_OFF}
s_mov_b32 s{SH}, s{P_WS}
s_mov_b32 s{SH+1}, s{P_WS+1}
s_mov_b32 s{SH+3}, 0x00020000
s_lshl_b32 s{sHB}, s{sRB}, 1
s_lshr_b32 s{sT0}, s3, 1
s_add_u32 s{sHB}, s{sHB}, s{sT0}
s_mul_i32 s{sHB}, s{sHB}, {NKS*4096}
s_and_b32 s{sT0}, s3, 1
s_lshl_b32 s{sT0}, s{sT0}, 11
s_add_u32 s{sHB}, s{sHB}, s{sT0}
s_add_u32 s{sHB}, s{sHB}, {HF_OFF}
s_and_b32 s{sT0}, s2, 1
s_lshl_b32 s{sT1}, s{sRBP}, 1
s_add_u32 s{sT1}, s{sT1}, s{sT0}
s_lshl_b32 s{sT0}, s{sT0}, 2
s_add_u32 s{sT0}, s{sT0}, s3
s_mul_i32 s{sW2}, s{sNB}, {NKS}
s_add_u32 s{sW2}, s{sW2}, s{sT0}
s_mul_i32 s{sW2}, s{sW2}, 5120
s_add_u32 s{sW2}, s{sW2}, {W2F_OFF}
s_lshl_b32 s{sT0}, s{sT0}, 12
s_add_u32 s{sT0}, s{sT0}, {HF_OFF}
s_mul_i32 s{sH2[1]}, s{sT1}, {NKS*4096}
s_add_u32 s{sH2[1]}, s{sH2[1]}, s{sT0}
s_xor_b32 s{sH2[0]}, s{sT1}, 1
s_mul_i32 s{sH2[0]}, s{sH2[0]}, {NKS*4096}
s_add_u32 s{sH2[0]}, s{sH2[0]}, s{sT0}
s_mul_i32 s{sHL}, s{sT1}, {NKS*4096}
s_add_u32 s{sHL}, s{sHL}, s{sM0B}
s_add_u32 s{sHL}, s{sHL}, {HF_OFF+62*4096}
s_mul_i32 s{sWL}, s{sNB}, {NKS}
s_add_u32 s{sWL}, s{sWL}, s3
s_mul_i32 s{sWL}, s{sWL}, 5120
s_add_u32 s{sWL}, s{sWL}, {W2F_OFF+62*5120}
s_lshl_b32 s{sT1}, s{sT1}, 2
s_add_u32 s{sT1}, s{sT1}, s3
s_lshl_b32 s{sSTO}, s{sT1}, 7
s_add_u32 s{sSTO}, s{sSTO}, {STAT_OFF}
s_mul_i32 s{sXO2}, s{sT1}, 20480
s_mul_i32 s{sDKO}, s{sNB}, 160
s_add_u32 s{sXO2}, s{sXO2}, s{sDKO}
s_lshl_b32 s{sOO}, s{sXO2}, 1
s_lshl_b32 s{sT0}, s2, 2
s_add_u32 s{sT0}, s{sT0}, s3
s_mul_i32 s{sXS}, s{sT0}, 5120
s_add_u32 s{sXS}, s{sXS}, {XCH_OFF}
s_xor_b32 s{sT0}, s{sT0}, 4
s_mul_i32 s{sXL}, s{sT0}, 5120
s_add_u32 s{sXL}, s{sXL}, {XCH_OFF}
s_mov_b32 s{sNEEDA}, -1
s_mov_b32 s{sNEEDA+1}, 0xfff
v_and_b32 v{GOF}, 31, v1
v_lshrrev_b32 v{GOF+2}, 5, v1
v_bfe_u32 v{GOF+1}, v1, 2, 1
v_lshlrev_b32 v{GOF+1}, 10, v{GOF+1}
v_lshl_add_u32 v{GOF+1}, v{GOF+2}, 8, v{GOF+1}
v_bfe_u32 v{GOF+3}, v1, 3, 2
v_lshl_add_u32 v{GOF+1}, v{GOF+3}, 6, v{GOF+1}
v_and_b32 v{GOF+3}, 3, v1
v_lshl_add_u32 v{vHG}, v{GOF+3}, 4, v{GOF+1}
s_lshl_b32 s{sT0}, s3, 9
s_add_u32 s{sT0}, s{sT0}, {SCR}
v_lshl_add_u32 v{vAGW}, v1, 3, s{sT0}
v_lshlrev_b32 v{GOF+1}, 3, v{GOF}
v_add_u32 v{vAGR}, {SCR}, v{GOF+1}
s_mul_i32 s{sT0}, s3, 2560
s_add_u32 s{sT0}, s{sT0}, {SCR+4096}
v_mul_u32_u24 v{GOF+1}, 80, v{GOF}
v_lshl_add_u32 v{GOF+1}, v{GOF+2}, 5, v{GOF+1}
v_add_u32 v{vTW}, s{sT0}, v{GOF+1}
v_lshrrev_b32 v{GOF+1}, 4, v1
v_bfe_u32 v{GOF+4}, v1, 2, 2
v_lshl_add_u32 v{GOF+1}, v{GOF+1}, 3, v{GOF+4}
v_mul_u32_u24 v{GOF+1}, 80, v{GOF+1}
v_lshl_add_u32 v{GOF+1}, v{GOF+3}, 3, v{GOF+1}
v_add_u32 v{vTR}, s{sT0}, v{GOF+1}
'''
    def setup_scc(a):
        a.e(f'''s_add_u32 s{SA1}, s{P_WS}, s15
s_addc_u32 s{SA1+1}, s{P_WS+1}, 0
s_add_u32 s{SA2}, s{SA1}, {AGS}
s_addc_u32 s{SA2+1}, s{SA1+1}, 0''')
    def setup_scc2(a):
        a.e(f'''s_cmp_eq_u32 s{sT1}, 1
s_cselect_b32 s{sT0}, 8192, s{sOOBK}
s_cmp_eq_u32 s3, 0
s_cselect_b32 s{sT0}, s15, s{sT0}
s_cselect_b32 s{sZM}, -1, 0''')
    def setup_scc3(a):
        a.e(f'''s_cmp_eq_u32 s{sSL}, 10
s_cselect_b32 s{SH+2}, 0, {WS_BYTES}
s_cselect_b32 s{sT0}, s{sOOBK}, s{sT0}''')
    setup1b = f'''s_mov_b32 s{SA1+2}, {AGS}
s_mov_b32 s{SA1+3}, 0x00020000
s_mov_b32 s{SA2+2}, {AGS}
s_mov_b32 s{SA2+3}, 0x00020000
s_lshl_b32 s15, s{sRB}, 9
s_or_b32 s{sT1}, s15, s3
s_mov_b32 s{sOOBK}, 0x100000
'''
    setup2 = f'''v_lshlrev_b32 v{GOF+1}, 4, v{GOF}
v_add_u32 v{vPUB}, s{sT0}, v{GOF+1}
s_sub_u32 s15, s15, 512
v_add_u32 v{EXP}, 8192, v{GOF+1}
v_add_u32 v{GOF+1}, s15, v{GOF+1}
v_lshlrev_b32 v{GOF+2}, 9, v{GOF+2}
v_sub_u32 v{GOF}, v{GOF+1}, v{GOF+2}
s_lshr_b32 s{sOOBK}, s3, 1
s_and_b32 s{sOOBK}, s{sOOBK}, s2
s_lshl_b32 s{sOOBK}, s{sOOBK}, 30
'''
    for j in range(1, 8): setup2 += f'v_subrev_u32 v{GOF+j}, {1024*j}, v{GOF}\n'
    for j in range(8): setup2 += f'v_min_u32 v{GOF+j}, v{GOF+j}, v{EXP}\n'
    def mask_items():
        for j in range(1, 8):
            m = sMASK + 2 * (j - 1)
            yield ('raw', lambda a, j=j, m=m: a.e(f's_cmp_eq_u32 s3, {j>>1}\ns_cselect_b32 s{m+(j&1)}, -1, 0\ns_mov_b32 s{m+1-(j&1)}, 0'), 3)
    def f1_pub(SPR):
        vF1P = SPR + 2
        yield ('raw', lambda a: a.e(f's_lshl_b32 s{sT0}, s2, 4\ns_add_u32 s{sT0}, s{sT0}, {F1_OFF}\ns_cmp_lg_u32 s3, 0\ns_cselect_b32 s{sT0}, {OOB}, s{sT0}\nv_mov_b32 v{vF1P}, {OOB}\nv_writelane_b32 v{vF1P}, s{sT0}, 0'), 6)
        yield ('raw', lambda a: a.e(f's_or_b32 s{sT0}, s2, s3\ns_cselect_b32 s{sT0}, {OOB}, {NONCE_OFF}\nv_mov_b32 v{SPR+4}, {OOB}\nv_writelane_b32 v{SPR+4}, s{sT0}, 0'), 4)
        yield ('s', f's_lshl_b32 s{sT0}, s3, 10')
        yield ('s', f's_add_u32 s{sT0}, s{sT0}, {F1_OFF}')
        yield ('v', f'v_add_u32 v{SPR+1}, s{sT0}, v{vL16}')
    def f1_chk(SPR):
        yield ('vm', poll_load(SPR, SPR + 1, 0), 'f1')
        yield ('after', cfg.get('polld', 28), [('req', 'f1pub'), ('wv', 'f1'), sitem('f1w'), ('raw', poll_check(SPR, SPR + 1, 0, None), 4),
               ('onbar', [('vm', f'buffer_store_dword v{vT}, v{SPR+4}, s[{SW}:{SW+3}], 0 offen sc1', None), ('call', lambda: st.__setitem__('f1ok', True)), sitem('f1ok')])])

    def build(units):
        stages = []; groups = []
        for ui, (kind, acc, soff) in enumerate(units):
            ns = 5 if kind == 'D' else 10
            for s in range(ns):
                n = len(stages); stages.append((kind, soff))
                for g in range(4): groups.append((ui, kind, acc, n, s, g))
        return stages, groups
    bars = list(range(0, 25, 2))
    dmaq = []
    def reads(G, groups):
        ui, kind, acc, n, s, g = groups[G]
        slot = n % NS; win = slot // 4; base = (slot % 4) * 16384
        buf = WB + 16 * (G % 3)
        out = []
        if kind == 'Q':
            for m in range(4):
                jh, mat = m >> 1, m & 1
                out.append([f'ds_read_b64_tr_b16 {R(buf+4*m+2*e,2)}, v{vRQ[jh][win]} offset:{base+g*4096+mat*2048+e*512}' for e in range(2)])
        else:
            for m in range(4):
                ks, mat = 2 * g + (m >> 1), m & 1
                out.append([f'ds_read_b128 {R(buf+4*m,4)}, v{vRD[ks&3]} offset:{base+(ks>>2)*8192+mat*4096}'])
        return out, (win if kind == 'D' else None)
    def barrier_for(n, stages, sch):
        nxt = min([b for b in bars if b > n] + [len(stages)])
        a.wait(vm=stage_last[min(nxt, len(stages)) - 1])
        a.e('s_barrier')
        sch.on_barrier()
        while st['issued'] < len(stages) and st['issued'] <= n + NS - 2:
            m = st['issued']; dmaq.extend(dma_items(m, *stages[m])); st['issued'] += 1
    def set_dwin(w):
        if w is not None and w != st['dwin']:
            d = (w - st['dwin']) * 65536
            for r in vRD: a.e(f'v_add_u32 v{r}, {d & 0xffffffff}, v{r}')
            st['dwin'] = w

    class P2: pass
    def p2_load(p, kind, i, j, reg):
        late = i >= 8
        if kind == 'W': off, sb, sreg = ((i - 8) * 20480, sWL, sP1) if late else (i * 40960, sW2, sP1)
        else: off, sb, sreg = ((i - 8) * 16384, sHL, sP0) if late else (i * 32768, sH2[int(kind[1])], sP0)
        key = (kind, i, j // 4)
        assert st.get('f1ok')
        if kind != 'W': assert st.get('lvl', 0) >= (1 if i < 2 else 2 if i < 8 else 3), (kind, i)
        if p.cur.get(sreg) != key:
            a.e(f's_add_u32 s{sreg}, s{sb}, {off + (j // 4) * 4096}')
            if i == 7: a.e(f's_add_u32 s{sreg}, s{sreg}, s{sOOBK}')
            p.cur[sreg] = key
        p.buf[kind, i, j] = reg
        p.id[kind, i, j] = a.vm(f'buffer_load_dwordx4 {R(reg,4)}, v{vL16}, s[{SW}:{SW+3}], s{sreg} offen offset:{1024*(j%4)} sc1')

    def emit_groups(stages, groups, sch, fillers, xq, pre_load, pool, on_unit):
        lastu = groups[-1][0]
        freed = set()
        for G in range(len(groups)):
            ui, kind, acc, n, s, g = groups[G]
            if s == 0 and g == 0:
                on_unit(ui)
                if ui in fillers: sch.add(fillers[ui])
                stamp(a, f'U{ui+1}'); dbg(1 + ui)
            if cfg.get('gst') and g == 0 and s > 0 and str(ui + 1) in str(cfg['gst']): stamp(a, f'u{ui+1}s{s}')
            nx = G + 2
            rd = None
            if nx < len(groups): rd, win = reads(nx, groups)
            buf = WB + 16 * (G % 3)
            for m in range(4):
                if kind == 'Q': ks = 4 * s + g; d = acc + 16 * m
                else: ks = 8 * s + 2 * g + (m >> 1); d = acc + 16 * (m & 1)
                a.wait(lg=st['rid'][G] if m == 0 else None, vm=(xid[ks] if ui == 0 else None))
                c = '0' if ks == 0 else V(d, 16)
                if kind == 'Q': a.e(f'v_mfma_f32_32x32x16_bf16 {V(d,16)}, {R(buf+4*m,4)}, {R(XF+4*ks,4)}, {c}')
                else: a.e(f'v_mfma_f32_32x32x16_bf16 {V(d,16)}, {R(XF+4*ks,4)}, {R(buf+4*m,4)}, {c}')
                n0 = len(a.lines); budget = 0
                if m == 0 and rd and groups[nx][5] == 0 and groups[nx][3] in bars:
                    barrier_for(groups[nx][3], stages, sch); budget -= 2
                if rd:
                    for t_ in rd[m]: st['rid'][nx] = a.lds(t_)
                if ui == lastu and ks >= 1 and ks - 1 not in freed:
                    freed.add(ks - 1); pool.append(XF + 4 * (ks - 1))
                dma_ok = dmaq and not (dmaq[0].stage == 8 and not st.get('rtread'))
                lead = (dmaq[0].stage - n) if dmaq else 99
                did = False
                if m in (1, 3):
                    if xq: xq.pop(0)(); did = True
                    elif dma_ok and (m == 3 or lead <= cfg.get('lead2', 5)): dmaq.pop(0)(); did = True
                    elif not sch.head_vm() and not st.get('fvm'): did = pre_load()
                elif m == 2:
                    if dma_ok and lead <= cfg.get('minlead', 3): dmaq.pop(0)(); did = True
                if m == 3 and G + 3 < len(groups): set_dwin(reads(G + 3, groups)[1])
                v0_ = a.vm_n
                sch.fill(cfg['slots'] - (len(a.lines) - n0) - (1 if (m == 3 or (ui == 0 and m == 1)) else 0), vm_ok=not did)
                st['fvm'] = a.vm_n > v0_

    unitsA = [('D', ACC_D, sDOFF1), ('Q', ACC_A, sQOFF1), ('Q', ACC_B, sQOFF2)]
    unitsB = [('D', ACC_D, sDOFF1), ('D', ACC_A, sDOFF2), ('Q', ACC_B, sQOFF1)]
    a.e(f's_cmp_ge_u32 s{sSL}, 11\ns_cbranch_scc1 L_typeB')
    st0 = copy.deepcopy(st); as0 = a.state()
    for typ, units in (('A', unitsA), ('B', unitsB)):
        if typ == 'B':
            a.label('L_typeB')
            a.restore(as0); st.clear(); st.update(copy.deepcopy(st0)); stage_last.clear(); xid.clear(); K.clear(); dum[0] = DUM
        stages, groups = build(units)
        xq1 = list(xq)
        cur.update(units=units, stages=stages, xq=xq1, typ=typ)
        for stp in order: steps[stp]()
        sch = Sched(a)
        p = P2(); p.buf = {}; p.id = {}; p.cur = {}
        SPR = TMP + 30
        FL = vD[2]
        H = lambda ps, i: [(f'H{ps}', i, j) for j in range(4)]
        Wf = lambda i: [('W', i, j) for j in range(5)]
        HR = lambda ps, ii: [(f'H{ps}', i, j) for j in range(4) for i in ii]
        pool = [256 + 208 + 4 * k for k in range(12)]
        poolB = []
        lq = H(0, 0) + H(0, 1) + H(1, 0) + H(1, 1) + sum([Wf(i) for i in range(8)], []) + sum([H(0, i) for i in range(2, 5)], []) + HR(0, (5, 6, 7)) + sum([Wf(i) for i in range(8, 16)], [])[:cfg.get('wlpre', 10)]
        def lv(it): return 0 if it[0] == 'W' else (1 if it[1] < 2 else 2 if it[1] < 8 else 3)
        def pre_load():
            if not st.get('f1ok'): return False
            for k, it in enumerate(lq):
                if lv(it) > st.get('lvl', 0): continue
                pl = poolB if (it[0] == 'H0' and poolB) else pool
                if not pl: continue
                lq.pop(k); p2_load(p, it[0], it[1], it[2], pl.pop(0)); return True
            return False
        polld = cfg.get('polld', 20); ackd = cfg.get('ackd', 28)
        assert all(order.index(z) < order.index('su') for z in ('x', 'ra', 'rl', 'rr', 'par', 'ln') + tuple(z for z in ('t0', 't1', 't2') if z in order))
        u1 = chain(rt_stores(lambda: len(xq1) <= cfg.get('stx', 0), SPR))
        spare1, spare2 = vD[0], vD[1]
        chk_d = ('call', lambda: (_ for _ in ()).throw(AssertionError('D dma pending')) if any(stages[th.stage][0] == 'D' for th in dmaq) or any(k == 'D' for k, _ in stages[st['issued']:]) else None)
        BQ = list(range(28, 48, 4))
        def _fs():
            assert st.get('f1ok'); pool.extend(range(48, 96, 4))
        free_ssm = ('call', _fs)
        EAr, EAo, EAw, vXP, vXL = 15, 16, 17, 18, 7
        def epbase():
            t_ = 116
            yield ('raw', lambda a: a.srd(SXX, P_X, 2621440), 4)
            yield ('raw', lambda a: a.srd(SDK, P_DSK, 1280), 4)
            yield from items(f'''v_lshrrev_b32 v{t_}, 2, v1
v_and_b32 v{t_+1}, 3, v1
v_lshlrev_b32 v{t_+2}, 3, v{t_+1}
v_mul_u32_u24 v{t_+3}, 1280, v{t_}
v_add_u32 v{t_+3}, v{t_+3}, v{t_+2}
v_lshlrev_b32 v{t_+4}, 3, v{t_}''')
            adr = list(items(f'''v_lshlrev_b32 v{EAo}, 1, v{t_+3}
v_bfe_u32 v{t_+5}, v1, 3, 2
v_xor_b32 v{t_+5}, v{t_+5}, v{t_+1}
v_mul_u32_u24 v{EAr}, 320, v{t_}
v_lshl_add_u32 v{EAr}, v{t_+5}, 4, v{EAr}
s_mul_i32 s{sT1}, s3, 5120
v_add_u32 v{EAr}, s{sT1}, v{EAr}
v_and_b32 v{EAw}, 15, v1
v_mul_u32_u24 v{EAw}, 320, v{EAw}
v_lshrrev_b32 v{t_+5}, 4, v1
v_bfe_u32 v{t_+8}, v1, 1, 2
v_xor_b32 v{t_+5}, v{t_+5}, v{t_+8}
v_lshl_add_u32 v{EAw}, v{t_+5}, 4, v{EAw}
s_mul_i32 s{sT0}, s3, 20480
v_add_u32 v{EAw}, s{sT0}, v{EAw}
s_lshl_b32 s{sT0}, s2, 7
s_lshl_b32 s{sT1}, s3, 2
s_add_u32 s{sT0}, s{sT0}, s{sT1}
s_add_u32 s{sT0}, s{sT0}, {FX_OFF}
v_mov_b32 v{vXP}, {OOB}
v_writelane_b32 v{vXP}, s{sT0}, 0
s_xor_b32 s{sZM}, s{sT0}, 128'''))
            lds_ = [('vm', f'buffer_load_dwordx2 {P(t_+6)}, v{t_+4}, s[{SW}:{SW+3}], s{sSTO} offen sc1', 'bs')]
            for i in range(5):
                lds_.append(('vm', f'buffer_load_dwordx2 {P(96+4*i)}, v{t_+3}, s[{SXX}:{SXX+3}], s{sXO2} offen offset:{32*i}', f'bx{i}'))
                lds_.append(('vm', f'buffer_load_dwordx2 {P(98+4*i)}, v{t_+2}, s[{SDK}:{SDK+3}], s{sDKO} offen offset:{32*i}', f'bd{i}'))
            for k, it in enumerate(lds_):
                yield it
                yield from adr[2 * k:2 * k + 2]
            yield ('delay', cfg.get('bdelay', 14))
            yield sitem('bw0')
            yield ('wv', 'bd0')
            yield sitem('bw1')
            yield ('v', f'v_mul_f32 v{t_+6}, v{t_+6}, v{t_+7}')
            for i in range(5):
                b = BQ[i]; x = 96 + 4 * i
                yield ('wv', f'bd{i}')
                for k in range(4):
                    un = (lambda d, s_: f'v_and_b32 v{d}, 0xffff0000, v{s_}') if k & 1 else (lambda d, s_: f'v_lshlrev_b32 v{d}, 16, v{s_}')
                    yield ('v', un(b + k, x + (k >> 1)))
                    yield ('v', un(t_, x + 2 + (k >> 1)))
                    yield ('v', f'v_fma_f32 v{t_+1}, v{b+k}, v{t_+7}, v{t_+6}')
                    yield ('v', f'v_fmac_f32 v{b+k}, v{t_+1}, v{t_}')
            yield sitem('bend')
            yield ('call', lambda: st.__setitem__('base', True))
        def lchk2(level, d):
            yield ('vm', poll_load(FL, vFL2, 128 * level), f'l{level}')
            yield ('after', d, [sitem(f'l{level}a'), ('wv', f'l{level}'), sitem(f'l{level}w'), ('raw', poll_check(FL, vFL2, 128 * level, sNEEDA if level == 1 else None), 4), sitem(f'l{level}ok'),
                   ('call', lambda: st.__setitem__('lvl', level))])
        if typ == 'A':
            G = [64, 68, 72, 76, 44, 48, 52, 56]
            u2 = chain([('delay', 3)], f_agg(ACC_D, C1, 0, SA1, 'a1'), [chk_d], f_coef(ACC_D, C1, spare1), f1_chk(SPR),
                       [('delay', cfg.get('gdelay0', 2))], f_gather_issue(G, SA1, 'a1'), [('delay', cfg.get('gdelay', 16))],
                       f_carry(G, ACC_D, C1, spare1, SA1, sD1, 'a1'), [('mark', 'ssm'), free_ssm], f_publish(1, ackd),
                       [('when', lambda: sch.keys.get('pub1'), cfg.get('visd', 40), list(lchk2(1, polld)))])
            u3 = chain([('delay', 3)], f_epiq(ACC_A, 40), f_publish(2, ackd), epbase())
            tailg = chain(f_epiq(ACC_B, 72))
        else:
            G = [ACC_A + 32 + 4 * j for j in range(8)]; G2 = [ACC_D + 4 * j for j in range(8)]
            u2 = chain([('delay', 3)], f_agg(ACC_D, C1, 0, SA1, 'a1'), f1_chk(SPR), [chk_d], f_coef(ACC_D, C1, spare1))
            ag2 = f_agg(ACC_A, C2, 2048, SA2, 'a2'); cf2 = f_coef(ACC_A, C2, spare2)
            u3 = chain([('delay', 3)], f_gather_issue(G, SA1, 'a1', ag2), ag2,
                       f_carry(G, ACC_D, C1, spare1, SA1, sD1, 'a1'), f_gather_issue(G2, SA2, 'a2', cf2), cf2, [('delay', 12)],
                       f_carry(G2, ACC_A, C2, spare2, SA2, sD2, 'a2'), [('mark', 'ssm'), free_ssm], f_publish(2, cfg.get('ackb', 24)))
            tailg = chain(lchk2(1, 20), f_epiq(ACC_B, 40), [('flush',)], f_publish(3, 1000), epbase(), [('flush',), ('call', lambda: [pre_load() for _ in range(cfg.get('bpre', 16))])])
        def on_unit(ui):
            if ui == 2:
                assert 'rs' in order or sch.keys.get('rtst')
        barrier_for(0, stages, sch)
        for G0 in (0, 1):
            rd, win = reads(G0, groups)
            for lst in rd:
                for t_ in lst: st['rid'][G0] = a.lds(t_)
        emit_groups(stages, groups, sch, {0: u1, 1: u2, 2: u3}, xq1, pre_load, pool, on_unit)
        assert not dmaq
        stamp(a, 'T'); dbg(4)
        pool += [XF + 156] + [WB + 4 * k for k in range(12)]
        sch.drain(every=(cfg.get('yevery', 24), pre_load))
        stamp(a, 'T2')
        a.e('s_nop 7\ns_nop 3')
        pid = {}
        tl_ = list(tailg)
        kp = (len(tl_) * cfg.get('p2pos', 7)) // 8 if typ == 'A' else len(tl_)
        def p2i():
            while sch.timers: sch.tick(True)
            pid[2] = a.vm(poll_load(FL, vFL2, 256))
        sch.add(chain(tl_[:kp], [('call', p2i)], tl_[kp:])); sch.drain(every=(cfg.get('yevery', 24), pre_load))
        while sch.timers: sch.tick(True)
        assert st.get('lvl') == 1
        stamp(a, 'Y')
        ACC = (96, 176)
        FL3 = FL
        assert st.get('base')
        a.srd(SO, P_OUT, 5242880)
        a.e(f'v_mov_b32 v{vXL}, s{sZM}')
        nb_ = lambda ps, i: (ps, [(i, rt) for rt in range(4)])
        rb_ = lambda ps, ii: [(ps, [(i, rt) for i in ii]) for rt in range(4)]
        blocks = [nb_(0, 0), nb_(0, 1), nb_(1, 0), nb_(1, 1)] + [nb_(0, i) for i in range(2, 5)] + rb_(0, (5, 6, 7)) + [nb_(1, i) for i in range(2, 13)] + rb_(1, (13, 14, 15))
        pd = cfg.get('pd', 10)
        l_a = [x for x in lq if lv(x) <= 1 and x[1] < 8]; l_b = [x for x in lq if lv(x) == 2]
        rest = sum([H(1, i) for i in range(2, 8)], [])
        wl = [x for x in sum([Wf(i) for i in range(8, 16)], []) if x not in p.id]
        n2 = cfg.get('w2', 8)
        mid = rest[:8]; rest = rest[8:]
        w0 = wl[:n2]; wl = wl[n2:]
        nlate = cfg.get('wlate', 10)
        wz = wl[len(wl) - nlate:]; wl = wl[:len(wl) - nlate]
        while rest or wl:
            mid += rest[:4] + wl[:3]; rest = rest[4:]; wl = wl[3:]
        hl = sum([H(1, i) for i in range(8, 13)], [])
        lq = l_a + w0 + [('Pc', 2)] + l_b + mid[:len(mid) - pd] + [('Pi', 3)] + mid[len(mid) - pd:] + [('Pc', 3)] \
            + hl[:12] + wz[:5] + hl[12:16] + wz[5:] + hl[16:] + HR(1, (13, 14, 15))
        s2 = sch
        if typ == 'A': s2.add(f_publish(3, cfg.get('pubat', 60)))
        BX = {'b': BQ, 'p': list(range(ACC[0], ACC[0] + 20, 4))}
        def next_load():
            if not lq: return False
            it = lq[0]
            if it[0] in ('H0', 'H1', 'W'):
                pl = poolB if (it[0] == 'H0' and poolB) else pool
                if not pl: return False
                if a.vm_n - a.vm_done >= cfg.get('maxout', 40): return False
                lq.pop(0); p2_load(p, it[0], it[1], it[2], pl.pop(0)); return True
            if it[0] == 'Pi':
                lq.pop(0); pid[it[1]] = a.vm(poll_load(FL3, vFL2, 128 * it[1])); return True
            if it[0] == 'Pc':
                lq.pop(0)
                assert sch.keys.get('pub2') and (it[1] == 2 or sch.keys.get('pub3'))
                a.wait(vm=pid[it[1]]); stamp(a, f'l{it[1]}w')
                poll_check(FL3, vFL2, 128 * it[1], None)(a)
                if it[1] == 2: a.e('s_barrier')
                stamp(a, f'l{it[1]}ok'); st['lvl'] = it[1]
                for _ in range(cfg.get('burst', 4)):
                    if lq and lq[0][0] not in ('Pc', 'B'): next_load()
                return True
        def red_writes(ps, rt):
            yield ('delay', 4)
            for ct in range(5):
                yield ('lds', f'ds_write_b128 v{EAw}, {V(ACC[ps]+4*(rt*5+ct),4)} offset:{rt*5120+ct*64}', f'rw{ps}')
        def red0_rest():
            A0 = ACC[0]
            yield ('delay', 3)
            yield ('wl', 'rw0')
            yield ('forcebar',)
            for i in range(5):
                for q in range(4):
                    yield ('lds', f'ds_read_b128 {V(A0+16*i+4*q,4)}, v{EAr} offset:{q*20480+64*i}', f'rr{i}')
            yield ('delay', 2)
            for i in range(5):
                b = A0 + 16 * i
                yield ('wl', f'rr{i}')
                for k in range(4): yield ('v', f'v_add_f32 v{b+k}, v{b+k}, v{b+4+k}')
                for k in range(4): yield ('v', f'v_add_f32 v{b+8+k}, v{b+8+k}, v{b+12+k}')
                for k in range(4): yield ('v', f'v_add_f32 v{b+k}, v{b+k}, v{b+8+k}')
                if i == 4: yield ('s', f's_add_u32 s{sXS}, s{sXS}, 4096')
                yield ('vm', f'buffer_store_dwordx4 {V(b,4)}, v{vL16}, s[{SW}:{SW+3}], s{sXS} offen offset:{1024*(i%4)} sc1', 'xst')
            yield ('forcebar',)
            yield sitem('xst')
            yield ('call', lambda: (st.__setitem__('red0', True), pool.extend(range(A0 + 20, A0 + 80, 4))))
            yield ('after', cfg.get('xdelay', 70), [('wv', 'xst'), ('vm', f'buffer_store_dword v{vT}, v{vXP}, s[{SF}:{SF+3}], 0 offen sc1', None), sitem('xpub'), ('mark', 'xpub')])
        def xch_load():
            yield ('flush',)
            yield ('req', 'xpub')
            yield ('wv', 'xp')
            yield sitem('xw')
            yield ('raw', poll_check(FL3, vXL, 0, None), 4)
            yield sitem('xok')
            for i in range(5):
                if i == 4: yield ('s', f's_add_u32 s{sXL}, s{sXL}, 4096')
                yield ('vm', f'buffer_load_dwordx4 {V(BX["p"][i],4)}, v{vL16}, s[{SW}:{SW+3}], s{sXL} offen offset:{1024*(i%4)} sc1', f'xl{i}')
        for _ in range(cfg.get('ypre', 2)): next_load()
        cnt = 0; ratio = cfg.get('ratio', 4)
        wuse = {i: 0 for i in range(16)}
        for bn, (ps, blk) in enumerate(blocks):
            need = [(f'H{ps}', i, rt) for i, rt in blk] + [('W', i, j) for i, rt in blk for j in range(5)]
            guard = 0
            while any(k not in p.id for k in need):
                if not next_load():
                    a.wait(vm=a.vm_done + 4)
                guard += 1; assert guard < 2000, (bn, lq[:3], len(pool))
            if bn in (0, 4, 11, 17, 22): stamp(a, f'b{bn}')
            if bn == 22: assert st.get('red0')
            if bn == cfg.get('xpat', 21):
                assert st['lvl'] == 3
                sch.keys['xp'] = a.vm(poll_load(FL3, vXL, 0))
            for i, rt in blk:
                a.wait(vm=max(p.id[k] for k in [(f'H{ps}', i, rt)] + [('W', i, j) for j in range(5)]))
                for ct in range(5):
                    d = ACC[ps] + 4 * (rt * 5 + ct)
                    c = '0' if i == 0 else V(d, 4)
                    a.e(f'v_mfma_f32_16x16x32_bf16 {V(d,4)}, {R(p.buf["W",i,ct],4)}, {R(p.buf[f"H{ps}",i,rt],4)}, {c}')
                    cnt += 1
                    did = next_load() if cnt % ratio == 0 else False
                    s2.fill(0 if did else cfg.get('b2', 2))
                r = p.buf[f'H{ps}', i, rt]
                pool.append(r)
                wuse[i] += 1
                if wuse[i] == (8 if i < 8 else 4):
                    for ct in range(5): pool.append(p.buf['W', i, ct])
            if len(blk) == 3:
                s2.add(red_writes(ps, blk[0][1]))
                if bn == 10: s2.add(red0_rest())
            if bn == cfg.get('xlat', 23): s2.add(xch_load())
        assert not lq
        stamp(a, 'mfend'); dbg(5)
        a.e('s_nop 7')
        s2.tick(True); s2.drain()
        assert st.get('base') and not s2.timers and not s2.barq
        a.wait_all(vm=False)
        a.e('s_barrier')
        A1 = ACC[1]
        rd = {}
        for i in range(5):
            for q in range(4):
                rd[i, q] = a.lds(f'ds_read_b128 {V(A1+16*i+4*q,4)}, v{EAr} offset:{q*20480+64*i}')
        for i in range(5):
            a.wait(vm=sch.keys[f'xl{i}'])
            B = BX['b'][i]; X = BX['p'][i]
            for k in (0, 2): a.e(f'v_pk_add_f32 {P(B+k)}, {P(B+k)}, {P(X+k)}')
        for i in range(5):
            a.wait(lg=rd[i, 3])
            b = A1 + 16 * i; B = BX['b'][i]
            for k in (0, 2):
                a.e(f'v_pk_add_f32 {P(b+k)}, {P(b+k)}, {P(b+4+k)}\nv_pk_add_f32 {P(b+8+k)}, {P(b+8+k)}, {P(b+12+k)}')
            for k in (0, 2): a.e(f'v_pk_add_f32 {P(B+k)}, {P(B+k)}, {P(b+k)}')
            for k in (0, 2): a.e(f'v_pk_add_f32 {P(B+k)}, {P(B+k)}, {P(b+8+k)}')
            a.vm(f'buffer_store_dwordx4 {V(B,4)}, v{EAo}, s[{SO}:{SO+3}], s{sOO} offen offset:{64*i}')
        stamp(a, 'st')
        stamp_out(a)
        if cfg.get('dbg'):
            a.e('s_waitcnt vmcnt(0)'); dbg(6)
            a.e(f'''s_or_b32 s0, s3, s2
s_cmp_eq_u32 s0, 0
s_cselect_b32 s1, 0, {OOB}
s_cmp_eq_u32 s0, 200
s_cselect_b32 s1, 32, s1
v_lshlrev_b32 v4, 2, v1
v_mov_b32 v6, s101
v_readlane_b32 s0, v0, 63
v_add_u32 v4, s1, v4
s_nop 1
v_mov_b32 v7, s0
v_cmp_gt_u32 vcc, 64, v4
v_add_co_u32 v6, s[4:5], v6, v4
s_nop 1
v_addc_co_u32 v7, s[4:5], 0, v7, s[4:5]
s_and_b64 exec, vcc, 0xff
s_cbranch_execz L_end
global_store_dword v[6:7], v0, off''')
        a.e('s_endpgm')
    for s in a.cold: a.e(s)
    a.label('L_end')
    a.e('s_endpgm')
    return a

HEADER = open('parallel_sum__ssm_conv_s5__glu_gated_glu__prompt.s.ref').read().split('; Override launch')[0]
def assemble(a):
    out = HEADER + '; @launch grid=(256,1,1) block=(256,1,1) lds=163840\n'
    out += '.amdgcn_target "amdgcn-amd-amdhsa--gfx950"\n.text\n'
    errs = check_hazards(a.lines)
    for e in errs: print('HAZARD', e)
    assert not errs
    out += a.text()
    out += f'''.section .rodata,"a"
.p2align 6
.amdhsa_kernel {KNAME}
  .amdhsa_next_free_vgpr 512
  .amdhsa_next_free_sgpr 102
  .amdhsa_accum_offset 256
  .amdhsa_group_segment_fixed_size 0
  .amdhsa_kernarg_size 128
  .amdhsa_user_sgpr_count 2
  .amdhsa_user_sgpr_kernarg_segment_ptr 1
  .amdhsa_system_sgpr_workgroup_id_x 1
.end_amdhsa_kernel
'''
    return out
if __name__ == '__main__':
    cfg = dict(k1map='R', slots=6, tmall=1)
    for kv in sys.argv[2:]:
        k, v = kv.split('=')
        if k == 'stamp': STAMP[0] = True
        elif k == 'sleep': SLEEP[0] = int(v)
        elif k == 'only': STAMP[0] = True; ONLY[0] = v.split('.'); cfg['only'] = v
        else: cfg[k] = int(v) if v.isdigit() else v
    txt = assemble(kernel(cfg))
    if STAMP[0]: txt = '; STAMPS ' + ','.join(SNAMES) + '\n; CFG ' + str(cfg) + '\n' + txt
    open(sys.argv[1], 'w').write(txt)
```

```python
import sys, copy
from asmlib import *

KNAME = 'parallel_sum__ssm_conv_s5__glu_gated_glu__prompt_kernel'
XNF_OFF = 0
HF_OFF = 4 << 20
W2F_OFF = 20 << 20
AGG_OFF = 24 << 20
NONCE_OFF = 25 << 20
FLG_OFF = (25 << 20) + 131072
DIAG_OFF = 26 << 20
WS_BYTES = 32 << 20
NKS = 94
GOLD = 0x9e3779b9
P_X, P_LRE, P_LIM, P_BRE, P_BIM, P_CRE, P_CIM, P_LDT, P_DSK, P_BX, P_WG, P_WU, P_WD, P_OUT, P_DBG, P_WS = [16 + 2 * i for i in range(16)]
NS = 9
SCR = NS * 16384
LOG2E = 0x3fb8aa3b
NLOG2E = 0xbfb8aa3b
OOB = 0x40000000
STAT_OFF = (25 << 20) + 4096
XCH_OFF = 27 << 20
F1_OFF, FX_OFF = 131072, 163840
SW, SG, SU, SB, SA1, SA2, SH, SF = 48, 52, 56, 60, 64, 68, 72, 76
SP, SR = SA1, SA2
SO, SXX, SDK = SG, SA1, SB
sRB, sSL, sD1, sD2 = 4, 5, 6, 7
sRBP, sNB = 8, 9
sDOFF1, sDOFF2, sQOFF1, sQOFF2 = 10, 11, 12, 13
sHB = 14
sT0, sT1 = 80, 81
sM0B, sXO = 82, 83
sMASK = 84
sCNT, sOOBK = 98, 99
sH2 = (18, 19); sW2, sOO = 20, 21
sXS, sXL = 22, 23
sSTO, sDKO, sXO2 = 24, 25, 26
sHL, sWL = 27, 30
sZM = 31
AGS = 8704
sNEEDA = 28
sTP = 34
sP0, sP1 = 44, 45
vD = [3, 4, 5, 6]; vQ = [7, 8]
vRQ = [[9, 10, 11], [12, 13, 14]]
vRD = [15, 16, 17, 18]
vHG, vL16, vAGW, vAGR, vPUB, vTW, vTR, vT = 19, 20, 21, 22, 23, 24, 25, 26
vFP = 27
C1, C2 = 28, 44
TMP = 60
GOF = TMP + 20; EXP = TMP + 28
ACC_D, ACC_A, ACC_B = 96, 128, 192
XF = 256; WB = 256 + 160
cLr, cLi, cnLi, cP, cQn, cnP, c16r, c16i, c128r, c128i, c256r, c256i, cqr, cqi, cPr, cPi = range(16)

STAMP = [False]
SNAMES = []
ONLY = [None]
def stamp(a, nm, real=False):
    if not STAMP[0]: return
    if ONLY[0] is not None:
        if nm not in ONLY[0] and nm not in ('rt0', 'rt1', 't0', 'end'): return
        if nm not in ('t0', 'end'): real = True
    if nm not in SNAMES: SNAMES.append(nm)
    i = SNAMES.index(nm); assert i < 64
    a.e(f'{"s_memrealtime" if real else "s_memtime"} s[100:101]')
    a.wait_all(vm=False)
    a.e(f'v_writelane_b32 v0, s100, {i}')
def stamp_out(a):
    if not STAMP[0]: return
    a.e('s_waitcnt vmcnt(0)')
    stamp(a, 'end'); stamp(a, 'rt1', True)
    a.e(f'''s_lshl_b32 s100, s2, 2
s_add_u32 s100, s100, s3
s_lshl_b32 s100, s100, 8
s_add_u32 s100, s100, {DIAG_OFF}
v_lshlrev_b32 v4, 2, v1
buffer_store_dword v0, v4, s[{SW}:{SW+3}], s100 offen''')
def sitem(nm): return ('raw', lambda a: stamp(a, nm), 0)

def items(text, kind=None):
    for ln in text.strip().split('\n'):
        ln = ln.strip()
        if not ln: continue
        op = ln.split()[0]
        if op in TRANS: yield ('t', ln)
        elif op.startswith('s_'): yield ('s', ln)
        else: yield ('v', ln)
def chain(*gens):
    for g in gens: yield from g

def bfround_t(d, s): return f'v_cvt_pk_bf16_f32 v{d}, v{s}, v{s}\nv_lshlrev_b32 v{d}, 16, v{d}\n'
def cmul_sq(dr, di, sr, si, t):
    return f'v_mul_f32 v{t}, v{si}, v{si}\nv_mul_f32 v{di}, v{sr}, v{si}\nv_fma_f32 v{dr}, v{sr}, v{sr}, -v{t}\nv_add_f32 v{di}, v{di}, v{di}\n'
def ssm_consts(C, l0):
    t = TMP + 8
    s = f'''v_lshlrev_b32 v{l0+2}, 16, v{l0+2}
v_mul_f32 v{l0+2}, {LOG2E}, v{l0+2}
v_exp_f32 v{l0+2}, v{l0+2}
v_lshlrev_b32 v{l0}, 16, v{l0}
v_lshlrev_b32 v{l0+1}, 16, v{l0+1}
''' + bfround_t(l0 + 2, l0 + 2) + f'''v_mul_f32 v{t}, v{l0+2}, v{l0}
v_mul_f32 v{t+1}, v{l0+2}, v{l0+1}
v_mul_f32 v{t}, {LOG2E}, v{t}
v_mul_f32 v{t+1}, 0.15915494, v{t+1}
v_exp_f32 v{t}, v{t}
v_fract_f32 v{t+1}, v{t+1}
v_cos_f32 v{t+2}, v{t+1}
v_sin_f32 v{t+3}, v{t+1}
v_mul_f32 v{t+4}, v{l0}, v{l0}
v_fmac_f32 v{t+4}, v{l0+1}, v{l0+1}
v_mul_f32 v{C+cLr}, v{t}, v{t+2}
v_mul_f32 v{C+cLi}, v{t}, v{t+3}
v_rcp_f32 v{t+4}, v{t+4}
v_sub_f32 v{C+cnLi}, 0, v{C+cLi}
v_add_f32 v{t+5}, -1.0, v{C+cLr}
v_add_f32 v{t+4}, v{t+4}, v{t+4}
v_mul_f32 v{t+6}, v{t+5}, v{l0}
v_fmac_f32 v{t+6}, v{C+cLi}, v{l0+1}
v_mul_f32 v{t+7}, v{t+5}, v{l0+1}
v_fmac_f32 v{t+7}, v{C+cnLi}, v{l0}
v_mul_f32 v{C+cP}, v{t+6}, v{t+4}
v_mul_f32 v{C+cQn}, v{t+7}, v{t+4}
v_sub_f32 v{C+cnP}, 0, v{C+cP}
'''
    s += cmul_sq(t, t + 1, C + cLr, C + cLi, t + 8) + cmul_sq(t + 2, t + 3, t, t + 1, t + 8) + cmul_sq(t, t + 1, t + 2, t + 3, t + 8)
    s += cmul_sq(C + c16r, C + c16i, t, t + 1, t + 8) + cmul_sq(t, t + 1, C + c16r, C + c16i, t + 8) + cmul_sq(t + 2, t + 3, t, t + 1, t + 8)
    s += cmul_sq(C + c128r, C + c128i, t + 2, t + 3, t + 8) + cmul_sq(C + c256r, C + c256i, C + c128r, C + c128i, t + 8)
    s += f'''s_mov_b32 s{sT0}, 0
s_mov_b32 s{sT1}, -1
v_cndmask_b32 v{C+cqr}, 1.0, v{C+c16r}, s[{sT0}:{sT1}]
v_cndmask_b32 v{C+cqi}, 0, v{C+c16i}, s[{sT0}:{sT1}]
'''
    for bit, (pr, pi) in ((0, (t, t + 1)), (1, (t + 2, t + 3))):
        s += f'''s_bfe_i32 s{sT0}, s3, {0x10000 | bit}
s_mov_b32 s{sT1}, s{sT0}
v_cndmask_b32 v{t+4}, 1.0, v{pr}, s[{sT0}:{sT1}]
v_cndmask_b32 v{t+5}, 0, v{pi}, s[{sT0}:{sT1}]
v_mul_f32 v{t+6}, v{C+cqr}, v{t+4}
v_mul_f32 v{t+7}, v{C+cqr}, v{t+5}
v_fma_f32 v{C+cqr}, -v{C+cqi}, v{t+5}, v{t+6}
v_fma_f32 v{C+cqi}, v{C+cqi}, v{t+4}, v{t+7}
'''
    s += f'v_mov_b32 v{C+cPr}, 0\nv_mov_b32 v{C+cPi}, 0\n'
    return s

def cfma(dr, di, lr, li, sr, si):
    yield ('v', f'v_fmac_f32 v{dr}, v{lr}, v{sr}')
    yield ('v', f'v_fmac_f32 v{di}, v{lr}, v{si}')
    yield ('v', f'v_fma_f32 v{dr}, -v{li}, v{si}, v{dr}')
    yield ('v', f'v_fmac_f32 v{di}, v{li}, v{sr}')

def f_agg(acc, C, area, SA, tag):
    sr, si = acc, acc + 16
    for r in range(1, 16):
        t = TMP + 2 * (r & 1)
        yield ('v', f'v_fma_f32 v{t}, v{C+cLr}, v{sr}, v{acc+r}')
        yield ('v', f'v_fma_f32 v{t+1}, v{C+cLr}, v{si}, v{acc+16+r}')
        yield ('v', f'v_fmac_f32 v{t}, v{C+cnLi}, v{si}')
        yield ('v', f'v_fmac_f32 v{t+1}, v{C+cLi}, v{sr}')
        sr, si = t, t + 1
    yield ('lds', f'ds_write_b64 v{vAGW}, v[{sr}:{si}] offset:{area}', tag + 'w')
    yield ('delay', 2)
    yield ('wl', tag + 'w')
    yield ('forcebar',)
    g = TMP + 4
    for j in range(8):
        yield ('lds', f'ds_read_b64 v[{g+2*j}:{g+2*j+1}], v{vAGR} offset:{area+256*j}', tag + f'r{j}')
    yield ('delay', 3)
    yield ('wl', tag + 'r7')
    for j in range(1, 8):
        pr, pi = g + 2 * (j - 1), g + 2 * (j - 1) + 1
        yield from cfma(g + 2 * j, g + 2 * j + 1, C + c16r, C + c16i, pr, pi)
    yield ('v', f'v_and_b32 v{TMP}, s{sZM}, v{g+14}')
    yield ('v', f'v_mov_b32 v{TMP+1}, v{vT}')
    yield ('v', f'v_and_b32 v{TMP+2}, s{sZM}, v{g+15}')
    yield ('v', f'v_mov_b32 v{TMP+3}, v{vT}')
    yield ('vm', f'buffer_store_dwordx4 v[{TMP}:{TMP+3}], v{vPUB}, s[{SA}:{SA+3}], 0 offen sc1', tag + 'pub')
    yield sitem(tag + 'pub')
    for j in range(1, 8):
        pr, pi = g + 2 * (j - 1), g + 2 * (j - 1) + 1
        m = sMASK + 2 * (j - 1)
        yield ('v', f'v_cndmask_b32 v{C+cPr}, v{C+cPr}, v{pr}, s[{m}:{m+1}]')
        yield ('v', f'v_cndmask_b32 v{C+cPi}, v{C+cPi}, v{pi}, s[{m}:{m+1}]')

def ren(acc, spare): return [spare] + [acc + r for r in range(15)]
def f_coef(acc, C, spare):
    an = ren(acc, spare)
    for r in range(16):
        ar, br = acc + r, acc + 16 + r
        yield ('v', f'v_mul_f32 v{an[r]}, v{C+cP}, v{ar}')
        yield ('v', f'v_fmac_f32 v{an[r]}, v{C+cQn}, v{br}')
        yield ('v', f'v_mul_f32 v{br}, v{C+cnP}, v{br}')
        yield ('v', f'v_fmac_f32 v{br}, v{C+cQn}, v{ar}')
def f_gather_issue(G, SA, tag, fill=None):
    for j in range(8):
        yield ('vm', f'buffer_load_dwordx4 {V(G[j],4)}, v{GOF+j}, s[{SA}:{SA+3}], 0 offen sc1', tag + f'g{j}')
        if fill is not None:
            for _ in range(6):
                x = next(fill, None)
                if x is not None: yield x
        else: yield ('delay', 1)
SPIN = 20000
SLEEP = [4]
def tagchk(G):
    L = [f'v_bitop3_b32 v{G[j]+1}, v{G[j]+1}, v{G[j]+3}, v{vT} bitop3:0x7e' for j in range(8)]
    L += [f'v_or3_b32 v{G[0]+1}, v{G[0]+1}, v{G[1]+1}, v{G[2]+1}', f'v_or3_b32 v{G[3]+1}, v{G[3]+1}, v{G[4]+1}, v{G[5]+1}',
          f'v_or3_b32 v{G[0]+1}, v{G[0]+1}, v{G[6]+1}, v{G[7]+1}', f'v_or_b32 v{G[0]+1}, v{G[0]+1}, v{G[3]+1}']
    return L
def f_carry(G, acc, C, spare, SA, sD, tag, kb=0):
    yield ('wv', tag + 'g7')
    for ln in tagchk(G): yield ('v', ln)
    t0 = G[0] + 1
    def chk(a):
        slow = a.newlabel('slow'); ok = a.newlabel('ok')
        a.e(f'v_cmp_ne_u32 vcc, 0, v{t0}\ns_nop 1\ns_cmp_lg_u64 vcc, 0\ns_cbranch_scc1 {slow}')
        a.label(ok)
        s = f'{slow}:\ns_mov_b32 s{sCNT}, 0\n{slow}_l:\ns_sleep {SLEEP[0]}\n'
        for j in range(8):
            s += f'buffer_load_dwordx4 {V(G[j],4)}, v{GOF+j}, s[{SA}:{SA+3}], 0 offen sc1\n'
        s += 's_waitcnt vmcnt(0)\n' + '\n'.join(tagchk(G)) + '\n'
        s += f'''v_cmp_ne_u32 vcc, 0, v{t0}
s_add_u32 s{sCNT}, s{sCNT}, 1
s_cmp_gt_u32 s{sCNT}, {SPIN}
s_cbranch_scc1 {ok}
s_cmp_lg_u64 vcc, 0
s_cbranch_scc1 {slow}_l
s_branch {ok}
'''
        a.cold.append(s)
    yield sitem(tag + 'w')
    yield ('raw', chk, 4)
    yield sitem(tag + 'ok')
    for j in range(6, -1, -1):
        yield from cfma(G[j], G[j] + 2, C + c256r, C + c256i, G[j + 1], G[j + 1] + 2)
    g0, g1 = G[0], G[1]
    yield ('v', f'v_mov_b32 v{g1}, v{g0}')
    yield ('v', f'v_mov_b32 v{g1+2}, v{g0+2}')
    yield ('s', f's_lshl_b32 s{sT0}, s{sD}, 13')
    yield ('s', f's_add_u32 s{sT0}, s{sT0}, s{sHB}')
    yield ('v', f'v_permlane32_swap_b32 v{g0}, v{g1}')
    yield ('v', f'v_permlane32_swap_b32 v{g0+2}, v{g1+2}')
    yield ('s', 's_nop 0')
    yield ('s', f's_add_u32 s{sT1}, s{sT0}, 4096')
    yield from cfma(g0, g0 + 2, C + c128r, C + c128i, g1, g1 + 2)
    yield from cfma(C + cPr, C + cPi, C + cqr, C + cqi, g0, g0 + 2)
    yield ('v', f'v_mul_f32 v{g0}, v{C+cP}, v{C+cPr}')
    yield ('v', f'v_mul_f32 v{g0+1}, v{C+cQn}, v{C+cPr}')
    yield ('v', f'v_fmac_f32 v{g0}, v{C+cQn}, v{C+cPi}')
    yield ('v', f'v_fmac_f32 v{g0+1}, v{C+cnP}, v{C+cPi}')
    an = ren(acc, spare)
    pr, pi = g0, g0 + 1
    for r in range(16):
        ar, br = an[r], acc + 16 + r
        yield ('v', f'v_fmac_f32 v{ar}, v{C+cLr}, v{pr}')
        yield ('v', f'v_fmac_f32 v{br}, v{C+cLr}, v{pi}')
        yield ('v', f'v_fmac_f32 v{ar}, v{C+cLi}, v{pi}')
        yield ('v', f'v_fmac_f32 v{br}, v{C+cnLi}, v{pr}')
        pr, pi = ar, br
    for comp in range(2):
        src = an if comp == 0 else [acc + 16 + r for r in range(16)]
        for k in range(8):
            yield ('v', f'v_cvt_pk_bf16_f32 v{G[2*comp+(k>>2)]+(k&3)}, v{src[2*k]}, v{src[2*k+1]}')
        yield ('lds', f'ds_write_b128 v{vTW}, {V(G[2*comp],4)}', tag + f'tw{comp}a')
        yield ('lds', f'ds_write_b128 v{vTW}, {V(G[2*comp+1],4)} offset:16', tag + f'tw{comp}b')
        yield ('delay', 0)
        for h2 in range(2):
            for e in range(2):
                d = G[4 + 2 * comp + h2] + 2 * e
                yield ('lds', f'ds_read_b64_tr_b16 v[{d}:{d+1}], v{vTR} offset:{h2*32+e*320}', tag + f'tr{comp}{h2}{e}')
            yield ('delay', 0)
    yield ('delay', 4)
    yield ('wl', tag + 'tr111')
    for comp in range(2):
        for h2 in range(2):
            yield ('vm', f'buffer_store_dwordx4 {V(G[4+2*comp+h2],4)}, v{vL16}, s[{SH}:{SH+3}], s{sT0+comp} offen offset:{h2*1024} sc1', 'lastH')
            yield ('delay', 0)

def f_epiq(acc, kbase):
    yield ('s', f's_lshl_b32 s{sXO}, s{sSL}, 13')
    yield ('s', f's_add_u32 s{sXO}, s{sXO}, s{sHB}')
    yield ('s', f's_add_u32 s{sXO}, s{sXO}, {4096*kbase}')
    g = lambda e: acc + 32 * (e >> 4) + (e & 15)
    for n in range(32 + 4):
        if n < 32: yield ('v', f'v_mul_f32 v{g(n)}, {NLOG2E}, v{g(n)}')
        if 0 <= n - 1 < 32: yield ('t', f'v_exp_f32 v{g(n-1)}, v{g(n-1)}')
        if 0 <= n - 2 < 32: yield ('v', f'v_add_f32 v{g(n-2)}, 1.0, v{g(n-2)}')
        if 0 <= n - 3 < 32: yield ('t', f'v_rcp_f32 v{g(n-3)}, v{g(n-3)}')
        e = n - 4
        if n >= 34: yield ('s', 's_nop 0')
        if 0 <= e < 32:
            yield ('v', f'v_mul_f32 v{g(e)}, v{g(e)}, v{g(e)+16}')
            if e & 1:
                U = acc + 32 * (e >> 4) + 16; c = (e >> 3) & 1
                yield ('v', f'v_cvt_pk_bf16_f32 v{U+8*c+((e&7)>>1)}, v{g(e-1)}, v{g(e)}')
                if (e & 7) == 7:
                    yield ('vm', f'buffer_store_dwordx4 v[{U+8*c}:{U+8*c+3}], v{vHG}, s[{SW}:{SW+3}], s{sXO} offen offset:{512*c} sc1', 'lastH')
                    if e == 15: yield ('s', f's_add_u32 s{sXO}, s{sXO}, 4096')

def f_publish(level, delay):
    yield sitem(f'st{level}')
    yield ('after', delay, [sitem(f'ak{level}'), ('wv', 'lastH'), ('vm', f'buffer_store_dword v{vT}, v{vFP}, s[{SF}:{SF+3}], 0 offen offset:{128*level} sc1', None), sitem(f'pub{level}'), ('mark', f'pub{level}')])

def poll_load(dst, vaddr, off, n=1):
    x = '' if n == 1 else f'x{n}'
    return f'buffer_load_dword{x} {V(dst,n)}, v{vaddr}, s[{SF}:{SF+3}], 0 offen offset:{off} sc1'
def poll_check(dst, vaddr, off, need, n=1):
    def cmp_txt():
        s = ''
        if n > 1:
            s += f'v_xor_b32 v{dst}, v{dst}, v{vT}\n'
            for k in range(1, n): s += f'v_bitop3_b32 v{dst}, v{dst}, v{dst+k}, v{vT} bitop3:0xf6\n'
            s += f'v_cmp_ne_u32 vcc, 0, v{dst}\n'
        else: s += f'v_cmp_ne_u32 vcc, v{dst}, v{vT}\n'
        s += 's_nop 1\n'
        s += f's_and_b64 s[{sTP}:{sTP+1}], vcc, s[{need}:{need+1}]\n' if need else 's_cmp_lg_u64 vcc, 0\n'
        return s
    def chk(a):
        slow = a.newlabel('slow'); ok = a.newlabel('ok')
        a.e(cmp_txt() + f's_cbranch_scc1 {slow}')
        a.label(ok)
        a.cold.append(f'''{slow}:
s_mov_b32 s{sCNT}, 0
{slow}_l:
s_add_u32 s{sCNT}, s{sCNT}, 1
s_cmp_gt_u32 s{sCNT}, {SPIN}
s_cbranch_scc1 {ok}
s_sleep {SLEEP[0]}
{poll_load(dst, vaddr, off, n)}
s_waitcnt vmcnt(0)
{cmp_txt()}s_cbranch_scc1 {slow}_l
s_branch {ok}
''')
    return chk

class Sched:
    def __init__(self, a):
        self.a = a; self.keys = {}
        self.stream = None; self.pend = None; self.delay = 0; self.blocked = False
        self.timers = []; self.barq = []; self.maxlds = 2
    def tick(self, force=False):
        used = 0
        for tm in list(self.timers):
            if len(tm) > 2 and not tm[2]() and not force: continue
            tm[0] -= 1
            if tm[0] <= 0 or force:
                self.timers.remove(tm)
                for it in tm[1]: used += self.emit_item(it)
        return used
    def add(self, gen):
        self.stream = gen if self.stream is None else chain(self.stream, gen)
    def push(self, gen):
        rest = ([self.pend] if self.pend is not None else [])
        self.pend = None; self.delay = 0
        self.stream = chain(gen, rest, self.stream if self.stream is not None else [])
    def peek(self):
        if self.pend is None and self.stream is not None:
            self.pend = next(self.stream, None)
            if self.pend is None: self.stream = None
        return self.pend
    def emit_item(self, it):
        a = self.a; k = it[0]
        if k in ('v', 's'): a.e(it[1]); return 1
        if k == 't': a.e(it[1]); return 2
        if k == 'lds': self.keys[it[2]] = a.lds(it[1]); return 1
        if k == 'vm': self.keys[it[2]] = a.vm(it[1]); return 1
        if k == 'wl': return 1 if a.wait(lg=self.keys[it[1]]) else 0
        if k == 'wv': return 1 if a.wait(vm=self.keys[it[1]]) else 0
        if k == 'raw': it[1](a); return it[2]
        if k == 'forcebar': a.e('s_barrier'); return 1
        if k == 'call': it[1](); return 0
        if k == 'after':
            its = [((x[0] + 'i', self.keys[x[1]]) if x[0] in ('wv', 'wl') else x) for x in it[2]]
            self.timers.append([it[1], its]); return 0
        if k == 'when': self.timers.append([it[2], it[3], it[1]]); return 0
        if k == 'wvi': return 1 if a.wait(vm=it[1]) else 0
        if k == 'wli': return 1 if a.wait(lg=it[1]) else 0
        if k == 'onbar': self.barq.append(it[1]); return 0
        if k == 'flush': return self.tick(True)
        if k == 'mark': self.keys[it[1]] = True; return 0
        if k == 'req': assert self.keys.get(it[1]), it[1]; return 0
        raise ValueError(k)
    def head_vm(self):
        return self.delay <= 0 and not self.blocked and self.peek() is not None and self.pend[0] == 'vm'
    def fill(self, budget, vm_ok=True):
        budget -= self.tick()
        if self.delay > 0: self.delay -= 1; return
        if budget <= 0: return
        used = 0; valu_seen = False; self.nl = 0
        while not self.blocked:
            it = self.peek()
            if it is None: return
            k = it[0]
            if k == 'delay': self.delay = it[1]; self.pend = None; return
            if k == 'needbar': self.blocked = True; self.pend = None; return
            if k == 'until':
                if not it[1](): return
                self.pend = None; continue
            if k in ('lds', 'vm') and valu_seen: return
            if k == 'vm':
                if not vm_ok: return
                vm_ok = False
            if k == 'lds':
                nl = getattr(self, 'nl', 0)
                if nl >= self.maxlds: return
                self.nl = nl + 1
            cost = 2 if k == 't' else it[2] if k == 'raw' else 1 if k in ('v', 's', 'lds', 'vm', 'wl', 'wv', 'forcebar') else 0
            if used + cost > budget and (used > 0 or (k == 't' and budget < 2)): return
            self.pend = None
            used += self.emit_item(it)
            if k in ('v', 't', 'raw'): valu_seen = True
    def on_barrier(self):
        self.blocked = False
        q = self.barq; self.barq = []
        for its in q:
            for it in its: self.emit_item(it)
    def drain(self, every=None):
        n = 0
        while True:
            if self.blocked:
                self.a.e('s_barrier'); self.blocked = False
            it = self.peek()
            if it is None: return
            self.pend = None
            if it[0] in ('delay', 'until'): continue
            if it[0] == 'needbar': self.blocked = True; continue
            c = self.emit_item(it); n += c
            self.acc = getattr(self, 'acc', 0) + c
            if self.acc >= 6: self.acc = 0; self.tick()
            if every and n >= every[0]:
                n = 0; every[1]()

def P(r): return f'v[{r}:{r+1}]'

def kernel(cfg):
    a = Asm(); a.cold = []
    name = KNAME
    ntx = ' nt' if cfg.get('ntx') else ''
    ntw = ' nt' if cfg.get('ntw') else ''
    a.e(f'.globl {name}\n.p2align 8\n.type {name},@function')
    a.label(name)
    a.e(f's_cmp_ge_u32 s2, 256\ns_cbranch_scc1 L_end')
    if cfg.get('dbg'): a.e('s_memrealtime s[100:101]')
    a.e('''s_load_dwordx16 s[16:31], s[0:1], 0
s_load_dwordx16 s[32:47], s[0:1], 64
v_lshrrev_b32 v2, 6, v0
v_and_b32 v1, 63, v0
v_readfirstlane_b32 s3, v2''')
    if cfg.get('scr'):
        a.e('s_lshr_b32 s10, s2, 3\ns_lshl_b32 s11, s2, 5\ns_or_b32 s2, s10, s11\ns_and_b32 s2, s2, 255')
    a.e('s_and_b32 s10, s2, 7\ns_lshr_b32 s11, s2, 3')
    mp = cfg['k1map']
    lgr = {'T': 1, 'P': 2, 'R': 3, 'S': 4}[mp]
    lx = 4 - lgr
    ls = 3 - lx
    sSH = 15
    a.e(f'''s_lshr_b32 s{sSH}, s11, {5-lgr}
s_lshr_b32 s{sRB}, s10, {ls}
s_lshl_b32 s{sRB}, s{sRB}, {lgr}
s_add_u32 s{sRB}, s{sRB}, s{sSH}
s_and_b32 s{sSL}, s11, {(32>>lgr)-1}
s_lshl_b32 s{sSL}, s{sSL}, {ls}
s_and_b32 s12, s10, {(1<<ls)-1}
s_add_u32 s{sSL}, s{sSL}, s12
s_lshr_b32 s{sRBP}, s10, 1
s_lshl_b32 s{sRBP}, s{sRBP}, 2
s_lshr_b32 s12, s11, 3
s_add_u32 s{sRBP}, s{sRBP}, s12
s_and_b32 s{sNB}, s11, 7
s_lshl_b32 s10, s{sSL}, 1
s_sub_u32 s11, s10, 12
s_min_u32 s13, s{sSL}, 9
s_cmp_ge_u32 s{sSL}, 11
s_cselect_b32 s{sD1}, s11, s13
s_add_u32 s{sD2}, s{sD1}, 1''')
    nsh = 16 if cfg.get('tmall') else (1 << lgr)
    if cfg.get('tmall'): a.e(f's_mov_b32 s{sSH}, s{sRB}')
    RT = 192
    vRTR, vRTL = 208, 209
    XV, XR, DV = 96, 116, 212
    tl = 128
    vJ, vRHO, vXA, vLW, vLR, vXS, vFL0, vSTA, vTQ, vTD, vPAR, vZ = range(tl + 8, tl + 20)
    DUM = 240
    sU, sKS, sCG, sRO, sROLE, sRLO, sRST = 84, 85, 86, 87, 99, 96, 97
    sXS0, sXS1, sXS2 = 89, 90, 91
    t = tl
    a.e(f'''s_lshl_b32 s12, s{sRB}, 2
s_lshr_b32 s10, s{sSL}, 2
s_add_u32 s12, s12, s10
s_and_b32 s13, s{sSL}, 3
v_and_b32 v{vJ}, 31, v1
v_lshrrev_b32 v{t}, 5, v1
s_lshl_b32 s10, s3, 1
v_add_u32 v{vRHO}, s10, v{t}
v_and_b32 v{t}, 3, v{vRHO}
v_lshrrev_b32 v{t+1}, 2, v{vRHO}
v_lshlrev_b32 v{t+1}, 4, v{t+1}
v_add_u32 v{t}, v{t}, v{t+1}
s_lshl_b32 s10, s12, 5
s_lshl_b32 s11, s13, 2
s_add_u32 s10, s10, s11
v_add_u32 v{t}, s10, v{t}
v_lshlrev_b32 v{t+1}, 3, v{vJ}
v_mul_u32_u24 v{vXA}, 1280, v{t}
v_add_u32 v{vXA}, v{vXA}, v{t+1}
v_lshlrev_b32 v{t}, 3, v{t}
v_add_u32 v{t}, {STAT_OFF}, v{t}
v_cmp_eq_u32 vcc, 0, v{vJ}
v_mov_b32 v{vSTA}, {OOB}
v_lshlrev_b32 v{vL16}, 4, v1
v_cndmask_b32 v{vSTA}, v{vSTA}, v{t}, vcc
v_mov_b32 v{vZ}, {NONCE_OFF}
s_lshl_b32 s{sM0B}, s3, 12
s_mul_i32 s{sXS0}, s12, 40960
s_lshl_b32 s13, s13, 7
s_add_u32 s{sXS0}, s{sXS0}, s13
s_add_u32 s{sXS0}, s{sXS0}, s{sM0B}
s_add_u32 s{sXS1}, s{sXS0}, 16384
s_cmp_ge_u32 s3, 2
s_cselect_b32 s{sXS2}, {OOB}, 32768
s_add_u32 s{sXS2}, s{sXS2}, s{sXS0}''')
    a.e(f'''v_lshrrev_b32 v{t}, 3, v1
v_and_b32 v{t+1}, 7, v1
v_lshrrev_b32 v{t+2}, 1, v{t}
v_xor_b32 v{t+3}, v{t+1}, v{t+2}
v_lshlrev_b32 v{t+3}, 4, v{t+3}
v_mul_u32_u24 v{t+4}, 1280, v{t}
v_add_u32 v{vD[0]}, v{t+4}, v{t+3}
v_xor_b32 v{t+3}, 64, v{t+3}
v_add_u32 v{vD[1]}, v{t+4}, v{t+3}
v_add_u32 v{vD[1]}, {10240-1024}, v{vD[1]}
v_add_u32 v{vD[2]}, {2*(10240-1024)}, v{vD[0]}
v_add_u32 v{vD[3]}, {2*(10240-1024)}, v{vD[1]}
v_lshl_add_u32 v{vRTL}, v{t+1}, 4, v{t+4}
v_and_b32 v{t+2}, 1, v{t+2}
v_lshlrev_b32 v{t+2}, 2, v{t+2}
v_xor_b32 v{t+3}, v{t+1}, v{t+2}
v_lshlrev_b32 v{t+3}, 4, v{t+3}
v_mul_u32_u24 v{t+4}, 3456, v{t}
v_add_u32 v{vQ[0]}, v{t+4}, v{t+3}
v_add_u32 v{vQ[1]}, {8*3456-1024}, v{vQ[0]}
v_xor_b32 v{t+3}, v{t}, v{t+1}
v_lshlrev_b32 v{t+3}, 4, v{t+3}
v_lshl_add_u32 v{t+3}, v{t}, 7, v{t+3}
s_lshl_b32 s14, s3, 10
s_add_u32 s14, s14, {SCR}
v_add_u32 v{vLR}, s14, v{t+3}
v_lshlrev_b32 v{t+1}, 4, v{t+1}
v_lshl_add_u32 v{vXS}, v{t}, 9, v{t+1}
s_lshr_b32 s14, s3, 1
s_lshl_b32 s10, s{sSH}, 1
s_add_u32 s{sSH}, s10, s14
s_lshl_b32 s14, s14, 7
s_mul_i32 s{sDOFF1}, s{sD1}, 40960
s_add_u32 s{sDOFF1}, s{sDOFF1}, s14
s_add_u32 s{sDOFF2}, s{sDOFF1}, 40960
s_mul_i32 s14, s3, {16*3456}
s_lshl_b32 s{sQOFF1}, s{sSL}, 7
s_add_u32 s{sQOFF1}, s{sQOFF1}, s14
s_add_u32 s{sQOFF2}, s{sQOFF1}, 2048
s_lshl_b32 s{sXO}, s{sRB}, 2
s_add_u32 s{sXO}, s{sXO}, s3
s_mul_i32 s{sXO}, s{sXO}, 40960''')
    assert XNF_OFF == 0
    RQ = 320 // nsh; RD = 160 // nsh
    nq = -(-RQ // 64); rq = RQ // nq
    a.e(f'''s_mul_i32 s14, s{sSH}, {RQ}
v_add_u32 v{t}, s14, v1
v_mul_u32_u24 v{t}, 3456, v{t}
v_cmp_gt_u32 vcc, {rq}, v1
v_mov_b32 v{vTQ}, {OOB}
s_mul_i32 s14, s{sSH}, {RD}
v_cndmask_b32 v{vTQ}, v{vTQ}, v{t}, vcc
v_add_u32 v{t}, s14, v1
v_lshlrev_b32 v{t}, 7, v{t}
v_cmp_gt_u32 vcc, {min(RD,64)}, v1
v_mov_b32 v{vTD}, {OOB}
v_lshlrev_b32 v{vPAR}, 1, v{vJ}
v_cndmask_b32 v{vTD}, v{vTD}, v{t}, vcc''')
    assert RD <= 64 or True
    a.e(f'''v_lshrrev_b32 v{t}, 1, v{vJ}
v_and_b32 v{t+1}, 7, v{t}
v_xor_b32 v{t+1}, v{t+1}, v{vRHO}
v_lshlrev_b32 v{t+1}, 4, v{t+1}
v_lshl_add_u32 v{t}, v{t}, 7, v{t+1}
v_and_b32 v{t+1}, 1, v{vJ}
v_lshl_add_u32 v{t}, v{t+1}, 3, v{t}
v_add_u32 v{vLW}, {SCR}, v{t}
v_lshrrev_b32 v{t}, 2, v1
v_and_b32 v{t+1}, 3, v1
v_lshlrev_b32 v{t+1}, 2, v{t+1}
v_lshl_add_u32 v{t}, v{t}, 9, v{t+1}
s_lshl_b32 s14, s{sRBP}, 13
v_add_u32 v2, s14, v{t}
s_lshl_b32 s14, s{sRB}, 13
s_lshl_b32 s10, s3, 11
s_add_u32 s10, s10, s14
v_add_u32 v{t}, s10, v{t}
v_cmp_gt_u32 vcc, 16, v1
v_mov_b32 v{vFL0}, {OOB}
s_lshl_b32 s10, s{sSL}, 9
v_cndmask_b32 v{vFL0}, v{vFL0}, v{t}, vcc
s_add_u32 s14, s14, s10
s_lshl_b32 s10, s3, 2
s_add_u32 s14, s14, s10
v_mov_b32 v{vFP}, {OOB}
v_writelane_b32 v{vFP}, s14, 0''')
    vFL2 = 2
    a.e(f'''s_lshr_b32 s14, s3, 1
s_lshl_b32 s14, s14, 7
s_mul_i32 s{sDOFF1}, s{sD1}, 40960
s_add_u32 s{sDOFF1}, s{sDOFF1}, s14''')
    a.e(f'''v_lshrrev_b32 v{t}, 5, v1
v_bfe_u32 v{t+1}, v1, 2, 2
v_lshl_add_u32 v{t}, v{t}, 3, v{t+1}
v_lshlrev_b32 v{t}, 7, v{t}
v_bfe_u32 v{t+1}, v1, 3, 1
v_lshl_add_u32 v{t}, v{t+1}, 6, v{t}
v_bfe_u32 v{t+1}, v1, 4, 1
v_lshl_add_u32 v{t}, v{t+1}, 5, v{t}
v_and_b32 v{t+1}, 3, v1
v_lshl_add_u32 v{vRQ[0][0]}, v{t+1}, 3, v{t}
v_xor_b32 v{vRQ[1][0]}, 64, v{vRQ[0][0]}''')
    for jh in range(2):
        for wn in (1, 2): a.e(f'v_add_u32 v{vRQ[jh][wn]}, {65536*wn}, v{vRQ[jh][0]}')
    a.e(f'''v_bfe_u32 v{t}, v1, 1, 3
v_lshrrev_b32 v{t+1}, 5, v1
v_xor_b32 v{t}, v{t}, v{t+1}
v_lshlrev_b32 v{t}, 4, v{t}
v_lshl_add_u32 v{vRD[0]}, v{vJ}, 7, v{t}
v_xor_b32 v{vRD[1]}, 32, v{vRD[0]}
v_xor_b32 v{vRD[2]}, 64, v{vRD[0]}
v_xor_b32 v{vRD[3]}, 96, v{vRD[0]}''')
    a.e('s_waitcnt lgkmcnt(0)')
    stamp(a, 'rt0', True); stamp(a, 't0')
    def dbg(i):
        if cfg.get('dbg'):
            a.e('s_memrealtime s[0:1]'); a.wait_all(vm=False); a.e(f's_sub_u32 s0, s0, s100\nv_writelane_b32 v0, s0, {i}')
    if cfg.get('dbg'): a.e(f'v_mov_b32 v0, 0\ns_mov_b32 s101, s{P_DBG}\nv_writelane_b32 v0, s{P_DBG+1}, 63')
    dbg(0)

    stage_last = {}
    st = dict(dwin=0, issued=0, rid={})
    K = {}
    cur = {}
    def dma_items(n, kind, soff):
        slot = n % NS
        out = []
        for j in range(4):
            def th(j=j):
                if j == 0:
                    if n == 8: assert st.get('rtread')
                    a.e(f's_add_u32 m0, s{sM0B}, {slot*16384}')
                    first = n == 0 or cur['stages'][n - 1] != cur['stages'][n]
                    a.e('s_nop 0' if first else f's_add_u32 s{soff}, s{soff}, {256 if kind=="D" else 64*3456}')
                if kind == 'D': i = a.vm(f'buffer_load_dwordx4 v{vD[j]}, s[{SB}:{SB+3}], s{soff} offen offset:{1024*j} lds')
                else:
                    srd = SG if j < 2 else SU
                    i = a.vm(f'buffer_load_dwordx4 v{vQ[j&1]}, s[{srd}:{srd+3}], s{soff} offen offset:{1024*j} lds')
                if j == 3:
                    stage_last[n] = i
            th.stage = n
            out.append(th)
        return out
    dum = [DUM]
    def step_x():
        a.srd(SP, P_X, 2621440)
        K['x'] = [a.vm(f'buffer_load_dwordx2 v[{XR+2*n}:{XR+2*n+1}], v{vXA}, s[{SP}:{SP+3}], 0 offen offset:{256*n}{ntx}') for n in range(5)][-1]
        a.srd(SW, P_WS, WS_BYTES)
        K['n'] = a.vm(f'buffer_load_dword v{vT}, v{vZ}, s[{SW}:{SW+3}], 0 offen sc1')
        a.srd(SG, P_WG, 640 * 3456); a.srd(SU, P_WU, 640 * 3456 + 2048, add=-2048)
        a.e(f's_and_b32 s14, s3, 1\ns_cselect_b32 s{SB}, s{P_BIM}, s{P_BRE}\ns_cselect_b32 s{SB+1}, s{P_BIM+1}, s{P_BRE+1}\ns_mov_b32 s{SB+2}, 819200\ns_mov_b32 s{SB+3}, 0x00020000')
        a.e(f's_cselect_b32 s{SH}, s{P_WU}, s{P_WG}\ns_cselect_b32 s{SH+1}, s{P_WU+1}, s{P_WG+1}\ns_mov_b32 s{SH+2}, {640*3456}\ns_mov_b32 s{SH+3}, 0x00020000')
        a.srd(SF, P_WS, 262144, add=FLG_OFF)
    def step_t(u):
        kind, acc, soff = cur['units'][u]
        if kind == 'Q':
            for k in range(nq):
                a.e(f's_lshl_b32 s14, s{sSL}, 7')
                c = (2048 if soff == sQOFF2 else 0) + k * rq * 3456
                if c: a.e(f's_add_u32 s14, s14, {c}')
                a.vm(f'buffer_load_dword v{dum[0]}, v{vTQ}, s[{SH}:{SH+3}], s14 offen{ntw}'); dum[0] += 1
        else:
            for k in range(-(-RD // 64)):
                a.e(f's_mul_i32 s14, s{sD1 if soff == sDOFF1 else sD2}, 40960')
                if k: a.e(f's_add_u32 s14, s14, {k*(RD-64)*128}')
                a.vm(f'buffer_load_dword v{dum[0]}, v{vTD}, s[{SB}:{SB+3}], s14 offen{ntw}'); dum[0] += 1
    def step_par():
        a.e(f's_lshl_b32 s14, s{sD1}, 6')
        for i, p in enumerate((P_LRE, P_LIM, P_LDT)):
            a.srd(SP, p, 1280)
            a.vm(f'buffer_load_ushort v{TMP+i}, v{vPAR}, s[{SP}:{SP+3}], s14 offen')
            K['par'] = a.vm(f'buffer_load_ushort v{TMP+4+i}, v{vPAR}, s[{SP}:{SP+3}], s14 offen offset:64')
    def step_rta():
        Lc, Ld = a.newlabel('rt_c'), a.newlabel('rt_done')
        a.e(f's_lshl_b32 s{sU}, s2, 2\ns_add_u32 s{sU}, s{sU}, s3\ns_mov_b32 s{sROLE}, 1\ns_cmp_ge_u32 s{sU}, 540\ns_cbranch_scc1 {Lc}')
        a.sdiv(sKS, sU, 10, 540)
        a.e(f's_mul_i32 s{sCG}, s{sKS}, 10\ns_sub_u32 s{sCG}, s{sU}, s{sCG}')
        a.srd(SR, P_WD, 1728 * 1280)
        a.e(f'''s_mul_i32 s{sRLO}, s{sKS}, 40960
s_lshl_b32 s14, s{sCG}, 7
s_add_u32 s{sRLO}, s{sRLO}, s14
s_mov_b32 s{sRST}, {10240-1024}
v_lshrrev_b32 v{vRTR}, 5, v1
v_bfe_u32 v{RT}, v1, 4, 1
v_lshlrev_b32 v{RT}, 2, v{RT}
v_lshl_add_u32 v{vRTR}, v{vRTR}, 4, v{RT}
v_bfe_u32 v{RT}, v1, 2, 2
v_add_u32 v{vRTR}, v{vRTR}, v{RT}
v_lshlrev_b32 v{vRTR}, 7, v{vRTR}
v_and_b32 v{RT}, 3, v1
v_lshl_add_u32 v{vRTR}, v{RT}, 3, v{vRTR}
s_mul_i32 s{sKS}, s{sKS}, 5120
s_add_u32 s{sKS}, s{sKS}, {W2F_OFF+40*5120}''')
        for q in range(4):
            a.e(f's_lshl_b32 s14, s{sCG}, 2\ns_add_u32 s14, s14, {q}')
            a.sdiv(sRO, 14, 5, 40)
            a.e(f'''s_mul_i32 s{sRO}, s{sRO}, {NKS*5120-5120}
s_lshl_b32 s14, s14, 10
s_add_u32 s14, s14, s{sRO}
s_add_u32 s{36+q}, s14, s{sKS}''')
        a.e(f's_branch {Ld}')
        a.label(Lc)
        a.e(f's_mov_b32 s{sROLE}, 2\ns_sub_u32 s{sU}, s{sU}, 540\ns_cmp_ge_u32 s{sU}, 200\ns_cselect_b32 s{sKS}, 1, 0')
        a.e(f's_cselect_b32 s{SR}, s{P_CIM}, s{P_CRE}\ns_cselect_b32 s{SR+1}, s{P_CIM+1}, s{P_CRE+1}\ns_mov_b32 s{SR+2}, 819200\ns_mov_b32 s{SR+3}, 0x00020000')
        a.e(f's_mul_i32 s14, s{sKS}, 200\ns_sub_u32 s{sU}, s{sU}, s14')
        a.sdiv(sCG, sU, 5, 300)
        a.e(f's_mul_i32 s14, s{sCG}, 5\ns_sub_u32 s{sRO}, s{sU}, s14')
        a.e(f'''s_mul_i32 s{sRLO}, s{sCG}, 20480
s_lshl_b32 s14, s{sRO}, 8
s_add_u32 s{sRLO}, s{sRLO}, s14
s_mov_b32 s{sRST}, {5120-1024}
v_lshrrev_b32 v{RT}, 4, v1
v_and_b32 v{RT+1}, 15, v1
v_mul_u32_u24 v{vRTL}, 1280, v{RT}
v_lshl_add_u32 v{vRTL}, v{RT+1}, 4, v{vRTL}
v_lshlrev_b32 v{RT}, 4, v{RT}
v_lshl_add_u32 v{vRTR}, v{RT+1}, 8, v{RT}''')
        a.sdiv(sU, sCG, 5, 60)
        a.e(f'''s_mul_i32 s{sU}, s{sU}, {NKS*5120-5120}
s_lshl_b32 s14, s{sCG}, 10
s_add_u32 s{sU}, s{sU}, s14
s_lshl_b32 s14, s{sRO}, 3
s_add_u32 s14, s14, s{sKS}
s_mul_i32 s14, s14, 5120
s_add_u32 s{sU}, s{sU}, s14
s_cmp_ge_u32 s{sCG}, 40
s_cselect_b32 s14, {OOB}, {W2F_OFF}
s_add_u32 s36, s{sU}, s14
s_add_u32 s37, s36, 10240
s_add_u32 s38, s36, 20480
s_add_u32 s39, s36, 30720''')
        a.label(Ld)
        a.e(f's_add_u32 s14, s{sM0B}, {8*16384}\nv_add_u32 v{vRTR}, s14, v{vRTR}')
    def step_rtl():
        a.e(f's_add_u32 m0, s{sM0B}, {8*16384}\ns_nop 0')
        for j in range(4):
            K['rt'] = a.vm(f'buffer_load_dwordx4 v{vRTL}, s[{SR}:{SR+3}], s{sRLO} offen offset:{1024*j}{ntx} lds')
            if j < 3: a.e(f's_add_u32 s{sRLO}, s{sRLO}, s{sRST}')
    def rt_read(a):
        a.wait(vm=K['rt'])
        lc, ld = a.newlabel('rtc'), a.newlabel('rtd')
        a.e(f's_cmp_eq_u32 s{sROLE}, 2\ns_cbranch_scc1 {lc}')
        for q in range(4):
            for e in range(2): a.e(f'ds_read_b64_tr_b16 v[{RT+4*q+2*e}:{RT+4*q+2*e+1}], v{vRTR} offset:{q*32+e*1024}')
        a.e(f's_branch {ld}')
        a.label(lc)
        for q in range(4):
            for e in range(2): K['rtr'] = a.lds(f'ds_read_b64 v[{RT+4*q+2*e}:{RT+4*q+2*e+1}], v{vRTR} offset:{q*64+e*8}')
        a.label(ld)
    def step_s():
        for th in dma_items(st['issued'], *cur['stages'][st['issued']]): th()
        st['issued'] += 1
    def step_ln(nst=0):
        a.wait(vm=K['x'])
        stamp(a, 'x')
        l0 = len(a.lines)
        ln_body()
        if nst:
            body = a.lines[l0:cur['lnend']]; tail_ = a.lines[cur['lnend']:]
            vm_tail = a.vm_n - cur['vm0']
            a.lines = a.lines[:l0]; a.vm_n = cur['vm0']
            ths = []
            for _ in range(nst):
                ths += dma_items(st['issued'], *cur['stages'][st['issued']]); st['issued'] += 1
            step = len(body) // (len(ths) + 1)
            for k, ln_ in enumerate(body):
                a.lines.append(ln_)
                if ths and (k + 1) % step == 0: ths.pop(0)()
            assert not ths
            a.lines += tail_; a.vm_n += vm_tail; K['xst'] = a.vm_n - 1
    def ln_body():
        cur['vm0'] = a.vm_n
        for n in range(10):
            a.e(f'v_lshlrev_b32 v{XV+2*n}, 16, v{XR+n}\nv_and_b32 v{XV+2*n+1}, 0xffff0000, v{XR+n}')
        m_, q_ = tl, tl + 2
        a.e(f'v_pk_add_f32 {P(m_)}, {P(XV)}, {P(XV+2)}\nv_pk_add_f32 {P(q_)}, {P(XV+4)}, {P(XV+6)}')
        for n in range(4, 10, 2):
            a.e(f'v_pk_add_f32 {P(m_)}, {P(m_)}, {P(XV+2*n)}\nv_pk_add_f32 {P(q_)}, {P(q_)}, {P(XV+2*n+2)}')
        a.e(f'v_pk_add_f32 {P(m_)}, {P(m_)}, {P(q_)}\nv_add_f32 v{m_}, v{m_}, v{m_+1}')
        def red32(v, tt, fill):
            fill = iter(fill)
            def pad():
                x = next(fill, None); y = next(fill, None)
                if x is None: a.e('s_nop 1')
                else: a.e(x); a.e(y if y else 's_nop 0')
            for r in (8, 4, 2, 1):
                pad(); a.e(f'v_add_f32_dpp v{v}, v{v}, v{v} row_ror:{r} row_mask:0xf bank_mask:0xf')
            a.e(f'v_mov_b32 v{tt}, v{v}'); pad()
            a.e(f'v_permlane16_swap_b32 v{v}, v{tt}\ns_nop 0')
            a.e(f'v_add_f32 v{v}, v{v}, v{tt}')
            return fill
        red32(m_, m_ + 1, [])
        a.e(f'v_mul_f32 v{m_}, 0xbacccccd, v{m_}')
        sel = 'op_sel_hi:[1,0]'
        for n in range(10): a.e(f'v_pk_add_f32 {P(DV+2*n)}, {P(XV+2*n)}, {P(m_)} {sel}')
        a.e(f'v_pk_mul_f32 {P(q_)}, {P(DV)}, {P(DV)}\nv_pk_mul_f32 {P(tl+4)}, {P(DV+2)}, {P(DV+2)}')
        for n in range(2, 10, 2):
            a.e(f'v_pk_fma_f32 {P(q_)}, {P(DV+2*n)}, {P(DV+2*n)}, {P(q_)}\nv_pk_fma_f32 {P(tl+4)}, {P(DV+2*n+2)}, {P(DV+2*n+2)}, {P(tl+4)}')
        a.e(bfround_t(m_, m_))
        a.e(f'v_pk_add_f32 {P(q_)}, {P(q_)}, {P(tl+4)}\nv_add_f32 v{q_}, v{q_}, v{q_+1}')
        dfill = [f'v_pk_add_f32 {P(DV+2*n)}, {P(XV+2*n)}, {P(m_)} {sel}' for n in range(10)]
        if cfg.get('mimic', 0):
            dfill += [f'v_cvt_pk_bf16_f32 v{XR+n}, v{DV+2*n}, v{DV+2*n+1}' for n in range(10)]
            for n in range(10): dfill += [f'v_lshlrev_b32 v{DV+2*n}, 16, v{XR+n}', f'v_and_b32 v{DV+2*n+1}, 0xffff0000, v{XR+n}']
        rest = red32(q_, q_ + 1, dfill)
        chain_ops = [f'v_mul_f32 v{q_}, 0x3acccccd, v{q_}'] + bfround_t(q_, q_).split('\n')[:2] + [f'v_add_f32 v{q_}, 0x3727c5ac, v{q_}'] + bfround_t(q_, q_).split('\n')[:2] \
            + [f'v_sqrt_f32 v{q_}, v{q_}', 's_nop 0'] + bfround_t(q_, q_).split('\n')[:2] + [f'v_rcp_f32 v{m_+1}, v{q_}', 's_nop 0']
        for op in chain_ops:
            a.e(op)
            for _ in range(2):
                x = next(rest, None)
                if x: a.e(x)
        for x in rest: a.e(x)
        for n in range(10):
            a.e(f'v_pk_mul_f32 {P(DV+2*n)}, {P(DV+2*n)}, {P(m_)} op_sel:[0,1]')
        cur['lnend'] = len(a.lines)
        for n in range(10):
            a.e(f'v_cvt_pk_bf16_f32 v{XR+n}, v{DV+2*n}, v{DV+2*n+1}')
            if n & 1: a.lds(f'ds_write_b64 v{vLW}, v[{XR+n-1}:{XR+n}] offset:{2048*(n>>1)}')
        a.wait_all(vm=False)
        a.e('s_barrier')
        r3 = [a.lds(f'ds_read_b128 v[{DV+4*i}:{DV+4*i+3}], v{vLR} offset:{4096*i}') for i in range(3)]
        for i, so in enumerate((sXS0, sXS1, sXS2)):
            a.wait(lg=r3[i])
            K['xst'] = a.vm(f'buffer_store_dwordx4 v[{DV+4*i}:{DV+4*i+3}], v{vXS}, s[{SW}:{SW+3}], s{so} offen sc1')
        stamp(a, 'xnst')
    def step_flag():
        a.wait(vm=K['xst'])
        a.e(f'v_add_u32 v{vT}, {GOLD}, v{vT}')
        a.vm(f'buffer_store_dword v{vT}, v{vFP}, s[{SF}:{SF+3}], 0 offen sc1')
        a.e(f'v_mov_b32 v210, v{tl}\nv_mov_b32 v211, v{tl+1}\nv_mov_b32 v232, v{vSTA}')
        stamp(a, 'f0pub')
    def step_poll():
        K['poll'] = a.vm(poll_load(tl + 4, vFL0, 0))
    def step_chk():
        a.e(f's_mov_b32 s40, 0xffff\ns_mov_b32 s41, 0')
        a.wait(vm=K['poll'])
        stamp(a, 'f0w')
        poll_check(tl + 4, vFL0, 0, 40)(a)
        stamp(a, 'f0ok')
    xid = {}
    xq = []
    for s in range(40):
        def th(s=s):
            if s % 4 == 0 and s > 0: a.e(f's_add_u32 s{sXO}, s{sXO}, 4096')
            xid[s] = a.vm(f'buffer_load_dwordx4 {R(XF+4*s,4)}, v{vL16}, s[{SW}:{SW+3}], s{sXO} offen offset:{1024*(s%4)} sc1')
        xq.append(th)
    def step_f():
        for _ in range(4): cur['xq'].pop(0)()
    def step_rr():
        rt_read(a); a.wait(lg=K['rtr']); st['rtread'] = True
    def step_rs():
        K['p0st'] = a.vm(f'buffer_store_dwordx2 v[210:211], v232, s[{SW}:{SW+3}], 0 offen sc1')
        for q in range(4): K['p0st'] = a.vm(f'buffer_store_dwordx4 v[{RT+4*q}:{RT+4*q+3}], v{vL16}, s[{SW}:{SW+3}], s{36+q} offen sc1')
    def run_items(gen):
        tmp = Sched(a); tmp.add(gen); tmp.drain()
    def step_c():
        a.wait(vm=K['par'])
        run_items(chain(items(ssm_consts(C1, TMP)), items(ssm_consts(C2, TMP + 4)) if cur['typ'] == 'B' else []))
    def step_su():
        run_items(chain(items(setup), [('raw', setup_scc, 4)], items(setup1b), [('raw', setup_scc2, 5), ('raw', setup_scc3, 3)], items(setup2), mask_items(), f1_pub(TMP + 30)))
    steps = dict(c=step_c, su=step_su, x=step_x, t0=lambda: step_t(0), t1=lambda: step_t(1), t2=lambda: step_t(2), par=step_par, ra=step_rta, rl=step_rtl, s=step_s,
                 ln=step_ln, ln1=lambda: step_ln(1), ln2=lambda: step_ln(2), ln3=lambda: step_ln(3), fl=step_flag, po=step_poll, ck=step_chk, f=step_f, rr=step_rr, rs=step_rs)
    order = cfg.get('p0', 'x.par.t0.ra.rl.s.ln.s.t1.t2.c.fl.s.s.rr.su.po.ck.f.f.f.s.rs').split('.')

    def rt_stream():
        if 'rr' in order: return
        yield ('delay', cfg.get('rtdelay', 2))
        yield ('raw', rt_read, 10)
        yield ('delay', 3)
        yield ('call', lambda: (a.wait(lg=K['rtr']), st.__setitem__('rtread', True)))
    def rt_stores(cond, SPR):
        pub = ('onbar', [('vm', f'buffer_store_dword v{vT}, v{SPR+2}, s[{SF}:{SF+3}], 0 offen sc1', None), sitem('f1pub'), ('mark', 'f1pub')])
        if 'rs' in order:
            yield ('after', cfg.get('f1delay', 40), [('wvi', K['p0st']), pub]); return
        sts = [('vm', f'buffer_store_dwordx2 v[210:211], v232, s[{SW}:{SW+3}], 0 offen sc1', 'p0st')]
        sts += [('vm', f'buffer_store_dwordx4 v[{RT+4*q}:{RT+4*q+3}], v{vL16}, s[{SW}:{SW+3}], s{36+q} offen sc1', 'p0st') for q in range(4)]
        d0 = cfg.get('stdelay', 1); g = cfg.get('stgap', 1)
        for k, it in enumerate(sts[:-1]): yield ('when', cond, d0 + g * k, [it])
        yield ('when', cond, d0 + g * 4, [sts[-1], ('mark', 'rtst'), ('after', cfg.get('f1delay', 40), [('wv', 'p0st'), pub])])

    setup = f'''s_mul_i32 s15, s{sD1}, {AGS}
s_add_u32 s15, s15, {AGG_OFF}
s_mov_b32 s{SH}, s{P_WS}
s_mov_b32 s{SH+1}, s{P_WS+1}
s_mov_b32 s{SH+3}, 0x00020000
s_lshl_b32 s{sHB}, s{sRB}, 1
s_lshr_b32 s{sT0}, s3, 1
s_add_u32 s{sHB}, s{sHB}, s{sT0}
s_mul_i32 s{sHB}, s{sHB}, {NKS*4096}
s_and_b32 s{sT0}, s3, 1
s_lshl_b32 s{sT0}, s{sT0}, 11
s_add_u32 s{sHB}, s{sHB}, s{sT0}
s_add_u32 s{sHB}, s{sHB}, {HF_OFF}
s_and_b32 s{sT0}, s2, 1
s_lshl_b32 s{sT1}, s{sRBP}, 1
s_add_u32 s{sT1}, s{sT1}, s{sT0}
s_lshl_b32 s{sT0}, s{sT0}, 2
s_add_u32 s{sT0}, s{sT0}, s3
s_mul_i32 s{sW2}, s{sNB}, {NKS}
s_add_u32 s{sW2}, s{sW2}, s{sT0}
s_mul_i32 s{sW2}, s{sW2}, 5120
s_add_u32 s{sW2}, s{sW2}, {W2F_OFF}
s_lshl_b32 s{sT0}, s{sT0}, 12
s_add_u32 s{sT0}, s{sT0}, {HF_OFF}
s_mul_i32 s{sH2[1]}, s{sT1}, {NKS*4096}
s_add_u32 s{sH2[1]}, s{sH2[1]}, s{sT0}
s_xor_b32 s{sH2[0]}, s{sT1}, 1
s_mul_i32 s{sH2[0]}, s{sH2[0]}, {NKS*4096}
s_add_u32 s{sH2[0]}, s{sH2[0]}, s{sT0}
s_mul_i32 s{sHL}, s{sT1}, {NKS*4096}
s_add_u32 s{sHL}, s{sHL}, s{sM0B}
s_add_u32 s{sHL}, s{sHL}, {HF_OFF+62*4096}
s_mul_i32 s{sWL}, s{sNB}, {NKS}
s_add_u32 s{sWL}, s{sWL}, s3
s_mul_i32 s{sWL}, s{sWL}, 5120
s_add_u32 s{sWL}, s{sWL}, {W2F_OFF+62*5120}
s_lshl_b32 s{sT1}, s{sT1}, 2
s_add_u32 s{sT1}, s{sT1}, s3
s_lshl_b32 s{sSTO}, s{sT1}, 7
s_add_u32 s{sSTO}, s{sSTO}, {STAT_OFF}
s_mul_i32 s{sXO2}, s{sT1}, 20480
s_mul_i32 s{sDKO}, s{sNB}, 160
s_add_u32 s{sXO2}, s{sXO2}, s{sDKO}
s_lshl_b32 s{sOO}, s{sXO2}, 1
s_lshl_b32 s{sT0}, s2, 2
s_add_u32 s{sT0}, s{sT0}, s3
s_mul_i32 s{sXS}, s{sT0}, 5120
s_add_u32 s{sXS}, s{sXS}, {XCH_OFF}
s_xor_b32 s{sT0}, s{sT0}, 4
s_mul_i32 s{sXL}, s{sT0}, 5120
s_add_u32 s{sXL}, s{sXL}, {XCH_OFF}
s_mov_b32 s{sNEEDA}, -1
s_mov_b32 s{sNEEDA+1}, 0xfff
v_and_b32 v{GOF}, 31, v1
v_lshrrev_b32 v{GOF+2}, 5, v1
v_bfe_u32 v{GOF+1}, v1, 2, 1
v_lshlrev_b32 v{GOF+1}, 10, v{GOF+1}
v_lshl_add_u32 v{GOF+1}, v{GOF+2}, 8, v{GOF+1}
v_bfe_u32 v{GOF+3}, v1, 3, 2
v_lshl_add_u32 v{GOF+1}, v{GOF+3}, 6, v{GOF+1}
v_and_b32 v{GOF+3}, 3, v1
v_lshl_add_u32 v{vHG}, v{GOF+3}, 4, v{GOF+1}
s_lshl_b32 s{sT0}, s3, 9
s_add_u32 s{sT0}, s{sT0}, {SCR}
v_lshl_add_u32 v{vAGW}, v1, 3, s{sT0}
v_lshlrev_b32 v{GOF+1}, 3, v{GOF}
v_add_u32 v{vAGR}, {SCR}, v{GOF+1}
s_mul_i32 s{sT0}, s3, 2560
s_add_u32 s{sT0}, s{sT0}, {SCR+4096}
v_mul_u32_u24 v{GOF+1}, 80, v{GOF}
v_lshl_add_u32 v{GOF+1}, v{GOF+2}, 5, v{GOF+1}
v_add_u32 v{vTW}, s{sT0}, v{GOF+1}
v_lshrrev_b32 v{GOF+1}, 4, v1
v_bfe_u32 v{GOF+4}, v1, 2, 2
v_lshl_add_u32 v{GOF+1}, v{GOF+1}, 3, v{GOF+4}
v_mul_u32_u24 v{GOF+1}, 80, v{GOF+1}
v_lshl_add_u32 v{GOF+1}, v{GOF+3}, 3, v{GOF+1}
v_add_u32 v{vTR}, s{sT0}, v{GOF+1}
'''
    def setup_scc(a):
        a.e(f'''s_add_u32 s{SA1}, s{P_WS}, s15
s_addc_u32 s{SA1+1}, s{P_WS+1}, 0
s_add_u32 s{SA2}, s{SA1}, {AGS}
s_addc_u32 s{SA2+1}, s{SA1+1}, 0''')
    def setup_scc2(a):
        a.e(f'''s_cmp_eq_u32 s{sT1}, 1
s_cselect_b32 s{sT0}, 8192, s{sOOBK}
s_cmp_eq_u32 s3, 0
s_cselect_b32 s{sT0}, s15, s{sT0}
s_cselect_b32 s{sZM}, -1, 0''')
    def setup_scc3(a):
        a.e(f'''s_cmp_eq_u32 s{sSL}, 10
s_cselect_b32 s{SH+2}, 0, {WS_BYTES}
s_cselect_b32 s{sT0}, s{sOOBK}, s{sT0}''')
    setup1b = f'''s_mov_b32 s{SA1+2}, {AGS}
s_mov_b32 s{SA1+3}, 0x00020000
s_mov_b32 s{SA2+2}, {AGS}
s_mov_b32 s{SA2+3}, 0x00020000
s_lshl_b32 s15, s{sRB}, 9
s_or_b32 s{sT1}, s15, s3
s_mov_b32 s{sOOBK}, 0x100000
'''
    setup2 = f'''v_lshlrev_b32 v{GOF+1}, 4, v{GOF}
v_add_u32 v{vPUB}, s{sT0}, v{GOF+1}
s_sub_u32 s15, s15, 512
v_add_u32 v{EXP}, 8192, v{GOF+1}
v_add_u32 v{GOF+1}, s15, v{GOF+1}
v_lshlrev_b32 v{GOF+2}, 9, v{GOF+2}
v_sub_u32 v{GOF}, v{GOF+1}, v{GOF+2}
s_lshr_b32 s{sOOBK}, s3, 1
s_and_b32 s{sOOBK}, s{sOOBK}, s2
s_lshl_b32 s{sOOBK}, s{sOOBK}, 30
'''
    for j in range(1, 8): setup2 += f'v_subrev_u32 v{GOF+j}, {1024*j}, v{GOF}\n'
    for j in range(8): setup2 += f'v_min_u32 v{GOF+j}, v{GOF+j}, v{EXP}\n'
    def mask_items():
        for j in range(1, 8):
            m = sMASK + 2 * (j - 1)
            yield ('raw', lambda a, j=j, m=m: a.e(f's_cmp_eq_u32 s3, {j>>1}\ns_cselect_b32 s{m+(j&1)}, -1, 0\ns_mov_b32 s{m+1-(j&1)}, 0'), 3)
    def f1_pub(SPR):
        vF1P = SPR + 2
        yield ('raw', lambda a: a.e(f's_lshl_b32 s{sT0}, s2, 4\ns_add_u32 s{sT0}, s{sT0}, {F1_OFF}\ns_cmp_lg_u32 s3, 0\ns_cselect_b32 s{sT0}, {OOB}, s{sT0}\nv_mov_b32 v{vF1P}, {OOB}\nv_writelane_b32 v{vF1P}, s{sT0}, 0'), 6)
        yield ('raw', lambda a: a.e(f's_or_b32 s{sT0}, s2, s3\ns_cselect_b32 s{sT0}, {OOB}, {NONCE_OFF}\nv_mov_b32 v{SPR+4}, {OOB}\nv_writelane_b32 v{SPR+4}, s{sT0}, 0'), 4)
        yield ('s', f's_lshl_b32 s{sT0}, s3, 10')
        yield ('s', f's_add_u32 s{sT0}, s{sT0}, {F1_OFF}')
        yield ('v', f'v_add_u32 v{SPR+1}, s{sT0}, v{vL16}')
    def f1_chk(SPR):
        yield ('vm', poll_load(SPR, SPR + 1, 0), 'f1')
        yield ('after', cfg.get('polld', 28), [('req', 'f1pub'), ('wv', 'f1'), sitem('f1w'), ('raw', poll_check(SPR, SPR + 1, 0, None), 4),
               ('onbar', [('vm', f'buffer_store_dword v{vT}, v{SPR+4}, s[{SW}:{SW+3}], 0 offen sc1', None), ('call', lambda: st.__setitem__('f1ok', True)), sitem('f1ok')])])

    def build(units):
        stages = []; groups = []
        for ui, (kind, acc, soff) in enumerate(units):
            ns = 5 if kind == 'D' else 10
            for s in range(ns):
                n = len(stages); stages.append((kind, soff))
                for g in range(4): groups.append((ui, kind, acc, n, s, g))
        return stages, groups
    bars = list(range(0, 25, 2))
    dmaq = []
    def reads(G, groups):
        ui, kind, acc, n, s, g = groups[G]
        slot = n % NS; win = slot // 4; base = (slot % 4) * 16384
        buf = WB + 16 * (G % 3)
        out = []
        if kind == 'Q':
            for m in range(4):
                jh, mat = m >> 1, m & 1
                out.append([f'ds_read_b64_tr_b16 {R(buf+4*m+2*e,2)}, v{vRQ[jh][win]} offset:{base+g*4096+mat*2048+e*512}' for e in range(2)])
        else:
            for m in range(4):
                ks, mat = 2 * g + (m >> 1), m & 1
                out.append([f'ds_read_b128 {R(buf+4*m,4)}, v{vRD[ks&3]} offset:{base+(ks>>2)*8192+mat*4096}'])
        return out, (win if kind == 'D' else None)
    def barrier_for(n, stages, sch):
        nxt = min([b for b in bars if b > n] + [len(stages)])
        a.wait(vm=stage_last[min(nxt, len(stages)) - 1])
        a.e('s_barrier')
        sch.on_barrier()
        while st['issued'] < len(stages) and st['issued'] <= n + NS - 2:
            m = st['issued']; dmaq.extend(dma_items(m, *stages[m])); st['issued'] += 1
    def set_dwin(w):
        if w is not None and w != st['dwin']:
            d = (w - st['dwin']) * 65536
            for r in vRD: a.e(f'v_add_u32 v{r}, {d & 0xffffffff}, v{r}')
            st['dwin'] = w

    class P2: pass
    def p2_load(p, kind, i, j, reg):
        late = i >= 8
        if kind == 'W': off, sb, sreg = ((i - 8) * 20480, sWL, sP1) if late else (i * 40960, sW2, sP1)
        else: off, sb, sreg = ((i - 8) * 16384, sHL, sP0) if late else (i * 32768, sH2[int(kind[1])], sP0)
        key = (kind, i, j // 4)
        assert st.get('f1ok')
        if kind != 'W': assert st.get('lvl', 0) >= (1 if i < 2 else 2 if i < 8 else 3), (kind, i)
        if p.cur.get(sreg) != key:
            a.e(f's_add_u32 s{sreg}, s{sb}, {off + (j // 4) * 4096}')
            if i == 7: a.e(f's_add_u32 s{sreg}, s{sreg}, s{sOOBK}')
            p.cur[sreg] = key
        p.buf[kind, i, j] = reg
        p.id[kind, i, j] = a.vm(f'buffer_load_dwordx4 {R(reg,4)}, v{vL16}, s[{SW}:{SW+3}], s{sreg} offen offset:{1024*(j%4)} sc1')

    def emit_groups(stages, groups, sch, fillers, xq, pre_load, pool, on_unit):
        lastu = groups[-1][0]
        freed = set()
        for G in range(len(groups)):
            ui, kind, acc, n, s, g = groups[G]
            if s == 0 and g == 0:
                on_unit(ui)
                if ui in fillers: sch.add(fillers[ui])
                stamp(a, f'U{ui+1}'); dbg(1 + ui)
            if cfg.get('gst') and g == 0 and s > 0 and str(ui + 1) in str(cfg['gst']): stamp(a, f'u{ui+1}s{s}')
            nx = G + 2
            rd = None
            if nx < len(groups): rd, win = reads(nx, groups)
            buf = WB + 16 * (G % 3)
            for m in range(4):
                if kind == 'Q': ks = 4 * s + g; d = acc + 16 * m
                else: ks = 8 * s + 2 * g + (m >> 1); d = acc + 16 * (m & 1)
                a.wait(lg=st['rid'][G] if m == 0 else None, vm=(xid[ks] if ui == 0 else None))
                c = '0' if ks == 0 else V(d, 16)
                if kind == 'Q': a.e(f'v_mfma_f32_32x32x16_bf16 {V(d,16)}, {R(buf+4*m,4)}, {R(XF+4*ks,4)}, {c}')
                else: a.e(f'v_mfma_f32_32x32x16_bf16 {V(d,16)}, {R(XF+4*ks,4)}, {R(buf+4*m,4)}, {c}')
                n0 = len(a.lines); budget = 0
                if m == 0 and rd and groups[nx][5] == 0 and groups[nx][3] in bars:
                    barrier_for(groups[nx][3], stages, sch); budget -= 2
                if rd:
                    for t_ in rd[m]: st['rid'][nx] = a.lds(t_)
                if ui == lastu and ks >= 1 and ks - 1 not in freed:
                    freed.add(ks - 1); pool.append(XF + 4 * (ks - 1))
                dma_ok = dmaq and not (dmaq[0].stage == 8 and not st.get('rtread'))
                lead = (dmaq[0].stage - n) if dmaq else 99
                did = False
                if m in (1, 3):
                    if xq: xq.pop(0)(); did = True
                    elif dma_ok and (m == 3 or lead <= cfg.get('lead2', 5)): dmaq.pop(0)(); did = True
                    elif not sch.head_vm() and not st.get('fvm'): did = pre_load()
                elif m == 2:
                    if dma_ok and lead <= cfg.get('minlead', 3): dmaq.pop(0)(); did = True
                if m == 3 and G + 3 < len(groups): set_dwin(reads(G + 3, groups)[1])
                v0_ = a.vm_n
                sch.fill(cfg['slots'] - (len(a.lines) - n0) - (1 if (m == 3 or (ui == 0 and m == 1)) else 0), vm_ok=not did)
                st['fvm'] = a.vm_n > v0_

    unitsA = [('D', ACC_D, sDOFF1), ('Q', ACC_A, sQOFF1), ('Q', ACC_B, sQOFF2)]
    unitsB = [('D', ACC_D, sDOFF1), ('D', ACC_A, sDOFF2), ('Q', ACC_B, sQOFF1)]
    a.e(f's_cmp_ge_u32 s{sSL}, 11\ns_cbranch_scc1 L_typeB')
    st0 = copy.deepcopy(st); as0 = a.state()
    for typ, units in (('A', unitsA), ('B', unitsB)):
        if typ == 'B':
            a.label('L_typeB')
            a.restore(as0); st.clear(); st.update(copy.deepcopy(st0)); stage_last.clear(); xid.clear(); K.clear(); dum[0] = DUM
        stages, groups = build(units)
        xq1 = list(xq)
        cur.update(units=units, stages=stages, xq=xq1, typ=typ)
        for stp in order: steps[stp]()
        sch = Sched(a)
        p = P2(); p.buf = {}; p.id = {}; p.cur = {}
        SPR = TMP + 30
        FL = vD[2]
        H = lambda ps, i: [(f'H{ps}', i, j) for j in range(4)]
        Wf = lambda i: [('W', i, j) for j in range(5)]
        HR = lambda ps, ii: [(f'H{ps}', i, j) for j in range(4) for i in ii]
        pool = [256 + 208 + 4 * k for k in range(12)]
        poolB = []
        lq = H(0, 0) + H(0, 1) + H(1, 0) + H(1, 1) + sum([Wf(i) for i in range(8)], []) + sum([H(0, i) for i in range(2, 5)], []) + HR(0, (5, 6, 7)) + sum([Wf(i) for i in range(8, 16)], [])[:cfg.get('wlpre', 10)]
        def lv(it): return 0 if it[0] == 'W' else (1 if it[1] < 2 else 2 if it[1] < 8 else 3)
        def pre_load():
            if not st.get('f1ok'): return False
            for k, it in enumerate(lq):
                if lv(it) > st.get('lvl', 0): continue
                pl = poolB if (it[0] == 'H0' and poolB) else pool
                if not pl: continue
                lq.pop(k); p2_load(p, it[0], it[1], it[2], pl.pop(0)); return True
            return False
        polld = cfg.get('polld', 20); ackd = cfg.get('ackd', 28)
        assert all(order.index(z) < order.index('su') for z in ('x', 'ra', 'rl', 'rr', 'par', 'ln') + tuple(z for z in ('t0', 't1', 't2') if z in order))
        u1 = chain(rt_stores(lambda: len(xq1) <= cfg.get('stx', 0), SPR))
        spare1, spare2 = vD[0], vD[1]
        chk_d = ('call', lambda: (_ for _ in ()).throw(AssertionError('D dma pending')) if any(stages[th.stage][0] == 'D' for th in dmaq) or any(k == 'D' for k, _ in stages[st['issued']:]) else None)
        BQ = list(range(28, 48, 4))
        def _fs():
            assert st.get('f1ok'); pool.extend(range(48, 96, 4))
        free_ssm = ('call', _fs)
        EAr, EAo, EAw, vXP, vXL = 15, 16, 17, 18, 7
        def epbase():
            t_ = 116
            yield ('raw', lambda a: a.srd(SXX, P_X, 2621440), 4)
            yield ('raw', lambda a: a.srd(SDK, P_DSK, 1280), 4)
            yield from items(f'''v_lshrrev_b32 v{t_}, 2, v1
v_and_b32 v{t_+1}, 3, v1
v_lshlrev_b32 v{t_+2}, 3, v{t_+1}
v_mul_u32_u24 v{t_+3}, 1280, v{t_}
v_add_u32 v{t_+3}, v{t_+3}, v{t_+2}
v_lshlrev_b32 v{t_+4}, 3, v{t_}''')
            adr = list(items(f'''v_lshlrev_b32 v{EAo}, 1, v{t_+3}
v_bfe_u32 v{t_+5}, v1, 3, 2
v_xor_b32 v{t_+5}, v{t_+5}, v{t_+1}
v_mul_u32_u24 v{EAr}, 320, v{t_}
v_lshl_add_u32 v{EAr}, v{t_+5}, 4, v{EAr}
s_mul_i32 s{sT1}, s3, 5120
v_add_u32 v{EAr}, s{sT1}, v{EAr}
v_and_b32 v{EAw}, 15, v1
v_mul_u32_u24 v{EAw}, 320, v{EAw}
v_lshrrev_b32 v{t_+5}, 4, v1
v_bfe_u32 v{t_+8}, v1, 1, 2
v_xor_b32 v{t_+5}, v{t_+5}, v{t_+8}
v_lshl_add_u32 v{EAw}, v{t_+5}, 4, v{EAw}
s_mul_i32 s{sT0}, s3, 20480
v_add_u32 v{EAw}, s{sT0}, v{EAw}
s_lshl_b32 s{sT0}, s2, 7
s_lshl_b32 s{sT1}, s3, 2
s_add_u32 s{sT0}, s{sT0}, s{sT1}
s_add_u32 s{sT0}, s{sT0}, {FX_OFF}
v_mov_b32 v{vXP}, {OOB}
v_writelane_b32 v{vXP}, s{sT0}, 0
s_xor_b32 s{sZM}, s{sT0}, 128'''))
            lds_ = [('vm', f'buffer_load_dwordx2 {P(t_+6)}, v{t_+4}, s[{SW}:{SW+3}], s{sSTO} offen sc1', 'bs')]
            for i in range(5):
                lds_.append(('vm', f'buffer_load_dwordx2 {P(96+4*i)}, v{t_+3}, s[{SXX}:{SXX+3}], s{sXO2} offen offset:{32*i}', f'bx{i}'))
                lds_.append(('vm', f'buffer_load_dwordx2 {P(98+4*i)}, v{t_+2}, s[{SDK}:{SDK+3}], s{sDKO} offen offset:{32*i}', f'bd{i}'))
            for k, it in enumerate(lds_):
                yield it
                yield from adr[2 * k:2 * k + 2]
            yield ('delay', cfg.get('bdelay', 14))
            yield sitem('bw0')
            yield ('wv', 'bd0')
            yield sitem('bw1')
            yield ('v', f'v_mul_f32 v{t_+6}, v{t_+6}, v{t_+7}')
            for i in range(5):
                b = BQ[i]; x = 96 + 4 * i
                yield ('wv', f'bd{i}')
                for k in range(4):
                    un = (lambda d, s_: f'v_and_b32 v{d}, 0xffff0000, v{s_}') if k & 1 else (lambda d, s_: f'v_lshlrev_b32 v{d}, 16, v{s_}')
                    yield ('v', un(b + k, x + (k >> 1)))
                    yield ('v', un(t_, x + 2 + (k >> 1)))
                    yield ('v', f'v_fma_f32 v{t_+1}, v{b+k}, v{t_+7}, v{t_+6}')
                    yield ('v', f'v_fmac_f32 v{b+k}, v{t_+1}, v{t_}')
            yield sitem('bend')
            yield ('call', lambda: st.__setitem__('base', True))
        def lchk2(level, d):
            yield ('vm', poll_load(FL, vFL2, 128 * level), f'l{level}')
            yield ('after', d, [sitem(f'l{level}a'), ('wv', f'l{level}'), sitem(f'l{level}w'), ('raw', poll_check(FL, vFL2, 128 * level, sNEEDA if level == 1 else None), 4), sitem(f'l{level}ok'),
                   ('call', lambda: st.__setitem__('lvl', level))])
        if typ == 'A':
            G = [64, 68, 72, 76, 44, 48, 52, 56]
            u2 = chain([('delay', 3)], f_agg(ACC_D, C1, 0, SA1, 'a1'), [chk_d], f_coef(ACC_D, C1, spare1), f1_chk(SPR),
                       [('delay', cfg.get('gdelay0', 2))], f_gather_issue(G, SA1, 'a1'), [('delay', cfg.get('gdelay', 16))],
                       f_carry(G, ACC_D, C1, spare1, SA1, sD1, 'a1'), [('mark', 'ssm'), free_ssm], f_publish(1, ackd),
                       [('when', lambda: sch.keys.get('pub1'), cfg.get('visd', 40), list(lchk2(1, polld)))])
            u3 = chain([('delay', 3)], f_epiq(ACC_A, 40), f_publish(2, ackd), epbase())
            tailg = chain(f_epiq(ACC_B, 72))
        else:
            G = [ACC_A + 32 + 4 * j for j in range(8)]; G2 = [ACC_D + 4 * j for j in range(8)]
            u2 = chain([('delay', 3)], f_agg(ACC_D, C1, 0, SA1, 'a1'), f1_chk(SPR), [chk_d], f_coef(ACC_D, C1, spare1))
            ag2 = f_agg(ACC_A, C2, 2048, SA2, 'a2'); cf2 = f_coef(ACC_A, C2, spare2)
            u3 = chain([('delay', 3)], f_gather_issue(G, SA1, 'a1', ag2), ag2,
                       f_carry(G, ACC_D, C1, spare1, SA1, sD1, 'a1'), f_gather_issue(G2, SA2, 'a2', cf2), cf2, [('delay', 12)],
                       f_carry(G2, ACC_A, C2, spare2, SA2, sD2, 'a2'), [('mark', 'ssm'), free_ssm], f_publish(2, cfg.get('ackb', 24)))
            tailg = chain(lchk2(1, 20), f_epiq(ACC_B, 40), [('flush',)], f_publish(3, 1000), epbase(), [('flush',), ('call', lambda: [pre_load() for _ in range(cfg.get('bpre', 16))])])
        def on_unit(ui):
            if ui == 2:
                assert 'rs' in order or sch.keys.get('rtst')
        barrier_for(0, stages, sch)
        for G0 in (0, 1):
            rd, win = reads(G0, groups)
            for lst in rd:
                for t_ in lst: st['rid'][G0] = a.lds(t_)
        emit_groups(stages, groups, sch, {0: u1, 1: u2, 2: u3}, xq1, pre_load, pool, on_unit)
        assert not dmaq
        stamp(a, 'T'); dbg(4)
        pool += [XF + 156] + [WB + 4 * k for k in range(12)]
        sch.drain(every=(cfg.get('yevery', 24), pre_load))
        stamp(a, 'T2')
        a.e('s_nop 7\ns_nop 3')
        pid = {}
        tl_ = list(tailg)
        kp = (len(tl_) * cfg.get('p2pos', 7)) // 8 if typ == 'A' else len(tl_)
        def p2i():
            while sch.timers: sch.tick(True)
            pid[2] = a.vm(poll_load(FL, vFL2, 256))
        sch.add(chain(tl_[:kp], [('call', p2i)], tl_[kp:])); sch.drain(every=(cfg.get('yevery', 24), pre_load))
        while sch.timers: sch.tick(True)
        assert st.get('lvl') == 1
        stamp(a, 'Y')
        ACC = (96, 176)
        FL3 = FL
        assert st.get('base')
        a.srd(SO, P_OUT, 5242880)
        a.e(f'v_mov_b32 v{vXL}, s{sZM}')
        nb_ = lambda ps, i: (ps, [(i, rt) for rt in range(4)])
        rb_ = lambda ps, ii: [(ps, [(i, rt) for i in ii]) for rt in range(4)]
        blocks = [nb_(0, 0), nb_(0, 1), nb_(1, 0), nb_(1, 1)] + [nb_(0, i) for i in range(2, 5)] + rb_(0, (5, 6, 7)) + [nb_(1, i) for i in range(2, 13)] + rb_(1, (13, 14, 15))
        pd = cfg.get('pd', 10)
        l_a = [x for x in lq if lv(x) <= 1 and x[1] < 8]; l_b = [x for x in lq if lv(x) == 2]
        rest = sum([H(1, i) for i in range(2, 8)], [])
        wl = [x for x in sum([Wf(i) for i in range(8, 16)], []) if x not in p.id]
        n2 = cfg.get('w2', 8)
        mid = rest[:8]; rest = rest[8:]
        w0 = wl[:n2]; wl = wl[n2:]
        nlate = cfg.get('wlate', 10)
        wz = wl[len(wl) - nlate:]; wl = wl[:len(wl) - nlate]
        while rest or wl:
            mid += rest[:4] + wl[:3]; rest = rest[4:]; wl = wl[3:]
        hl = sum([H(1, i) for i in range(8, 13)], [])
        lq = l_a + w0 + [('Pc', 2)] + l_b + mid[:len(mid) - pd] + [('Pi', 3)] + mid[len(mid) - pd:] + [('Pc', 3)] \
            + hl[:12] + wz[:5] + hl[12:16] + wz[5:] + hl[16:] + HR(1, (13, 14, 15))
        s2 = sch
        if typ == 'A': s2.add(f_publish(3, cfg.get('pubat', 60)))
        BX = {'b': BQ, 'p': list(range(ACC[0], ACC[0] + 20, 4))}
        def next_load():
            if not lq: return False
            it = lq[0]
            if it[0] in ('H0', 'H1', 'W'):
                pl = poolB if (it[0] == 'H0' and poolB) else pool
                if not pl: return False
                if a.vm_n - a.vm_done >= cfg.get('maxout', 40): return False
                lq.pop(0); p2_load(p, it[0], it[1], it[2], pl.pop(0)); return True
            if it[0] == 'Pi':
                lq.pop(0); pid[it[1]] = a.vm(poll_load(FL3, vFL2, 128 * it[1])); return True
            if it[0] == 'Pc':
                lq.pop(0)
                assert sch.keys.get('pub2') and (it[1] == 2 or sch.keys.get('pub3'))
                a.wait(vm=pid[it[1]]); stamp(a, f'l{it[1]}w')
                poll_check(FL3, vFL2, 128 * it[1], None)(a)
                if it[1] == 2: a.e('s_barrier')
                stamp(a, f'l{it[1]}ok'); st['lvl'] = it[1]
                for _ in range(cfg.get('burst', 4)):
                    if lq and lq[0][0] not in ('Pc', 'B'): next_load()
                return True
        def red_writes(ps, rt):
            yield ('delay', 4)
            for ct in range(5):
                yield ('lds', f'ds_write_b128 v{EAw}, {V(ACC[ps]+4*(rt*5+ct),4)} offset:{rt*5120+ct*64}', f'rw{ps}')
        def red0_rest():
            A0 = ACC[0]
            yield ('delay', 3)
            yield ('wl', 'rw0')
            yield ('forcebar',)
            for i in range(5):
                for q in range(4):
                    yield ('lds', f'ds_read_b128 {V(A0+16*i+4*q,4)}, v{EAr} offset:{q*20480+64*i}', f'rr{i}')
            yield ('delay', 2)
            for i in range(5):
                b = A0 + 16 * i
                yield ('wl', f'rr{i}')
                for k in range(4): yield ('v', f'v_add_f32 v{b+k}, v{b+k}, v{b+4+k}')
                for k in range(4): yield ('v', f'v_add_f32 v{b+8+k}, v{b+8+k}, v{b+12+k}')
                for k in range(4): yield ('v', f'v_add_f32 v{b+k}, v{b+k}, v{b+8+k}')
                if i == 4: yield ('s', f's_add_u32 s{sXS}, s{sXS}, 4096')
                yield ('vm', f'buffer_store_dwordx4 {V(b,4)}, v{vL16}, s[{SW}:{SW+3}], s{sXS} offen offset:{1024*(i%4)} sc1', 'xst')
            yield ('forcebar',)
            yield sitem('xst')
            yield ('call', lambda: (st.__setitem__('red0', True), pool.extend(range(A0 + 20, A0 + 80, 4))))
            yield ('after', cfg.get('xdelay', 70), [('wv', 'xst'), ('vm', f'buffer_store_dword v{vT}, v{vXP}, s[{SF}:{SF+3}], 0 offen sc1', None), sitem('xpub'), ('mark', 'xpub')])
        def xch_load():
            yield ('flush',)
            yield ('req', 'xpub')
            yield ('wv', 'xp')
            yield sitem('xw')
            yield ('raw', poll_check(FL3, vXL, 0, None), 4)
            yield sitem('xok')
            for i in range(5):
                if i == 4: yield ('s', f's_add_u32 s{sXL}, s{sXL}, 4096')
                yield ('vm', f'buffer_load_dwordx4 {V(BX["p"][i],4)}, v{vL16}, s[{SW}:{SW+3}], s{sXL} offen offset:{1024*(i%4)} sc1', f'xl{i}')
        for _ in range(cfg.get('ypre', 2)): next_load()
        cnt = 0; ratio = cfg.get('ratio', 4)
        wuse = {i: 0 for i in range(16)}
        for bn, (ps, blk) in enumerate(blocks):
            need = [(f'H{ps}', i, rt) for i, rt in blk] + [('W', i, j) for i, rt in blk for j in range(5)]
            guard = 0
            while any(k not in p.id for k in need):
                if not next_load():
                    a.wait(vm=a.vm_done + 4)
                guard += 1; assert guard < 2000, (bn, lq[:3], len(pool))
            if bn in (0, 4, 11, 17, 22): stamp(a, f'b{bn}')
            if bn == 22: assert st.get('red0')
            if bn == cfg.get('xpat', 21):
                assert st['lvl'] == 3
                sch.keys['xp'] = a.vm(poll_load(FL3, vXL, 0))
            for i, rt in blk:
                a.wait(vm=max(p.id[k] for k in [(f'H{ps}', i, rt)] + [('W', i, j) for j in range(5)]))
                for ct in range(5):
                    d = ACC[ps] + 4 * (rt * 5 + ct)
                    c = '0' if i == 0 else V(d, 4)
                    a.e(f'v_mfma_f32_16x16x32_bf16 {V(d,4)}, {R(p.buf["W",i,ct],4)}, {R(p.buf[f"H{ps}",i,rt],4)}, {c}')
                    cnt += 1
                    did = next_load() if cnt % ratio == 0 else False
                    s2.fill(0 if did else cfg.get('b2', 2))
                r = p.buf[f'H{ps}', i, rt]
                pool.append(r)
                wuse[i] += 1
                if wuse[i] == (8 if i < 8 else 4):
                    for ct in range(5): pool.append(p.buf['W', i, ct])
            if len(blk) == 3:
                s2.add(red_writes(ps, blk[0][1]))
                if bn == 10: s2.add(red0_rest())
            if bn == cfg.get('xlat', 23): s2.add(xch_load())
        assert not lq
        stamp(a, 'mfend'); dbg(5)
        a.e('s_nop 7')
        s2.tick(True); s2.drain()
        assert st.get('base') and not s2.timers and not s2.barq
        a.wait_all(vm=False)
        a.e('s_barrier')
        A1 = ACC[1]
        rd = {}
        for i in range(5):
            for q in range(4):
                rd[i, q] = a.lds(f'ds_read_b128 {V(A1+16*i+4*q,4)}, v{EAr} offset:{q*20480+64*i}')
        for i in range(5):
            a.wait(vm=sch.keys[f'xl{i}'])
            B = BX['b'][i]; X = BX['p'][i]
            for k in (0, 2): a.e(f'v_pk_add_f32 {P(B+k)}, {P(B+k)}, {P(X+k)}')
        for i in range(5):
            a.wait(lg=rd[i, 3])
            b = A1 + 16 * i; B = BX['b'][i]
            for k in (0, 2):
                a.e(f'v_pk_add_f32 {P(b+k)}, {P(b+k)}, {P(b+4+k)}\nv_pk_add_f32 {P(b+8+k)}, {P(b+8+k)}, {P(b+12+k)}')
            for k in (0, 2): a.e(f'v_pk_add_f32 {P(B+k)}, {P(B+k)}, {P(b+k)}')
            for k in (0, 2): a.e(f'v_pk_add_f32 {P(B+k)}, {P(B+k)}, {P(b+8+k)}')
            a.vm(f'buffer_store_dwordx4 {V(B,4)}, v{EAo}, s[{SO}:{SO+3}], s{sOO} offen offset:{64*i} {cfg.get("ost", "").replace("_", " ")}')
        stamp(a, 'st')
        stamp_out(a)
        if cfg.get('dbg'):
            a.e('s_waitcnt vmcnt(0)'); dbg(6)
            if cfg.get('pad'):
                lp = a.newlabel('pad')
                if 'padwg' in cfg: a.e(f's_cmp_lg_u32 s2, {cfg["padwg"]}\ns_cbranch_scc1 L_end')
                a.label(lp)
                a.e(f's_sleep 2\ns_memrealtime s[0:1]\ns_waitcnt lgkmcnt(0)\ns_sub_u32 s0, s0, s100\ns_cmp_lt_u32 s0, {cfg["pad"]}\ns_cbranch_scc1 {lp}')
            a.e(f'''s_or_b32 s0, s3, s2
s_cmp_eq_u32 s0, 0
s_cselect_b32 s1, 0, {OOB}
s_cmp_eq_u32 s0, 200
s_cselect_b32 s1, 32, s1
v_lshlrev_b32 v4, 2, v1
v_mov_b32 v6, s101
v_readlane_b32 s0, v0, 63
v_add_u32 v4, s1, v4
s_nop 1
v_mov_b32 v7, s0
v_cmp_gt_u32 vcc, 64, v4
v_add_co_u32 v6, s[4:5], v6, v4
s_nop 1
v_addc_co_u32 v7, s[4:5], 0, v7, s[4:5]
s_and_b64 exec, vcc, 0xff
s_cbranch_execz L_end
global_store_dword v[6:7], v0, off''')
        a.e('s_endpgm')
    for s in a.cold: a.e(s)
    a.label('L_end')
    a.e('s_endpgm')
    return a

HEADER = open('parallel_sum__ssm_conv_s5__glu_gated_glu__prompt.s.ref').read().split('; Override launch')[0]
def assemble(a):
    out = HEADER + '; @launch grid=(256,1,1) block=(256,1,1) lds=163840\n'
    out += '.amdgcn_target "amdgcn-amd-amdhsa--gfx950"\n.text\n'
    errs = check_hazards(a.lines)
    for e in errs: print('HAZARD', e)
    assert not errs
    out += a.text()
    out += f'''.section .rodata,"a"
.p2align 6
.amdhsa_kernel {KNAME}
  .amdhsa_next_free_vgpr 512
  .amdhsa_next_free_sgpr 102
  .amdhsa_accum_offset 256
  .amdhsa_group_segment_fixed_size 0
  .amdhsa_kernarg_size 128
  .amdhsa_user_sgpr_count 2
  .amdhsa_user_sgpr_kernarg_segment_ptr 1
  .amdhsa_system_sgpr_workgroup_id_x 1
.end_amdhsa_kernel
'''
    return out
if __name__ == '__main__':
    cfg = dict(k1map='R', slots=6, tmall=1)
    for kv in sys.argv[2:]:
        k, v = kv.split('=')
        if k == 'stamp': STAMP[0] = True
        elif k == 'sleep': SLEEP[0] = int(v)
        elif k == 'only': STAMP[0] = True; ONLY[0] = v.split('.'); cfg['only'] = v
        else: cfg[k] = int(v) if v.isdigit() else v
    txt = assemble(kernel(cfg))
    if STAMP[0]: txt = '; STAMPS ' + ','.join(SNAMES) + '\n; CFG ' + str(cfg) + '\n' + txt
    open(sys.argv[1], 'w').write(txt)
```

```python
import sys, copy
from asmlib import *

KNAME = 'parallel_sum__ssm_conv_s5__glu_gated_glu__prompt_kernel'
CS_OFF = 0
HF_OFF = 4 << 20
W2F_OFF = 20 << 20
AGG_OFF = 24 << 20
NONCE_OFF = 25 << 20
FLG_OFF = (25 << 20) + 131072
DIAG_OFF = 26 << 20
WS_BYTES = 32 << 20
NKS = 94
GOLD = 0x9e3779b9
P_X, P_LRE, P_LIM, P_BRE, P_BIM, P_CRE, P_CIM, P_LDT, P_DSK, P_BX, P_WG, P_WU, P_WD, P_OUT, P_DBG, P_WS = [16 + 2 * i for i in range(16)]
NS = 9
SCR = NS * 16384
LOG2E = 0x3fb8aa3b
NLOG2E = 0xbfb8aa3b
OOB = 0x40000000
STAT_OFF = (25 << 20) + 4096
XCH_OFF = 27 << 20
F1_OFF, FX_OFF = 131072, 163840
SW, SG, SU, SB, SA1, SA2, SH, SF = 48, 52, 56, 60, 64, 68, 72, 76
SP, SR = SA1, SA2
SO, SXX, SDK = SG, SA1, SB
sRB, sSL, sD1, sD2 = 4, 5, 6, 7
sRBP, sNB = 8, 9
sDOFF1, sDOFF2, sQOFF1, sQOFF2 = 10, 11, 12, 13
sHB = 14
sT0, sT1 = 80, 81
sM0B, sXO = 82, 83
sMASK = 84
sCNT, sOOBK = 98, 99
sH2 = (18, 19); sW2, sOO = 20, 21
sXS, sXL = 22, 23
sSTO, sDKO, sXO2 = 24, 25, 26
sHL, sWL = 27, 30
sZM = 31
AGS = 8704
sNEEDA = 28
sTP = 34
sP0, sP1 = 44, 45
vD = [3, 4, 5, 6]; vQ = [7, 8]
vRQ = [[9, 10, 11], [12, 13, 14]]
vRD = [15, 16, 17, 18]
vHG, vL16, vAGW, vAGR, vPUB, vTW, vTR, vT = 19, 20, 21, 22, 23, 24, 25, 26
vFP = 27
C1, C2 = 28, 44
TMP = 60
GOF = TMP + 20; EXP = TMP + 35
vC1, vS = 88, 89
AM = 256 + 252
RSL, CSL = SCR + 14336, SCR + 15360
ACC_D, ACC_A, ACC_B = 96, 128, 192
XF = 256; WB = 256 + 160
cLr, cLi, cnLi, cP, cQn, cnP, c16r, c16i, c128r, c128i, c256r, c256i, cqr, cqi, cPr, cPi = range(16)

STAMP = [False]
SNAMES = []
ONLY = [None]
ENC = [None]
VLOG = []
def stamp(a, nm, real=False):
    VLOG.append((nm, a.vm_n, sum('v_mfma' in l for l in a.lines), len(a.lines)))
    if ENC[0] == nm:
        a.e('s_memrealtime s[100:101]'); a.wait_all(vm=False); a.e('v_writelane_b32 v0, s100, 1')
    if not STAMP[0]: return
    if ONLY[0] is not None:
        if nm not in ONLY[0] and nm not in ('rt0', 'rt1', 't0', 'end'): return
        if nm not in ('t0', 'end'): real = True
    if nm not in SNAMES: SNAMES.append(nm)
    i = SNAMES.index(nm); assert i < 64
    a.e(f'{"s_memrealtime" if real else "s_memtime"} s[100:101]')
    a.wait_all(vm=False)
    a.e(f'v_writelane_b32 v0, s100, {i}')
def stamp_out(a):
    if not STAMP[0]: return
    a.e('s_waitcnt vmcnt(0)')
    stamp(a, 'end'); stamp(a, 'rt1', True)
    a.e(f'''s_lshl_b32 s100, s2, 2
s_add_u32 s100, s100, s3
s_lshl_b32 s100, s100, 8
s_add_u32 s100, s100, {DIAG_OFF}
v_lshlrev_b32 v4, 2, v1
buffer_store_dword v0, v4, s[{SW}:{SW+3}], s100 offen''')
def sitem(nm): return ('raw', lambda a: stamp(a, nm), 0)

def items(text, kind=None):
    for ln in text.strip().split('\n'):
        ln = ln.strip()
        if not ln: continue
        op = ln.split()[0]
        if op in TRANS: yield ('t', ln)
        elif op.startswith('s_'): yield ('s', ln)
        else: yield ('v', ln)
def chain(*gens):
    for g in gens: yield from g

def bfround_t(d, s): return f'v_cvt_pk_bf16_f32 v{d}, v{s}, v{s}\nv_lshlrev_b32 v{d}, 16, v{d}\n'
def cmul_sq(dr, di, sr, si, t):
    return f'v_mul_f32 v{t}, v{si}, v{si}\nv_mul_f32 v{di}, v{sr}, v{si}\nv_fma_f32 v{dr}, v{sr}, v{sr}, -v{t}\nv_add_f32 v{di}, v{di}, v{di}\n'
def ssm_consts(C, l0):
    t = TMP + 8
    s = f'''v_lshlrev_b32 v{l0+2}, 16, v{l0+2}
v_mul_f32 v{l0+2}, {LOG2E}, v{l0+2}
v_exp_f32 v{l0+2}, v{l0+2}
v_lshlrev_b32 v{l0}, 16, v{l0}
v_lshlrev_b32 v{l0+1}, 16, v{l0+1}
''' + bfround_t(l0 + 2, l0 + 2) + f'''v_mul_f32 v{t}, v{l0+2}, v{l0}
v_mul_f32 v{t+1}, v{l0+2}, v{l0+1}
v_mul_f32 v{t}, {LOG2E}, v{t}
v_mul_f32 v{t+1}, 0.15915494, v{t+1}
v_exp_f32 v{t}, v{t}
v_fract_f32 v{t+1}, v{t+1}
v_cos_f32 v{t+2}, v{t+1}
v_sin_f32 v{t+3}, v{t+1}
v_mul_f32 v{t+4}, v{l0}, v{l0}
v_fmac_f32 v{t+4}, v{l0+1}, v{l0+1}
v_mul_f32 v{C+cLr}, v{t}, v{t+2}
v_mul_f32 v{C+cLi}, v{t}, v{t+3}
v_rcp_f32 v{t+4}, v{t+4}
v_sub_f32 v{C+cnLi}, 0, v{C+cLi}
v_add_f32 v{t+5}, -1.0, v{C+cLr}
v_add_f32 v{t+4}, v{t+4}, v{t+4}
v_mul_f32 v{t+6}, v{t+5}, v{l0}
v_fmac_f32 v{t+6}, v{C+cLi}, v{l0+1}
v_mul_f32 v{t+7}, v{t+5}, v{l0+1}
v_fmac_f32 v{t+7}, v{C+cnLi}, v{l0}
v_mul_f32 v{C+cP}, v{t+6}, v{t+4}
v_mul_f32 v{C+cQn}, v{t+7}, v{t+4}
v_sub_f32 v{C+cnP}, 0, v{C+cP}
'''
    s += cmul_sq(t, t + 1, C + cLr, C + cLi, t + 8) + cmul_sq(t + 2, t + 3, t, t + 1, t + 8) + cmul_sq(t, t + 1, t + 2, t + 3, t + 8)
    s += cmul_sq(C + c16r, C + c16i, t, t + 1, t + 8) + cmul_sq(t, t + 1, C + c16r, C + c16i, t + 8) + cmul_sq(t + 2, t + 3, t, t + 1, t + 8)
    s += cmul_sq(C + c128r, C + c128i, t + 2, t + 3, t + 8) + cmul_sq(C + c256r, C + c256i, C + c128r, C + c128i, t + 8)
    s += f'''s_mov_b32 s{sT0}, 0
s_mov_b32 s{sT1}, -1
v_cndmask_b32 v{C+cqr}, 1.0, v{C+c16r}, s[{sT0}:{sT1}]
v_cndmask_b32 v{C+cqi}, 0, v{C+c16i}, s[{sT0}:{sT1}]
'''
    for bit, (pr, pi) in ((0, (t, t + 1)), (1, (t + 2, t + 3))):
        s += f'''s_bfe_i32 s{sT0}, s3, {0x10000 | bit}
s_mov_b32 s{sT1}, s{sT0}
v_cndmask_b32 v{t+4}, 1.0, v{pr}, s[{sT0}:{sT1}]
v_cndmask_b32 v{t+5}, 0, v{pi}, s[{sT0}:{sT1}]
v_mul_f32 v{t+6}, v{C+cqr}, v{t+4}
v_mul_f32 v{t+7}, v{C+cqr}, v{t+5}
v_fma_f32 v{C+cqr}, -v{C+cqi}, v{t+5}, v{t+6}
v_fma_f32 v{C+cqi}, v{C+cqi}, v{t+4}, v{t+7}
'''
    s += f'v_mov_b32 v{C+cPr}, 0\nv_mov_b32 v{C+cPi}, 0\n'
    return s

def cfma(dr, di, lr, li, sr, si):
    yield ('v', f'v_fmac_f32 v{dr}, v{lr}, v{sr}')
    yield ('v', f'v_fmac_f32 v{di}, v{lr}, v{si}')
    yield ('v', f'v_fma_f32 v{dr}, -v{li}, v{si}, v{dr}')
    yield ('v', f'v_fmac_f32 v{di}, v{li}, v{sr}')

def f_scale(acc, vRS, tag):
    for k in range(4):
        yield ('lds', f'ds_read_b128 {V(TMP+4+4*k,4)}, v{vRS} offset:{16*k}', tag + 'rs')
    yield ('delay', 3)
    yield ('wl', tag + 'rs')
    for r in range(16):
        yield ('v', f'v_mul_f32 v{acc+r}, v{TMP+4+r}, v{acc+r}')
        yield ('v', f'v_mul_f32 v{acc+16+r}, v{TMP+4+r}, v{acc+16+r}')
def f_agg(acc, C, area, SA, tag):
    sr, si = acc, acc + 16
    for r in range(1, 16):
        t = TMP + 2 * (r & 1)
        yield ('v', f'v_fma_f32 v{t}, v{C+cLr}, v{sr}, v{acc+r}')
        yield ('v', f'v_fma_f32 v{t+1}, v{C+cLr}, v{si}, v{acc+16+r}')
        yield ('v', f'v_fmac_f32 v{t}, v{C+cnLi}, v{si}')
        yield ('v', f'v_fmac_f32 v{t+1}, v{C+cLi}, v{sr}')
        sr, si = t, t + 1
    yield ('lds', f'ds_write_b64 v{vAGW}, v[{sr}:{si}] offset:{area}', tag + 'w')
    yield ('delay', 2)
    yield ('wl', tag + 'w')
    yield ('forcebar',)
    g = TMP + 4
    for j in range(8):
        yield ('lds', f'ds_read_b64 v[{g+2*j}:{g+2*j+1}], v{vAGR} offset:{area+256*j}', tag + f'r{j}')
    yield ('delay', 3)
    yield ('wl', tag + 'r7')
    for j in range(1, 8):
        pr, pi = g + 2 * (j - 1), g + 2 * (j - 1) + 1
        yield from cfma(g + 2 * j, g + 2 * j + 1, C + c16r, C + c16i, pr, pi)
    yield ('v', f'v_and_b32 v{TMP}, s{sZM}, v{g+14}')
    yield ('v', f'v_mov_b32 v{TMP+1}, v{vT}')
    yield ('v', f'v_and_b32 v{TMP+2}, s{sZM}, v{g+15}')
    yield ('v', f'v_mov_b32 v{TMP+3}, v{vT}')
    yield ('vm', f'buffer_store_dwordx4 v[{TMP}:{TMP+3}], v{vPUB}, s[{SA}:{SA+3}], 0 offen sc1', tag + 'pub')
    yield sitem(tag + 'pub')
    for j in range(1, 8):
        pr, pi = g + 2 * (j - 1), g + 2 * (j - 1) + 1
        m = sMASK + 2 * (j - 1)
        yield ('v', f'v_cndmask_b32 v{C+cPr}, v{C+cPr}, v{pr}, s[{m}:{m+1}]')
        yield ('v', f'v_cndmask_b32 v{C+cPi}, v{C+cPi}, v{pi}, s[{m}:{m+1}]')

def ren(acc, spare): return [spare] + [acc + r for r in range(15)]
def f_coef(acc, C, spare):
    an = ren(acc, spare)
    for r in range(16):
        ar, br = acc + r, acc + 16 + r
        yield ('v', f'v_mul_f32 v{an[r]}, v{C+cP}, v{ar}')
        yield ('v', f'v_fmac_f32 v{an[r]}, v{C+cQn}, v{br}')
        yield ('v', f'v_mul_f32 v{br}, v{C+cnP}, v{br}')
        yield ('v', f'v_fmac_f32 v{br}, v{C+cQn}, v{ar}')
def f_gather_issue(G, SA, tag, fill=None):
    for j in range(8):
        yield ('vm', f'buffer_load_dwordx4 {V(G[j],4)}, v{GOF+j}, s[{SA}:{SA+3}], 0 offen sc1', tag + f'g{j}')
        if fill is not None:
            for _ in range(6):
                x = next(fill, None)
                if x is not None: yield x
        else: yield ('delay', 1)
SPIN = 20000
SLEEP = [4]
def tagchk(G):
    L = [f'v_bitop3_b32 v{G[j]+1}, v{G[j]+1}, v{G[j]+3}, v{vT} bitop3:0x7e' for j in range(8)]
    L += [f'v_or3_b32 v{G[0]+1}, v{G[0]+1}, v{G[1]+1}, v{G[2]+1}', f'v_or3_b32 v{G[3]+1}, v{G[3]+1}, v{G[4]+1}, v{G[5]+1}',
          f'v_or3_b32 v{G[0]+1}, v{G[0]+1}, v{G[6]+1}, v{G[7]+1}', f'v_or_b32 v{G[0]+1}, v{G[0]+1}, v{G[3]+1}']
    return L
def f_carry(G, acc, C, spare, SA, sD, tag, kb=0):
    yield ('wv', tag + 'g7')
    for ln in tagchk(G): yield ('v', ln)
    t0 = G[0] + 1
    def chk(a):
        slow = a.newlabel('slow'); ok = a.newlabel('ok')
        a.e(f'v_cmp_ne_u32 vcc, 0, v{t0}\ns_nop 1\ns_cmp_lg_u64 vcc, 0\ns_cbranch_scc1 {slow}')
        a.label(ok)
        s = f'{slow}:\ns_mov_b32 s{sCNT}, 0\n{slow}_l:\ns_sleep {SLEEP[0]}\n'
        for j in range(8):
            s += f'buffer_load_dwordx4 {V(G[j],4)}, v{GOF+j}, s[{SA}:{SA+3}], 0 offen sc1\n'
        s += 's_waitcnt vmcnt(0)\n' + '\n'.join(tagchk(G)) + '\n'
        s += f'''v_cmp_ne_u32 vcc, 0, v{t0}
s_add_u32 s{sCNT}, s{sCNT}, 1
s_cmp_gt_u32 s{sCNT}, {SPIN}
s_cbranch_scc1 {ok}
s_cmp_lg_u64 vcc, 0
s_cbranch_scc1 {slow}_l
s_branch {ok}
'''
        a.cold.append(s)
    yield sitem(tag + 'w')
    yield ('raw', chk, 4)
    yield sitem(tag + 'ok')
    for j in range(6, -1, -1):
        yield from cfma(G[j], G[j] + 2, C + c256r, C + c256i, G[j + 1], G[j + 1] + 2)
    g0, g1 = G[0], G[1]
    yield ('v', f'v_mov_b32 v{g1}, v{g0}')
    yield ('v', f'v_mov_b32 v{g1+2}, v{g0+2}')
    yield ('s', f's_lshl_b32 s{sT0}, s{sD}, 13')
    yield ('s', f's_add_u32 s{sT0}, s{sT0}, s{sHB}')
    yield ('v', f'v_permlane32_swap_b32 v{g0}, v{g1}')
    yield ('v', f'v_permlane32_swap_b32 v{g0+2}, v{g1+2}')
    yield ('s', 's_nop 0')
    yield ('s', f's_add_u32 s{sT1}, s{sT0}, 4096')
    yield from cfma(g0, g0 + 2, C + c128r, C + c128i, g1, g1 + 2)
    yield from cfma(C + cPr, C + cPi, C + cqr, C + cqi, g0, g0 + 2)
    yield ('v', f'v_mul_f32 v{g0}, v{C+cP}, v{C+cPr}')
    yield ('v', f'v_mul_f32 v{g0+1}, v{C+cQn}, v{C+cPr}')
    yield ('v', f'v_fmac_f32 v{g0}, v{C+cQn}, v{C+cPi}')
    yield ('v', f'v_fmac_f32 v{g0+1}, v{C+cnP}, v{C+cPi}')
    an = ren(acc, spare)
    pr, pi = g0, g0 + 1
    for r in range(16):
        ar, br = an[r], acc + 16 + r
        yield ('v', f'v_fmac_f32 v{ar}, v{C+cLr}, v{pr}')
        yield ('v', f'v_fmac_f32 v{br}, v{C+cLr}, v{pi}')
        yield ('v', f'v_fmac_f32 v{ar}, v{C+cLi}, v{pi}')
        yield ('v', f'v_fmac_f32 v{br}, v{C+cnLi}, v{pr}')
        pr, pi = ar, br
    for comp in range(2):
        src = an if comp == 0 else [acc + 16 + r for r in range(16)]
        for k in range(8):
            yield ('v', f'v_cvt_pk_bf16_f32 v{G[2*comp+(k>>2)]+(k&3)}, v{src[2*k]}, v{src[2*k+1]}')
        yield ('lds', f'ds_write_b128 v{vTW}, {V(G[2*comp],4)}', tag + f'tw{comp}a')
        yield ('lds', f'ds_write_b128 v{vTW}, {V(G[2*comp+1],4)} offset:16', tag + f'tw{comp}b')
        yield ('delay', 0)
        for h2 in range(2):
            for e in range(2):
                d = G[4 + 2 * comp + h2] + 2 * e
                yield ('lds', f'ds_read_b64_tr_b16 v[{d}:{d+1}], v{vTR} offset:{h2*32+e*320}', tag + f'tr{comp}{h2}{e}')
            yield ('delay', 0)
    yield ('delay', 4)
    yield ('wl', tag + 'tr111')
    for comp in range(2):
        for h2 in range(2):
            yield ('vm', f'buffer_store_dwordx4 {V(G[4+2*comp+h2],4)}, v{vL16}, s[{SH}:{SH+3}], s{sT0+comp} offen offset:{h2*1024} sc1', 'lastH')
            yield ('delay', 0)

def f_epiq(acc, kbase):
    yield ('s', f's_lshl_b32 s{sXO}, s{sSL}, 13')
    yield ('s', f's_add_u32 s{sXO}, s{sXO}, s{sHB}')
    yield ('s', f's_add_u32 s{sXO}, s{sXO}, {4096*kbase}')
    g = lambda e: acc + 32 * (e >> 4) + (e & 15)
    for n in range(32 + 4):
        if n < 32: yield ('v', f'v_mul_f32 v{g(n)}, v{vC1}, v{g(n)}')
        if 0 <= n - 1 < 32: yield ('t', f'v_exp_f32 v{g(n-1)}, v{g(n-1)}')
        if 0 <= n - 2 < 32: yield ('v', f'v_fma_f32 v{g(n-2)}, v{g(n-2)}, v{vS}, v{vS}')
        if 0 <= n - 3 < 32: yield ('t', f'v_rcp_f32 v{g(n-3)}, v{g(n-3)}')
        e = n - 4
        if n >= 34: yield ('s', 's_nop 0')
        if 0 <= e < 32:
            yield ('v', f'v_mul_f32 v{g(e)}, v{g(e)}, v{g(e)+16}')
            if e & 1:
                U = acc + 32 * (e >> 4) + 16; c = (e >> 3) & 1
                yield ('v', f'v_cvt_pk_bf16_f32 v{U+8*c+((e&7)>>1)}, v{g(e-1)}, v{g(e)}')
                if (e & 7) == 7:
                    yield ('vm', f'buffer_store_dwordx4 v[{U+8*c}:{U+8*c+3}], v{vHG}, s[{SW}:{SW+3}], s{sXO} offen offset:{512*c} sc1', 'lastH')
                    if e == 15: yield ('s', f's_add_u32 s{sXO}, s{sXO}, 4096')

def f_publish(level, delay):
    yield sitem(f'st{level}')
    yield ('after', delay, [sitem(f'ak{level}'), ('wv', 'lastH'), ('vm', f'buffer_store_dword v{vT}, v{vFP}, s[{SF}:{SF+3}], 0 offen offset:{128*level} sc1', None), sitem(f'pub{level}'), ('mark', f'pub{level}')])

def poll_load(dst, vaddr, off, n=1):
    x = '' if n == 1 else f'x{n}'
    return f'buffer_load_dword{x} {V(dst,n)}, v{vaddr}, s[{SF}:{SF+3}], 0 offen offset:{off} sc1'
def poll_check(dst, vaddr, off, need, n=1):
    def cmp_txt():
        s = ''
        if n > 1:
            s += f'v_xor_b32 v{dst}, v{dst}, v{vT}\n'
            for k in range(1, n): s += f'v_bitop3_b32 v{dst}, v{dst}, v{dst+k}, v{vT} bitop3:0xf6\n'
            s += f'v_cmp_ne_u32 vcc, 0, v{dst}\n'
        else: s += f'v_cmp_ne_u32 vcc, v{dst}, v{vT}\n'
        s += 's_nop 1\n'
        s += f's_and_b64 s[{sTP}:{sTP+1}], vcc, s[{need}:{need+1}]\n' if need else 's_cmp_lg_u64 vcc, 0\n'
        return s
    def chk(a):
        slow = a.newlabel('slow'); ok = a.newlabel('ok')
        a.e(cmp_txt() + f's_cbranch_scc1 {slow}')
        a.label(ok)
        a.cold.append(f'''{slow}:
s_mov_b32 s{sCNT}, 0
{slow}_l:
s_add_u32 s{sCNT}, s{sCNT}, 1
s_cmp_gt_u32 s{sCNT}, {SPIN}
s_cbranch_scc1 {ok}
s_sleep {SLEEP[0]}
{poll_load(dst, vaddr, off, n)}
s_waitcnt vmcnt(0)
{cmp_txt()}s_cbranch_scc1 {slow}_l
s_branch {ok}
''')
    return chk

class Sched:
    def __init__(self, a):
        self.a = a; self.keys = {}
        self.stream = None; self.pend = None; self.delay = 0; self.blocked = False
        self.timers = []; self.barq = []; self.maxlds = 2
    def tick(self, force=False):
        used = 0
        for tm in list(self.timers):
            if len(tm) > 2 and not tm[2]() and not force: continue
            tm[0] -= 1
            if tm[0] <= 0 or force:
                self.timers.remove(tm)
                for it in tm[1]: used += self.emit_item(it)
        return used
    def add(self, gen):
        self.stream = gen if self.stream is None else chain(self.stream, gen)
    def push(self, gen):
        rest = ([self.pend] if self.pend is not None else [])
        self.pend = None; self.delay = 0
        self.stream = chain(gen, rest, self.stream if self.stream is not None else [])
    def peek(self):
        if self.pend is None and self.stream is not None:
            self.pend = next(self.stream, None)
            if self.pend is None: self.stream = None
        return self.pend
    def emit_item(self, it):
        a = self.a; k = it[0]
        if k in ('v', 's'): a.e(it[1]); return 1
        if k == 'm': a.e(it[1]); return 2
        if k == 't': a.e(it[1]); return 2
        if k == 'lds': self.keys[it[2]] = a.lds(it[1]); return 1
        if k == 'vm': self.keys[it[2]] = a.vm(it[1]); return 1
        if k == 'wl': return 1 if a.wait(lg=self.keys[it[1]]) else 0
        if k == 'wv': return 1 if a.wait(vm=self.keys[it[1]]) else 0
        if k == 'raw': it[1](a); return it[2]
        if k == 'forcebar': a.e('s_barrier'); return 1
        if k == 'call': it[1](); return 0
        if k == 'after':
            its = [((x[0] + 'i', self.keys[x[1]]) if x[0] in ('wv', 'wl') else x) for x in it[2]]
            self.timers.append([it[1], its]); return 0
        if k == 'when': self.timers.append([it[2], it[3], it[1]]); return 0
        if k == 'wvi': return 1 if a.wait(vm=it[1]) else 0
        if k == 'wli': return 1 if a.wait(lg=it[1]) else 0
        if k == 'onbar': self.barq.append(it[1]); return 0
        if k == 'flush': return self.tick(True)
        if k == 'mark': self.keys[it[1]] = True; return 0
        if k == 'req': assert self.keys.get(it[1]), it[1]; return 0
        raise ValueError(k)
    def head_vm(self):
        return self.delay <= 0 and not self.blocked and self.peek() is not None and self.pend[0] == 'vm'
    def fill(self, budget, vm_ok=True):
        budget -= self.tick()
        if self.delay > 0: self.delay -= 1; return
        if budget <= 0: return
        used = 0; valu_seen = False; self.nl = 0
        while not self.blocked:
            it = self.peek()
            if it is None: return
            k = it[0]
            if k == 'delay': self.delay = it[1]; self.pend = None; return
            if k == 'needbar': self.blocked = True; self.pend = None; return
            if k == 'until':
                if not it[1](): return
                self.pend = None; continue
            if k in ('lds', 'vm') and valu_seen: return
            if k == 'vm':
                if not vm_ok: return
                vm_ok = False
            if k == 'lds':
                nl = getattr(self, 'nl', 0)
                if nl >= self.maxlds: return
                self.nl = nl + 1
            cost = 2 if k in ('t', 'm') else it[2] if k == 'raw' else 1 if k in ('v', 's', 'lds', 'vm', 'wl', 'wv', 'forcebar') else 0
            if used + cost > budget and (used > 0 or (k == 't' and budget < 2)): return
            self.pend = None
            used += self.emit_item(it)
            if k in ('v', 't', 'raw'): valu_seen = True
    def on_barrier(self):
        self.blocked = False
        q = self.barq; self.barq = []
        for its in q:
            for it in its: self.emit_item(it)
    def drain(self, every=None):
        n = 0
        while True:
            if self.blocked:
                self.a.e('s_barrier'); self.blocked = False
            it = self.peek()
            if it is None: return
            self.pend = None
            if it[0] in ('delay', 'until'): continue
            if it[0] == 'needbar': self.blocked = True; continue
            c = self.emit_item(it); n += c
            self.acc = getattr(self, 'acc', 0) + c
            if self.acc >= 6: self.acc = 0; self.tick()
            if every and n >= every[0]:
                n = 0; every[1]()

def P(r): return f'v[{r}:{r+1}]'

def kernel(cfg):
    a = Asm(); a.cold = []
    name = KNAME
    ntx = ' nt' if cfg.get('ntx') else ''
    ntw = ' nt' if cfg.get('ntw') else ''
    a.e(f'.globl {name}\n.p2align 8\n.type {name},@function')
    a.label(name)
    a.e(f's_cmp_ge_u32 s2, 256\ns_cbranch_scc1 L_end')
    if cfg.get('dbg') or ENC[0]: a.e('s_memrealtime s[100:101]')
    a.e('''s_load_dwordx16 s[16:31], s[0:1], 0
s_load_dwordx16 s[32:47], s[0:1], 64
v_lshrrev_b32 v2, 6, v0
v_and_b32 v1, 63, v0
v_readfirstlane_b32 s3, v2''')
    if cfg.get('scr'):
        a.e('s_lshr_b32 s10, s2, 3\ns_lshl_b32 s11, s2, 5\ns_or_b32 s2, s10, s11\ns_and_b32 s2, s2, 255')
    a.e('s_and_b32 s10, s2, 7\ns_lshr_b32 s11, s2, 3')
    mp = cfg['k1map']
    lgr = {'T': 1, 'P': 2, 'R': 3, 'S': 4}[mp]
    lx = 4 - lgr
    ls = 3 - lx
    sSH = 15
    a.e(f'''s_lshr_b32 s{sSH}, s11, {5-lgr}
s_lshr_b32 s{sRB}, s10, {ls}
s_lshl_b32 s{sRB}, s{sRB}, {lgr}
s_add_u32 s{sRB}, s{sRB}, s{sSH}
s_and_b32 s{sSL}, s11, {(32>>lgr)-1}
s_lshl_b32 s{sSL}, s{sSL}, {ls}
s_and_b32 s12, s10, {(1<<ls)-1}
s_add_u32 s{sSL}, s{sSL}, s12
s_lshr_b32 s{sRBP}, s10, 1
s_lshl_b32 s{sRBP}, s{sRBP}, 2
s_lshr_b32 s12, s11, 3
s_add_u32 s{sRBP}, s{sRBP}, s12
s_and_b32 s{sNB}, s11, 7
s_lshl_b32 s10, s{sSL}, 1
s_sub_u32 s11, s10, 12
s_min_u32 s13, s{sSL}, 9
s_cmp_ge_u32 s{sSL}, 11
s_cselect_b32 s{sD1}, s11, s13
s_add_u32 s{sD2}, s{sD1}, 1''')
    RT = 192
    vRTR, vRTL, vRS, vSG = 208, 209, 95, 210
    GA = 212
    vRX = [252, 253, 254, 255]
    XV, XR, DV = 96, 116, 148
    CQ, CD = 148, 168
    tl = 128
    vJ, vPI, vXA, vSTA, vCDS, vPAR, vZ, vTQ = range(tl + 8, tl + 16)
    vCQA, vCQS, vCL = 248, 249, 250
    sU, sKS, sCG, sRO, sRLO, sRST = 84, 85, 86, 87, 40, 41
    sCQL, sCQS, sCDL, sCDS = 89, 90, 91, 92
    sCL, sCS = 0, 1
    t = tl
    a.e(f'''v_and_b32 v{vJ}, 31, v1
v_lshrrev_b32 v{t}, 5, v1
s_lshl_b32 s10, s{sRB}, 7
s_lshl_b32 s11, s{sSL}, 3
s_add_u32 s10, s10, s11
s_lshl_b32 s11, s3, 1
s_add_u32 s10, s10, s11
v_add_u32 v{t}, s10, v{t}
v_lshlrev_b32 v{t+1}, 3, v{vJ}
v_mul_u32_u24 v{vXA}, 1280, v{t}
v_add_u32 v{vXA}, v{vXA}, v{t+1}
v_lshlrev_b32 v{t}, 3, v{t}
v_add_u32 v{t}, {STAT_OFF}, v{t}
v_cmp_eq_u32 vcc, 0, v{vJ}
v_mov_b32 v{vSTA}, {OOB}
v_lshlrev_b32 v{vL16}, 4, v1
v_cndmask_b32 v{vSTA}, v{vSTA}, v{t}, vcc
v_mov_b32 v{vZ}, {NONCE_OFF}
s_lshl_b32 s{sM0B}, s3, 12''')
    a.e(f'''v_lshrrev_b32 v{t}, 3, v1
v_and_b32 v{t+1}, 7, v1
v_lshrrev_b32 v{t+2}, 1, v{t}
v_xor_b32 v{t+3}, v{t+1}, v{t+2}
v_lshlrev_b32 v{t+3}, 4, v{t+3}
v_and_b32 v{t+4}, 3, v{t}
v_lshrrev_b32 v{t+5}, 2, v{t}
v_lshl_add_u32 v{t+4}, v{t+5}, 4, v{t+4}
v_mul_u32_u24 v{t+4}, 1280, v{t+4}
v_add_u32 v{vD[0]}, v{t+4}, v{t+3}
v_xor_b32 v{t+3}, 64, v{t+3}
v_add_u32 v{vD[1]}, v{t+4}, v{t+3}
v_add_u32 v{vD[1]}, 4096, v{vD[1]}
v_add_u32 v{vD[2]}, 8192, v{vD[0]}
v_add_u32 v{vD[3]}, 8192, v{vD[1]}
v_mul_u32_u24 v{t+4}, 1280, v{t}
v_lshl_add_u32 v{vRTL}, v{t+1}, 4, v{t+4}
v_and_b32 v{t+2}, 1, v{t+2}
v_lshlrev_b32 v{t+2}, 2, v{t+2}
v_xor_b32 v{t+3}, v{t+1}, v{t+2}
v_lshlrev_b32 v{t+3}, 4, v{t+3}
v_mul_u32_u24 v{t+4}, 3456, v{t}
v_add_u32 v{vQ[0]}, v{t+4}, v{t+3}
v_add_u32 v{vQ[1]}, {8*3456-1024}, v{vQ[0]}
v_lshl_add_u32 v{vCQA}, v{t+1}, 4, v{t+4}
s_lshr_b32 s14, s3, 1
s_lshl_b32 s15, s14, 7
s_mul_i32 s{sDOFF1}, s{sD1}, 40960
s_lshl_b32 s{sCDS}, s{sRB}, 1
s_add_u32 s{sCDS}, s{sCDS}, s14
s_bfe_u32 s14, s{sCDS}, 0x10002
s_lshl_b32 s14, s14, 4
s_and_b32 s{sCDL}, s{sCDS}, 3
s_add_u32 s14, s14, s{sCDL}
s_lshr_b32 s{sCDL}, s{sCDS}, 3
s_lshl_b32 s{sCDL}, s{sCDL}, 2
s_add_u32 s14, s14, s{sCDL}
s_mul_i32 s14, s14, 1280
s_add_u32 s{sCDL}, s{sDOFF1}, s14
s_lshl_b32 s{sCDS}, s{sCDS}, 4
s_lshl_b32 s14, s{sD1}, 1
s_add_u32 s14, s14, 108
s_and_b32 s{sCQL}, s3, 1
s_add_u32 s14, s14, s{sCQL}
s_lshl_b32 s14, s14, 10
s_add_u32 s{sCDS}, s{sCDS}, s14
s_add_u32 s{sDOFF1}, s{sDOFF1}, s15
s_add_u32 s{sDOFF2}, s{sDOFF1}, 40960
s_mul_i32 s14, s3, {16*3456}
s_lshl_b32 s{sQOFF1}, s{sSL}, 7
s_add_u32 s{sQOFF1}, s{sQOFF1}, s14
s_add_u32 s{sQOFF2}, s{sQOFF1}, 2048
s_lshl_b32 s{sXO}, s{sRB}, 2
s_add_u32 s{sXO}, s{sXO}, s3
s_mul_i32 s{sXO}, s{sXO}, 40960''')
    assert CS_OFF == 0
    a.e(f'''s_lshr_b32 s14, s{sRB}, 3
s_lshl_b32 s14, s14, 4
s_add_u32 s14, s14, s{sSL}
s_and_b32 s15, s{sRB}, 3
s_lshl_b32 s{sCQL}, s15, 2
s_add_u32 s{sCQL}, s{sCQL}, s3
s_mul_i32 s{sCQL}, s{sCQL}, {40*3456}
s_lshl_b32 s{sCQS}, s14, 7
s_add_u32 s{sCQL}, s{sCQL}, s{sCQS}
s_lshl_b32 s{sCQS}, s14, 12
s_cmp_ge_u32 s14, 27
s_cselect_b32 s14, {OOB}, 0
s_add_u32 s{sCQL}, s{sCQL}, s14
s_cmp_lg_u32 s3, 0
s_cselect_b32 s14, {OOB}, s14
s_add_u32 s{sCQS}, s{sCQS}, s14
s_bfe_u32 s14, s{sRB}, 0x10002
s_lshl_b32 s14, s14, 10
s_add_u32 s{sCQS}, s{sCQS}, s14
s_lshr_b32 s14, s15, 1
s_lshl_b32 s14, s14, 9
s_add_u32 s{sCQS}, s{sCQS}, s14
s_and_b32 s14, s15, 1
s_lshl_b32 s14, s14, 3
s_add_u32 s{sCQS}, s{sCQS}, s14
v_and_b32 v{t+2}, 3, v1
v_lshl_add_u32 v{t+2}, v{t+2}, 3, v{t}
v_lshlrev_b32 v{t+2}, 4, v{t+2}
v_bfe_u32 v{t+3}, v1, 2, 1
v_lshl_add_u32 v{vCQS}, v{t+3}, 11, v{t+2}
v_lshrrev_b32 v{t+2}, 5, v1
v_lshlrev_b32 v{t+2}, 9, v{t+2}
v_bfe_u32 v{t+3}, v1, 4, 1
v_lshl_add_u32 v{t+2}, v{t+3}, 3, v{t+2}
v_and_b32 v{t+3}, 15, v1
v_cmp_eq_u32 vcc, 0, v{t+3}
v_mov_b32 v{vCDS}, {OOB}
v_lshlrev_b32 v{vCL}, 2, v1
v_cndmask_b32 v{vCDS}, v{vCDS}, v{t+2}, vcc
v_bfe_u32 v{t}, v1, 2, 1
v_bfe_u32 v{t+1}, v1, 3, 2
v_and_b32 v{vPI}, 3, v1
v_lshl_add_u32 v{vPI}, v{t}, 4, v{vPI}
v_lshl_add_u32 v{vPI}, v{t+1}, 2, v{vPI}
v_lshlrev_b32 v{vPAR}, 1, v{vPI}
v_lshlrev_b32 v{vSG}, 3, v{vPI}
v_mul_u32_u24 v{vTW}, 80, v{vPI}
v_lshrrev_b32 v{t}, 2, v1
v_and_b32 v{t+1}, 3, v1
v_lshlrev_b32 v{t+1}, 2, v{t+1}
v_lshl_add_u32 v{t}, v{t}, 9, v{t+1}
s_lshl_b32 s14, s{sRBP}, 13
v_add_u32 v2, s14, v{t}
s_lshl_b32 s14, s{sRB}, 13
s_lshl_b32 s15, s{sSL}, 9
s_add_u32 s14, s14, s15
s_lshl_b32 s15, s3, 2
s_add_u32 s14, s14, s15
v_mov_b32 v{vFP}, {OOB}
v_writelane_b32 v{vFP}, s14, 0''')
    vFL2 = 2
    a.e(f'''v_lshrrev_b32 v{t}, 5, v1
v_bfe_u32 v{t+1}, v1, 2, 2
v_lshl_add_u32 v{t}, v{t}, 3, v{t+1}
v_lshlrev_b32 v{t}, 7, v{t}
v_bfe_u32 v{t+1}, v1, 3, 1
v_lshl_add_u32 v{t}, v{t+1}, 6, v{t}
v_bfe_u32 v{t+1}, v1, 4, 1
v_lshl_add_u32 v{t}, v{t+1}, 5, v{t}
v_and_b32 v{t+1}, 3, v1
v_lshl_add_u32 v{vRQ[0][0]}, v{t+1}, 3, v{t}
v_xor_b32 v{vRQ[1][0]}, 64, v{vRQ[0][0]}''')
    for jh in range(2):
        for wn in (1, 2): a.e(f'v_add_u32 v{vRQ[jh][wn]}, {65536*wn}, v{vRQ[jh][0]}')
    a.e(f'''v_bfe_u32 v{t}, v1, 1, 3
v_lshrrev_b32 v{t+1}, 5, v1
v_xor_b32 v{t}, v{t}, v{t+1}
v_lshlrev_b32 v{t}, 4, v{t}
v_lshl_add_u32 v{vRD[0]}, v{vJ}, 7, v{t}
v_xor_b32 v{vRD[1]}, 32, v{vRD[0]}
v_xor_b32 v{vRD[2]}, 64, v{vRD[0]}
v_xor_b32 v{vRD[3]}, 96, v{vRD[0]}
s_add_u32 s14, s{sM0B}, {5*16384}''')
    for k in range(4): a.e(f'v_add_u32 v{vRX[k]}, s14, v{vRD[k]}')
    a.e('s_waitcnt lgkmcnt(0)')
    if ENC[0]: a.e('v_writelane_b32 v0, s100, 0\nv_writelane_b32 v0, s100, 1')
    stamp(a, 'rt0', True); stamp(a, 't0')
    def dbg(i):
        if cfg.get('dbg'):
            a.e('s_memrealtime s[0:1]'); a.wait_all(vm=False); a.e(f's_sub_u32 s0, s0, s100\nv_writelane_b32 v0, s0, {i}')
    if cfg.get('dbg'): a.e(f'v_mov_b32 v0, 0\ns_mov_b32 s101, s{P_DBG}\nv_writelane_b32 v0, s{P_DBG+1}, 63')
    dbg(0)

    stage_last = {}
    st = dict(dwin=0, rid={}, bar=-1, xdone=-1, G=0)
    K = {}
    cur = {}
    SLOT = [0, 1, 2, 3, 4, 0, 1, 7, 8, 2, 5, 3, 4, 0, 1, 7, 8, 6, 2, 5, 3, 4, 0, 1, 7]
    while len(SLOT) < 25: SLOT.append(SLOT[len(SLOT) - 9])
    RSLOT = 6
    xlast = {}
    def job(kind, n):
        if kind == 'X':
            slot = 5 + (n & 3)
            ready = lambda: n < 4 or st['xdone'] >= n - 4
        elif kind == 'R':
            slot = RSLOT
            ready = lambda: st['xdone'] >= 9
        else:
            slot = SLOT[n]
            prev = [m for m in range(n) if SLOT[m] == slot]
            if prev: ready = lambda: st['bar'] >= prev[-1] + 2
            elif slot == RSLOT: ready = lambda: st.get('rtread')
            elif slot >= 5: ready = lambda: st['xdone'] >= max(c for c in range(10) if 5 + (c & 3) == slot)
            else: ready = lambda: True
        out = []
        for j in range(4):
            def th(j=j):
                if j == 0:
                    a.e(f's_add_u32 m0, s{sM0B}, {slot*16384}')
                    if kind == 'S':
                        k2, soff = cur['stages'][n]
                        first = n == 0 or cur['stages'][n - 1] != cur['stages'][n]
                        a.e('s_nop 0' if first else f's_add_u32 s{soff}, s{soff}, {256 if k2=="D" else 64*3456}')
                    elif kind == 'X': a.e('s_nop 0' if n == 0 else f's_add_u32 s{sXO}, s{sXO}, 128')
                    else: a.e('s_nop 0')
                if kind == 'X':
                    xlast[n] = a.vm(f'buffer_load_dwordx4 v{vD[j]}, s[{SP}:{SP+3}], s{sXO} offen offset:{1024*j} lds')
                    if n == 9 and j == 3: st['xiss'] = True
                elif kind == 'R':
                    K['rt'] = a.vm(f'buffer_load_dwordx4 v{vRTL}, s[{SR}:{SR+3}], s{sRLO} offen offset:{1024*j}{ntx} lds')
                    if j < 3: a.e(f's_add_u32 s{sRLO}, s{sRLO}, s{sRST}')
                    else: st['riss'] = True
                else:
                    k2, soff = cur['stages'][n]
                    if k2 == 'D': i = a.vm(f'buffer_load_dwordx4 v{vD[j]}, s[{SB}:{SB+3}], s{soff} offen offset:{1024*j} lds')
                    else:
                        srd = SG if j < 2 else SU
                        i = a.vm(f'buffer_load_dwordx4 v{vQ[j&1]}, s[{srd}:{srd+3}], s{soff} offen offset:{1024*j} lds')
                    if j == 3: stage_last[n] = i
            th.kind = kind; th.stage = n; th.ready = ready if j == 0 else (lambda: True)
            out.append(th)
        return out
    dmaq = []
    def make_jobs(nst):
        seq = []
        for n in range(5): seq += [('S', n), ('X', 2 * n), ('X', 2 * n + 1)]
        seq += [('S', n) for n in range(5, nst)]
        seq.insert(cfg.get('rpos', 18), ('R', 0))
        for kd, n in seq: dmaq.extend(job(kd, n))
    def step_x():
        a.srd(SP, P_X, 2621440)
        K['x'] = [a.vm(f'buffer_load_dwordx2 v[{XR+2*n}:{XR+2*n+1}], v{vXA}, s[{SP}:{SP+3}], 0 offen offset:{256*n}') for n in range(5)][-1]
        a.srd(SW, P_WS, WS_BYTES)
        K['n'] = a.vm(f'buffer_load_dword v{vT}, v{vZ}, s[{SW}:{SW+3}], 0 offen sc1')
        a.e(f's_and_b32 s14, s3, 1\ns_cselect_b32 s{SB}, s{P_BIM}, s{P_BRE}\ns_cselect_b32 s{SB+1}, s{P_BIM+1}, s{P_BRE+1}\ns_mov_b32 s{SB+2}, 819200\ns_mov_b32 s{SB+3}, 0x00020000')
        a.srd(SG, P_WG, 640 * 3456); a.srd(SU, P_WU, 640 * 3456 + 2048, add=-2048)
        a.srd(SF, P_WS, 262144, add=FLG_OFF)
    def step_cd():
        for k in range(1 if cur['typ'] == 'A' else 2):
            if k: a.e(f's_add_u32 s{sCDL}, s{sCDL}, 40960')
            a.vm(f'buffer_load_dwordx4 {V(CD+6*k,4)}, v{vL16}, s[{SB}:{SB+3}], s{sCDL} offen')
            K['cd'] = a.vm(f'buffer_load_dword v{CD+6*k+4}, v{vCL}, s[{SB}:{SB+3}], s{sCDL} offen offset:1024')
    def step_cq():
        a.e(f's_bitcmp1_b32 s{sRB}, 2\ns_cselect_b32 s{SH}, s{P_WU}, s{P_WG}\ns_cselect_b32 s{SH+1}, s{P_WU+1}, s{P_WG+1}\ns_mov_b32 s{SH+2}, {640*3456}\ns_mov_b32 s{SH+3}, 0x00020000')
        a.e(f's_mov_b32 s{sCL}, s{sCQL}\ns_mov_b32 s{sCS}, s{sCQS}')
    def step_cl():
        for n in range(5):
            K[f'cl{n}'] = a.vm(f'buffer_load_dwordx4 {V(CQ+4*n,4)}, v{vCQA}, s[{SH}:{SH+3}], s{sCL} offen')
            if n < 4: a.e(f's_add_u32 s{sCL}, s{sCL}, {8*3456}')
        K['cqiss'] = True
    def step_tq():
        a.e(f'v_mul_u32_u24 v{vTQ}, 3456, v1\nv_cmp_gt_u32 vcc, 40, v1\nv_mov_b32 v{tl+6}, {OOB}\ns_nop 0\nv_cndmask_b32 v{vTQ}, v{tl+6}, v{vTQ}, vcc')
        a.vm(f'buffer_load_dword v251, v{vTQ}, s[{SH}:{SH+3}], s{sCL} offen')
    def split_t(d, v, tt):
        return f'v_cvt_pk_bf16_f32 v{tt}, v{v}, v{v}\nv_lshlrev_b32 v{tt}, 16, v{tt}\nv_sub_f32 v{v}, v{v}, v{tt}\nv_cvt_pk_bf16_f32 v{d}, v{tt}, v{v}\n'
    def cq_loads(c, d0, gap):
        for n in range(5):
            its = [('vm', f'buffer_load_dwordx4 {V(CQ+4*n,4)}, v{vCQA}, s[{SH}:{SH+3}], s{sCL} offen', f'cl{n}')]
            its += [('s', f's_add_u32 s{sCL}, s{sCL}, {8*3456}')] if n < 4 else [('mark', 'cqiss')]
            yield ('when', c, d0 + gap * n, its)
    def qq_stream():
        A8 = 232; U8 = 240
        for n in range(5):
            yield ('wv', f'cl{n}')
            for e in range(4):
                dst = A8 + 2 * e if n == 0 else U8 + 2 * (e & 1)
                yield ('v', f'v_lshlrev_b32 v{dst}, 16, v{CQ+4*n+e}')
                yield ('v', f'v_and_b32 v{dst+1}, 0xffff0000, v{CQ+4*n+e}')
                if n:
                    yield ('v', f'v_add_f32 v{A8+2*e}, v{A8+2*e}, v{dst}')
                    yield ('v', f'v_add_f32 v{A8+2*e+1}, v{A8+2*e+1}, v{dst+1}')
        yield from items(f'''s_lshl_b32 s{sCL}, s3, 8
v_add_u32 v{vCL}, {CSL}, v{vCL}
v_add_u32 v{U8}, s{sCL}, v{vCL}''')
        for c in range(4): yield ('v', f'v_permlane32_swap_b32 v{A8+c}, v{A8+c+4}')
        for c in range(4): yield ('v', f'v_add_f32 v{A8+c}, v{A8+c}, v{A8+c+4}')
        yield ('s', f's_mov_b32 s{sTP}, 0xff00ff00')
        for c in range(2): yield ('v', f'v_permlane16_swap_b32 v{A8+c}, v{A8+c+2}')
        for c in range(2): yield ('v', f'v_add_f32 v{A8+c}, v{A8+c}, v{A8+c+2}')
        yield ('s', f's_mov_b32 s{sTP+1}, s{sTP}')
        for c in range(2): yield ('v', f'v_add_f32_dpp v{A8+c}, v{A8+c}, v{A8+c} row_ror:8 row_mask:0xf bank_mask:0xf')
        yield ('v', f'v_cndmask_b32 v{A8}, v{A8}, v{A8+1}, s[{sTP}:{sTP+1}]')
        yield ('lds', f'ds_write_b32 v{U8}, v{A8}', 'cw')
        rest = [('lds', f'ds_read_b32 v{A8+k}, v{vCL} offset:{256*k}', 'cr') for k in range(4)]
        fin = list(items(f'v_add_f32 v{A8}, v{A8}, v{A8+1}\nv_add_f32 v{A8+2}, v{A8+2}, v{A8+3}\nv_add_f32 v{A8+2}, v{A8}, v{A8+2}\n' + split_t(A8, A8 + 2, A8 + 3) + f'v_mov_b32 v{A8+1}, v{vT}'))
        fin += [('vm', f'buffer_store_dwordx2 {P(A8)}, v{vCQS}, s[{SW}:{SW+3}], s{sCS} offen sc1', None), ('mark', 'qqst'), sitem('qq')]
        yield ('after', 3, [('wl', 'cw'), ('onbar', rest + [('after', 4, [('wl', 'cr')] + fin)])])
    def split(d, v, tt):
        a.e(f'v_cvt_pk_bf16_f32 v{tt}, v{v}, v{v}\nv_lshlrev_b32 v{tt}, 16, v{tt}\nv_sub_f32 v{v}, v{v}, v{tt}\nv_cvt_pk_bf16_f32 v{d}, v{tt}, v{v}')
    def tag_ready():
        if not st.get('tag'):
            a.wait(vm=K['n'])
            a.e(f'v_add_u32 v{vT}, {GOLD}, v{vT}\nv_and_b32 v{vT}, 0xbfffbfff, v{vT}'); st['tag'] = True
    def step_dd():
        tag_ready()
        a.wait(vm=K['cd'])
        nk = 1 if cur['typ'] == 'A' else 2
        a.e('s_mov_b32 s14, 0x3f803f80')
        for k in range(nk): a.e(f'v_dot2_f32_bf16 v{CD+6*k+5}, v{CD+6*k}, s14, 0')
        for e in range(1, 5):
            for k in range(nk): a.e(f'v_dot2_f32_bf16 v{CD+6*k+5}, v{CD+6*k+e}, s14, v{CD+6*k+5}')
        a.e('s_nop 1')
        for r in (8, 4, 2, 1):
            a.e('s_nop 1')
            for k in range(nk): a.e(f'v_add_f32_dpp v{CD+6*k+5}, v{CD+6*k+5}, v{CD+6*k+5} row_ror:{r} row_mask:0xf bank_mask:0xf')
        for k in range(nk):
            split(CD + 6 * k, CD + 6 * k + 5, CD + 6 * k + 2)
            a.e(f'v_mov_b32 v{CD+6*k+1}, v{vT}')
            K['p0st'] = a.vm(f'buffer_store_dwordx2 {P(CD+6*k)}, v{vCDS}, s[{SW}:{SW+3}], s{sCDS} offen offset:{2048*k} sc1')
    def step_par():
        a.e(f's_lshl_b32 s14, s{sD1}, 6')
        for i, p in enumerate((P_LRE, P_LIM, P_LDT)):
            a.srd(SH, p, 1280)
            K['par'] = a.vm(f'buffer_load_ushort v{TMP+i}, v{vPAR}, s[{SH}:{SH+3}], s14 offen')
            if cur['typ'] == 'B': K['par'] = a.vm(f'buffer_load_ushort v{TMP+4+i}, v{vPAR}, s[{SH}:{SH+3}], s14 offen offset:64')
    def step_rta():
        Lc, Ld = a.newlabel('rt_c'), a.newlabel('rt_done')
        a.e(f's_lshl_b32 s{sU}, s2, 2\ns_add_u32 s{sU}, s{sU}, s3\ns_cmp_ge_u32 s{sU}, 540\ns_cbranch_scc1 {Lc}')
        a.sdiv(sKS, sU, 10, 540)
        a.e(f's_mul_i32 s{sCG}, s{sKS}, 10\ns_sub_u32 s{sCG}, s{sU}, s{sCG}')
        a.srd(SR, P_WD, 1728 * 1280)
        a.e(f'''s_mul_i32 s{sRLO}, s{sKS}, 40960
s_lshl_b32 s14, s{sCG}, 7
s_add_u32 s{sRLO}, s{sRLO}, s14
s_mov_b32 s{sRST}, {10240-1024}
v_lshrrev_b32 v{vRTR}, 5, v1
v_bfe_u32 v{RT}, v1, 4, 1
v_lshlrev_b32 v{RT}, 2, v{RT}
v_lshl_add_u32 v{vRTR}, v{vRTR}, 4, v{RT}
v_bfe_u32 v{RT}, v1, 2, 2
v_add_u32 v{vRTR}, v{vRTR}, v{RT}
v_lshlrev_b32 v{vRTR}, 7, v{vRTR}
v_and_b32 v{RT}, 3, v1
v_lshl_add_u32 v{vRTR}, v{RT}, 3, v{vRTR}
s_mul_i32 s{sKS}, s{sKS}, 5120
s_add_u32 s{sKS}, s{sKS}, {W2F_OFF+40*5120}''')
        for q in range(4):
            a.e(f's_lshl_b32 s14, s{sCG}, 2\ns_add_u32 s14, s14, {q}')
            a.sdiv(sRO, 14, 5, 40)
            a.e(f'''s_mul_i32 s{sRO}, s{sRO}, {NKS*5120-5120}
s_lshl_b32 s14, s14, 10
s_add_u32 s14, s14, s{sRO}
s_add_u32 s{36+q}, s14, s{sKS}''')
        a.e(f's_branch {Ld}')
        a.label(Lc)
        a.e(f's_sub_u32 s{sU}, s{sU}, 540\ns_cmp_ge_u32 s{sU}, 200\ns_cselect_b32 s{sKS}, 1, 0')
        a.e(f's_cselect_b32 s{SR}, s{P_CIM}, s{P_CRE}\ns_cselect_b32 s{SR+1}, s{P_CIM+1}, s{P_CRE+1}\ns_mov_b32 s{SR+2}, 819200\ns_mov_b32 s{SR+3}, 0x00020000')
        a.e(f's_mul_i32 s14, s{sKS}, 200\ns_sub_u32 s{sU}, s{sU}, s14')
        a.sdiv(sCG, sU, 5, 300)
        a.e(f's_mul_i32 s14, s{sCG}, 5\ns_sub_u32 s{sRO}, s{sU}, s14')
        a.e(f'''s_mul_i32 s{sRLO}, s{sCG}, 20480
s_lshl_b32 s14, s{sRO}, 8
s_add_u32 s{sRLO}, s{sRLO}, s14
s_mov_b32 s{sRST}, {5120-1024}
v_lshrrev_b32 v{RT}, 4, v1
v_and_b32 v{RT+1}, 15, v1
v_mul_u32_u24 v{vRTL}, 1280, v{RT}
v_lshl_add_u32 v{vRTL}, v{RT+1}, 4, v{vRTL}
v_lshlrev_b32 v{RT}, 4, v{RT}
v_lshl_add_u32 v{vRTR}, v{RT+1}, 8, v{RT}''')
        a.sdiv(sU, sCG, 5, 60)
        a.e(f'''s_mul_i32 s{sU}, s{sU}, {NKS*5120-5120}
s_lshl_b32 s14, s{sCG}, 10
s_add_u32 s{sU}, s{sU}, s14
s_lshl_b32 s14, s{sRO}, 3
s_add_u32 s14, s14, s{sKS}
s_mul_i32 s14, s14, 5120
s_add_u32 s{sU}, s{sU}, s14
s_cmp_ge_u32 s{sCG}, 40
s_cselect_b32 s14, {OOB}, {W2F_OFF}
s_add_u32 s36, s{sU}, s14
s_add_u32 s37, s36, 10240
s_add_u32 s38, s36, 20480
s_add_u32 s39, s36, 30720''')
        a.label(Ld)
        a.e(f's_add_u32 s14, s{sM0B}, {RSLOT*16384}\nv_add_u32 v{vRTR}, s14, v{vRTR}')
    def rt_read(a):
        a.wait(vm=K['rt'])
        lc, ld = a.newlabel('rtc'), a.newlabel('rtd')
        a.e(f's_cmp_eq_u32 s{sRST}, {5120-1024}\ns_cbranch_scc1 {lc}')
        for q in range(4):
            for e in range(2): a.e(f'ds_read_b64_tr_b16 v[{RT+4*q+2*e}:{RT+4*q+2*e+1}], v{vRTR} offset:{q*32+e*1024}')
        a.e(f's_branch {ld}')
        a.label(lc)
        for q in range(4):
            for e in range(2): K['rtr'] = a.lds(f'ds_read_b64 v[{RT+4*q+2*e}:{RT+4*q+2*e+1}], v{vRTR} offset:{q*64+e*8}')
        a.label(ld)
    def step_j():
        for _ in range(4):
            assert dmaq[0].ready(); dmaq.pop(0)()
    def step_st():
        a.wait(vm=K['x'])
        stamp(a, 'x')
        for n in range(10):
            a.e(f'v_lshlrev_b32 v{XV+2*n}, 16, v{XR+n}\nv_and_b32 v{XV+2*n+1}, 0xffff0000, v{XR+n}')
        m_, q_ = tl, tl + 2
        a.e(f'v_pk_add_f32 {P(m_)}, {P(XV)}, {P(XV+2)}\nv_pk_add_f32 {P(q_)}, {P(XV+4)}, {P(XV+6)}')
        for n in range(4, 10, 2):
            a.e(f'v_pk_add_f32 {P(m_)}, {P(m_)}, {P(XV+2*n)}\nv_pk_add_f32 {P(q_)}, {P(q_)}, {P(XV+2*n+2)}')
        a.e(f'v_pk_add_f32 {P(m_)}, {P(m_)}, {P(q_)}\nv_add_f32 v{m_}, v{m_}, v{m_+1}')
        def red32(v, tt):
            for r in (8, 4, 2, 1):
                a.e(f's_nop 1\nv_add_f32_dpp v{v}, v{v}, v{v} row_ror:{r} row_mask:0xf bank_mask:0xf')
            a.e(f'v_mov_b32 v{tt}, v{v}\ns_nop 1\nv_permlane16_swap_b32 v{v}, v{tt}\ns_nop 0\nv_add_f32 v{v}, v{v}, v{tt}')
        red32(m_, m_ + 1)
        a.e(f'v_mul_f32 v{m_}, 0xbacccccd, v{m_}')
        for n in range(10): a.e(f'v_pk_add_f32 {P(XV+2*n)}, {P(XV+2*n)}, {P(m_)} op_sel_hi:[1,0]')
        a.e(f'v_pk_mul_f32 {P(q_)}, {P(XV)}, {P(XV)}\nv_pk_mul_f32 {P(tl+4)}, {P(XV+2)}, {P(XV+2)}')
        for n in range(2, 10, 2):
            a.e(f'v_pk_fma_f32 {P(q_)}, {P(XV+2*n)}, {P(XV+2*n)}, {P(q_)}\nv_pk_fma_f32 {P(tl+4)}, {P(XV+2*n+2)}, {P(XV+2*n+2)}, {P(tl+4)}')
        a.e(f'v_pk_add_f32 {P(q_)}, {P(q_)}, {P(tl+4)}\nv_add_f32 v{q_}, v{q_}, v{q_+1}')
        red32(q_, q_ + 1)
        a.e(f'v_mul_f32 v{q_}, 0x3acccccd, v{q_}\n' + bfround_t(q_, q_) + f'v_add_f32 v{q_}, 0x3727c5ac, v{q_}\n' + bfround_t(q_, q_) + f'v_sqrt_f32 v{q_}, v{q_}')
        tag_ready()
        a.e(f'v_mov_b32 v{m_+1}, v{vT}\nv_cvt_pk_bf16_f32 v{m_}, v{m_}, v{q_}')
        K['p0st'] = a.vm(f'buffer_store_dwordx2 {P(m_)}, v{vSTA}, s[{SW}:{SW+3}], 0 offen sc1')
        stamp(a, 'stp')
    steps = dict(x=step_x, cd=step_cd, cq=step_cq, par=step_par, ra=step_rta, j=step_j, st=step_st, dd=step_dd, tq=step_tq, cl=step_cl)
    order = cfg.get('p0', 'x.cd.j.j.par.cq.ra.j.st.j.dd.j.j').split('.')

    def rt_flow(SPR):
        pub = ('onbar', [('vm', f'buffer_store_dword v{vT}, v{SPR+2}, s[{SF}:{SF+3}], 0 offen sc1', None), sitem('f1pub'), ('mark', 'f1pub')])
        sts = [('vm', f'buffer_store_dwordx4 v[{RT+4*q}:{RT+4*q+3}], v{vL16}, s[{SW}:{SW+3}], s{36+q} offen sc1', 'p0st') for q in range(4)]
        c = lambda: st.get('riss')
        d = cfg.get('rtdelay', 24)
        yield ('when', c, d, [('raw', rt_read, 10)])
        yield ('when', c, d + 4, [('call', lambda: (a.wait(lg=K['rtr']), st.__setitem__('rtread', True), st.__setitem__('rtbar', st['bar']))), sts[0]])
        g = cfg.get('stgap', 4)
        yield ('when', c, d + 4 + g, [sts[1]])
        yield ('when', c, d + 4 + 2 * g, [sts[2]])
        yield ('when', c, d + 4 + 3 * g, [sts[3], ('mark', 'rtst')])
        yield ('when', lambda: cur['sch'].keys.get('rtst'), cfg.get('f1delay', 26), [('wv', 'p0st'), pub])
    def eg_issue(nk):
        yield from early_gather(nk, True)
    def early_gather(nk, issue=False):
        lds_ = [f'buffer_load_dwordx2 {P(GA)}, v{vSG}, s[{SW}:{SW+3}], s{sT0} offen sc1']
        lds_ += [f'buffer_load_dwordx4 {V(GA+4+4*k,4)}, v{vL16}, s[{SW}:{SW+3}], s{sT1} offen offset:{1024*k} sc1' for k in range(2 * nk)]
        chk_ = [f'v_xor_b32 v{GA+2}, v{GA+1}, v{vT}']
        for k in range(2 * nk):
            chk_ += [f'v_bitop3_b32 v{GA+3}, v{GA+5+4*k}, v{GA+7+4*k}, v{vT} bitop3:0x7e', f'v_or_b32 v{GA+2}, v{GA+2}, v{GA+3}']
        if issue:
            yield from items(f'''s_lshl_b32 s{sT0}, s{sRB}, 2
s_add_u32 s{sT0}, s{sT0}, s3
s_lshl_b32 s{sT0}, s{sT0}, 8
s_add_u32 s{sT0}, s{sT0}, {STAT_OFF}
s_lshl_b32 s{sT1}, s{sD1}, 11
s_add_u32 s{sT1}, s{sT1}, {108*1024}''')
            for k, ln in enumerate(lds_): yield ('when', lambda: st['G'] >= cfg.get('egat', 10), 1 + k, [('vm', ln, 'eg')] + ([('mark', 'egiss')] if k == len(lds_) - 1 else []))
            return
        yield ('until', lambda: st['G'] >= cfg.get('egck', 16) and cur['sch'].keys.get('egiss'))
        yield ('wv', 'eg')
        yield sitem('egw')
        for ln in chk_: yield ('v', ln)
        def chk(a):
            slow = a.newlabel('slow'); ok = a.newlabel('ok')
            a.e(f'v_cmp_ne_u32 vcc, 0, v{GA+2}\ns_nop 1\ns_cmp_lg_u64 vcc, 0\ns_cbranch_scc1 {slow}')
            a.label(ok)
            a.cold.append(f'{slow}:\ns_mov_b32 s{sCNT}, 0\n{slow}_l:\ns_sleep {SLEEP[0]}\n' + '\n'.join(lds_) + '\ns_waitcnt vmcnt(0)\n' + '\n'.join(chk_) + f'''
v_cmp_ne_u32 vcc, 0, v{GA+2}
s_add_u32 s{sCNT}, s{sCNT}, 1
s_cmp_gt_u32 s{sCNT}, {SPIN}
s_cbranch_scc1 {ok}
s_cmp_lg_u64 vcc, 0
s_cbranch_scc1 {slow}_l
s_branch {ok}
''')
        yield ('raw', chk, 4)
        yield sitem('egok')
        yield from items(f'''v_and_b32 v{vS}, 0xffff0000, v{GA}
v_and_b32 v{GA+2}, 0xffff, v{GA}
v_rcp_f32 v{GA+3}, v{vS}
v_lshl_or_b32 v{GA+2}, v{GA+2}, 16, v{GA+2}
v_accvgpr_write_b32 {R(AM)}, v{GA+2}
v_accvgpr_write_b32 {R(AM+1)}, 0
v_accvgpr_write_b32 {R(AM+2)}, v{GA+2}
v_accvgpr_write_b32 {R(AM+3)}, 0
v_mul_f32 v{vC1}, {NLOG2E}, v{GA+3}
s_lshl_b32 s{sT0}, s3, 7
s_add_u32 s{sT0}, s{sT0}, {RSL}
v_lshrrev_b32 v{vSG}, 1, v{vSG}
v_add_u32 v{vSG}, s{sT0}, v{vSG}
v_lshrrev_b32 v{vRS}, 5, v1
v_lshl_add_u32 v{vRS}, v{vRS}, 6, s{sT0}''')
        yield ('lds', f'ds_write_b32 v{vSG}, v{GA+3}', 'rsw')
        for k in range(2):
            yield ('m', f'v_mfma_f32_32x32x16_bf16 {V(ACC_D+16*k,16)}, {R(AM,4)}, {V(GA+4+4*k,4)}, {V(ACC_D+16*k,16)}')
            yield ('delay', 0)
        yield ('mark', 'corrD1')

    setup = f'''s_lshl_b32 s{sHB}, s{sRB}, 1
s_lshr_b32 s{sT0}, s3, 1
s_add_u32 s{sHB}, s{sHB}, s{sT0}
s_mul_i32 s{sHB}, s{sHB}, {NKS*4096}
s_and_b32 s{sT0}, s3, 1
s_lshl_b32 s{sT0}, s{sT0}, 11
s_add_u32 s{sHB}, s{sHB}, s{sT0}
s_add_u32 s{sHB}, s{sHB}, {HF_OFF}
s_and_b32 s{sT0}, s2, 1
s_lshl_b32 s{sT1}, s{sRBP}, 1
s_add_u32 s{sT1}, s{sT1}, s{sT0}
s_lshl_b32 s{sT0}, s{sT0}, 2
s_add_u32 s{sT0}, s{sT0}, s3
s_mul_i32 s{sW2}, s{sNB}, {NKS}
s_add_u32 s{sW2}, s{sW2}, s{sT0}
s_mul_i32 s{sW2}, s{sW2}, 5120
s_add_u32 s{sW2}, s{sW2}, {W2F_OFF}
s_lshl_b32 s{sT0}, s{sT0}, 12
s_add_u32 s{sT0}, s{sT0}, {HF_OFF}
s_mul_i32 s{sH2[1]}, s{sT1}, {NKS*4096}
s_add_u32 s{sH2[1]}, s{sH2[1]}, s{sT0}
s_xor_b32 s{sH2[0]}, s{sT1}, 1
s_mul_i32 s{sH2[0]}, s{sH2[0]}, {NKS*4096}
s_add_u32 s{sH2[0]}, s{sH2[0]}, s{sT0}
s_mul_i32 s{sHL}, s{sT1}, {NKS*4096}
s_add_u32 s{sHL}, s{sHL}, s{sM0B}
s_add_u32 s{sHL}, s{sHL}, {HF_OFF+62*4096}
s_mul_i32 s{sWL}, s{sNB}, {NKS}
s_add_u32 s{sWL}, s{sWL}, s3
s_mul_i32 s{sWL}, s{sWL}, 5120
s_add_u32 s{sWL}, s{sWL}, {W2F_OFF+62*5120}
s_lshl_b32 s{sT1}, s{sT1}, 2
s_add_u32 s{sT1}, s{sT1}, s3
s_lshl_b32 s{sSTO}, s{sT1}, 7
s_add_u32 s{sSTO}, s{sSTO}, {STAT_OFF}
s_mul_i32 s{sXO2}, s{sT1}, 20480
s_mul_i32 s{sDKO}, s{sNB}, 160
s_add_u32 s{sXO2}, s{sXO2}, s{sDKO}
s_lshl_b32 s{sOO}, s{sXO2}, 1
s_lshl_b32 s{sT0}, s2, 2
s_add_u32 s{sT0}, s{sT0}, s3
s_mul_i32 s{sXS}, s{sT0}, 5120
s_add_u32 s{sXS}, s{sXS}, {XCH_OFF}
s_xor_b32 s{sT0}, s{sT0}, 4
s_mul_i32 s{sXL}, s{sT0}, 5120
s_add_u32 s{sXL}, s{sXL}, {XCH_OFF}
s_mov_b32 s{sNEEDA}, -1
s_mov_b32 s{sNEEDA+1}, 0xfff
v_and_b32 v{GOF}, 31, v1
v_lshrrev_b32 v{GOF+2}, 5, v1
v_bfe_u32 v{GOF+1}, v1, 2, 1
v_lshlrev_b32 v{GOF+1}, 10, v{GOF+1}
v_lshl_add_u32 v{GOF+1}, v{GOF+2}, 8, v{GOF+1}
v_bfe_u32 v{GOF+3}, v1, 3, 2
v_lshl_add_u32 v{GOF+1}, v{GOF+3}, 6, v{GOF+1}
v_and_b32 v{GOF+3}, 3, v1
v_lshl_add_u32 v{vHG}, v{GOF+3}, 4, v{GOF+1}
s_lshl_b32 s{sT0}, s3, 9
s_add_u32 s{sT0}, s{sT0}, {SCR}
v_lshl_add_u32 v{vAGW}, v1, 3, s{sT0}
v_lshlrev_b32 v{GOF+1}, 3, v{GOF}
v_add_u32 v{vAGR}, {SCR}, v{GOF+1}
s_mul_i32 s{sT0}, s3, 2560
s_add_u32 s{sT0}, s{sT0}, {SCR+4096}
v_lshl_add_u32 v{vTW}, v{GOF+2}, 5, v{vTW}
v_add_u32 v{vTW}, s{sT0}, v{vTW}
v_lshrrev_b32 v{GOF+1}, 4, v1
v_bfe_u32 v{GOF+4}, v1, 2, 2
v_lshl_add_u32 v{GOF+1}, v{GOF+1}, 3, v{GOF+4}
v_mul_u32_u24 v{GOF+1}, 80, v{GOF+1}
v_lshl_add_u32 v{GOF+1}, v{GOF+3}, 3, v{GOF+1}
v_add_u32 v{vTR}, s{sT0}, v{GOF+1}
'''
    def setup_sa(SA, sD):
        def f(a):
            a.e(f'''s_mul_i32 s{SA+2}, s{sD}, {AGS}
s_add_u32 s{SA+2}, s{SA+2}, {AGG_OFF}
s_add_u32 s{SA}, s{P_WS}, s{SA+2}
s_addc_u32 s{SA+1}, s{P_WS+1}, 0
s_mov_b32 s{SA+2}, {AGS}
s_mov_b32 s{SA+3}, 0x00020000''')
        return ('raw', f, 6)
    def setup_scc2(a):
        a.e(f'''s_cmp_eq_u32 s{sT1}, 1
s_cselect_b32 s{sT0}, 8192, s{sOOBK}
s_cmp_eq_u32 s3, 0
s_cselect_b32 s{sT0}, s15, s{sT0}
s_cselect_b32 s{sZM}, -1, 0''')
    def setup_scc3(a):
        a.e(f'''s_cmp_eq_u32 s{sSL}, 10
s_cselect_b32 s{sT0}, s{sOOBK}, s{sT0}''')
    setup_sh = ('raw', lambda a: a.e(f's_mov_b32 s{SH}, s{P_WS}\ns_mov_b32 s{SH+1}, s{P_WS+1}\ns_cmp_eq_u32 s{sSL}, 10\ns_cselect_b32 s{SH+2}, 0, {WS_BYTES}\ns_mov_b32 s{SH+3}, 0x00020000'), 5)
    setup1b = f'''s_lshl_b32 s15, s{sRB}, 9
s_or_b32 s{sT1}, s15, s3
s_mov_b32 s{sOOBK}, 0x100000
'''
    setup2 = f'''v_lshlrev_b32 v{GOF+1}, 4, v{GOF}
v_add_u32 v{vPUB}, s{sT0}, v{GOF+1}
s_sub_u32 s15, s15, 512
v_add_u32 v{EXP}, 8192, v{GOF+1}
v_add_u32 v{GOF+1}, s15, v{GOF+1}
v_lshlrev_b32 v{GOF+2}, 9, v{GOF+2}
v_sub_u32 v{GOF}, v{GOF+1}, v{GOF+2}
s_lshr_b32 s{sOOBK}, s3, 1
s_and_b32 s{sOOBK}, s{sOOBK}, s2
s_lshl_b32 s{sOOBK}, s{sOOBK}, 30
'''
    for j in range(1, 8): setup2 += f'v_subrev_u32 v{GOF+j}, {1024*j}, v{GOF}\n'
    for j in range(8): setup2 += f'v_min_u32 v{GOF+j}, v{GOF+j}, v{EXP}\n'
    def mask_items():
        for j in range(1, 8):
            m = sMASK + 2 * (j - 1)
            yield ('raw', lambda a, j=j, m=m: a.e(f's_cmp_eq_u32 s3, {j>>1}\ns_cselect_b32 s{m+(j&1)}, -1, 0\ns_mov_b32 s{m+1-(j&1)}, 0'), 3)
    def f1_pub(SPR):
        vF1P = SPR + 2
        yield ('raw', lambda a: a.e(f's_lshl_b32 s{sT0}, s2, 4\ns_add_u32 s{sT0}, s{sT0}, {F1_OFF}\ns_cmp_lg_u32 s3, 0\ns_cselect_b32 s{sT0}, {OOB}, s{sT0}\nv_mov_b32 v{vF1P}, {OOB}\nv_writelane_b32 v{vF1P}, s{sT0}, 0'), 6)
        yield ('raw', lambda a: a.e(f's_or_b32 s{sT0}, s2, s3\ns_cselect_b32 s{sT0}, {OOB}, {NONCE_OFF}\nv_mov_b32 v{SPR+4}, {OOB}\nv_writelane_b32 v{SPR+4}, s{sT0}, 0'), 4)
        yield ('s', f's_lshl_b32 s{sT0}, s3, 10')
        yield ('s', f's_add_u32 s{sT0}, s{sT0}, {F1_OFF}')
        yield ('v', f'v_add_u32 v{SPR+1}, s{sT0}, v{vL16}')
    def f1_chk(SPR):
        yield ('vm', poll_load(SPR, SPR + 1, 0), 'f1')
        yield ('after', cfg.get('polld', 28), [('req', 'f1pub'), ('wv', 'f1'), sitem('f1w'), ('raw', poll_check(SPR, SPR + 1, 0, None), 4),
               ('onbar', [('vm', f'buffer_store_dword v{vT}, v{SPR+4}, s[{SW}:{SW+3}], 0 offen sc1', None), ('call', lambda: st.__setitem__('f1ok', True)), sitem('f1ok')])])

    def build(units):
        stages = []; groups = []
        for ui, (kind, acc, soff) in enumerate(units):
            ns = 5 if kind == 'D' else 10
            for s in range(ns):
                n = len(stages); stages.append((kind, soff))
                for g in range(4): groups.append((ui, kind, acc, n, s, g))
        return stages, groups
    bars = [0, 1, 2, 3, 4] + list(range(5, 25, 2))
    def reads(G, groups):
        ui, kind, acc, n, s, g = groups[G]
        slot = SLOT[n]; win = slot // 4; base = (slot % 4) * 16384
        buf = WB + 16 * (G % 3)
        out = []
        if kind == 'Q':
            for m in range(4):
                jh, mat = m >> 1, m & 1
                out.append([f'ds_read_b64_tr_b16 {R(buf+4*m+2*e,2)}, v{vRQ[jh][win]} offset:{base+g*4096+mat*2048+e*512}' for e in range(2)])
        else:
            for m in range(4):
                ks, mat = 2 * g + (m >> 1), m & 1
                out.append([f'ds_read_b128 {R(buf+4*m,4)}, v{vRD[ks&3]} offset:{base+(ks>>2)*8192+mat*4096}'])
            if ui == 0:
                for m in range(2):
                    ks = 2 * G + m
                    out[2 * m + 1].append(f'ds_read_b128 {R(XF+4*ks,4)}, v{vRX[ks&3]} offset:{((ks>>2)&3)*16384}')
        return out, (win if kind == 'D' else None)
    def barrier_for(n, stages, sch):
        nxt = min([b for b in bars if b > n] + [len(stages)])
        need = min(nxt, len(stages)) - 1
        while need not in stage_last:
            assert dmaq[0].ready(), (n, dmaq[0].kind, dmaq[0].stage); dmaq.pop(0)()
        a.wait(vm=stage_last[need])
        a.e('s_barrier')
        st['bar'] = n
        sch.on_barrier()
    def set_dwin(w):
        if w is not None and w != st['dwin']:
            d = (w - st['dwin']) * 65536
            for r in vRD: a.e(f'v_add_u32 v{r}, {d & 0xffffffff}, v{r}')
            st['dwin'] = w

    class P2: pass
    def p2_load(p, kind, i, j, reg):
        late = i >= 8
        if kind == 'W': off, sb, sreg = ((i - 8) * 20480, sWL, sP1) if late else (i * 40960, sW2, sP1)
        else: off, sb, sreg = ((i - 8) * 16384, sHL, sP0) if late else (i * 32768, sH2[int(kind[1])], sP0)
        key = (kind, i, j // 4)
        assert st.get('f1ok')
        if kind != 'W': assert st.get('lvl', 0) >= (1 if i < 2 else 2 if i < 8 else 3), (kind, i)
        if p.cur.get(sreg) != key:
            a.e(f's_add_u32 s{sreg}, s{sb}, {off + (j // 4) * 4096}')
            if i == 7: a.e(f's_add_u32 s{sreg}, s{sreg}, s{sOOBK}')
            p.cur[sreg] = key
        p.buf[kind, i, j] = reg
        p.id[kind, i, j] = a.vm(f'buffer_load_dwordx4 {R(reg,4)}, v{vL16}, s[{SW}:{SW+3}], s{sreg} offen offset:{1024*(j%4)} sc1')

    def emit_groups(stages, groups, sch, fillers, pre_load, pool, on_unit):
        lastu = groups[-1][0]
        freed = set()
        for G in range(len(groups)):
            ui, kind, acc, n, s, g = groups[G]
            st['G'] = G
            if s == 0 and g == 0:
                on_unit(ui)
                if ui in fillers: sch.add(fillers[ui])
                stamp(a, f'U{ui+1}'); dbg(1 + ui)
            if cfg.get('gst') and g == 0 and s > 0 and str(ui + 1) in str(cfg['gst']): stamp(a, f'u{ui+1}s{s}')
            nx = G + 2
            rd = None
            if nx < len(groups): rd, win = reads(nx, groups)
            buf = WB + 16 * (G % 3)
            for m in range(4):
                if kind == 'Q': ks = 4 * s + g; d = acc + 16 * m
                else: ks = 8 * s + 2 * g + (m >> 1); d = acc + 16 * (m & 1)
                if m == 0:
                    a.wait(lg=st['rid'][G])
                    if ui == 0 and G & 1: st['xdone'] = G >> 1
                c = '0' if ks == 0 else V(d, 16)
                if kind == 'Q': a.e(f'v_mfma_f32_32x32x16_bf16 {V(d,16)}, {R(buf+4*m,4)}, {R(XF+4*ks,4)}, {c}')
                else: a.e(f'v_mfma_f32_32x32x16_bf16 {V(d,16)}, {R(XF+4*ks,4)}, {R(buf+4*m,4)}, {c}')
                n0 = len(a.lines); budget = 0
                if m == 0 and rd and groups[nx][5] == 0 and groups[nx][3] in bars:
                    barrier_for(groups[nx][3], stages, sch); budget -= 2
                if rd and m == 1 and groups[nx][0] == 0 and not nx & 1:
                    while (nx >> 1) not in xlast or (dmaq[0].kind == 'X' and dmaq[0].stage == nx >> 1):
                        assert dmaq[0].ready(); dmaq.pop(0)()
                    a.wait(vm=xlast[nx >> 1])
                if rd:
                    for t_ in rd[m]: st['rid'][nx] = a.lds(t_)
                if ui == lastu and ks >= 1 and ks - 1 not in freed:
                    freed.add(ks - 1); pool.append(XF + 4 * (ks - 1))
                dma_ok = dmaq and dmaq[0].ready()
                lead = ((dmaq[0].stage - n) if dmaq[0].kind == 'S' else 0) if dmaq else 99
                did = False
                if ui == 0:
                    if dma_ok and not sch.head_vm() and (m != 0 or cfg.get('u1all', 0)): dmaq.pop(0)(); did = True
                elif m in (1, 3):
                    if dma_ok and (m == 3 or lead <= cfg.get('lead2', 5)): dmaq.pop(0)(); did = True
                    elif not sch.head_vm() and not st.get('fvm'): did = pre_load()
                elif m == 2:
                    if dma_ok and lead <= cfg.get('minlead', 2): dmaq.pop(0)(); did = True
                if m == 3 and G + 3 < len(groups): set_dwin(reads(G + 3, groups)[1])
                v0_ = a.vm_n
                sch.fill((st.get('slots', cfg['slots']) if cur['typ'] == 'A' else cfg.get('slotsB', 8)) - (len(a.lines) - n0) - (1 if m == 3 else 0) + (cfg.get('u1extra', 4) if ui == 0 else 0), vm_ok=not did)
                st['fvm'] = a.vm_n > v0_

    unitsA = [('D', ACC_D, sDOFF1), ('Q', ACC_A, sQOFF1), ('Q', ACC_B, sQOFF2)]
    unitsB = [('D', ACC_D, sDOFF1), ('D', ACC_A, sDOFF2), ('Q', ACC_B, sQOFF1)]
    a.e(f's_cmp_ge_u32 s{sSL}, 11\ns_cbranch_scc1 L_typeB')
    st0 = copy.deepcopy(st); as0 = a.state()
    for typ, units in (('A', unitsA), ('B', unitsB)):
        if typ == 'B':
            a.label('L_typeB')
            a.restore(as0); st.clear(); st.update(copy.deepcopy(st0)); stage_last.clear(); xlast.clear(); K.clear()
        stages, groups = build(units)
        cur.update(units=units, stages=stages, typ=typ)
        make_jobs(len(stages))
        assert order.index('par') < order.index('cq') < order.index('ra')
        for stp in order: steps[stp]()
        sch = Sched(a); cur['sch'] = sch; sch.keys.update(K)
        p = P2(); p.buf = {}; p.id = {}; p.cur = {}
        SPR = TMP + 30
        FL = vD[2]
        H = lambda ps, i: [(f'H{ps}', i, j) for j in range(4)]
        Wf = lambda i: [('W', i, j) for j in range(5)]
        HR = lambda ps, ii: [(f'H{ps}', i, j) for j in range(4) for i in ii]
        pool = []
        CB = [256 + 208 + 4 * k for k in range(11)]
        poolB = []
        lq = H(0, 0) + H(0, 1) + H(1, 0) + H(1, 1) + sum([Wf(i) for i in range(8)], []) + sum([H(0, i) for i in range(2, 5)], []) + HR(0, (5, 6, 7)) + sum([Wf(i) for i in range(8, 16)], [])[:cfg.get('wlpre', 10)]
        def lv(it): return 0 if it[0] == 'W' else (1 if it[1] < 2 else 2 if it[1] < 8 else 3)
        def pre_load():
            if not st.get('f1ok'): return False
            for k, it in enumerate(lq):
                if lv(it) > st.get('lvl', 0): continue
                pl = poolB if (it[0] == 'H0' and poolB) else pool
                if not pl: continue
                lq.pop(k); p2_load(p, it[0], it[1], it[2], pl.pop(0)); return True
            return False
        polld = cfg.get('polld', 20); ackd = cfg.get('ackd', 28)
        u1 = chain([] if 'cl' in order else cq_loads(lambda: True, cfg.get('cq0', 4), cfg.get('cqgap', 4)), f1_pub(SPR), rt_flow(SPR), [('call', lambda: a.wait(vm=K['par']))], items(ssm_consts(C1, TMP)), items(ssm_consts(C2, TMP + 4)) if typ == 'B' else [],
                   items(setup), items(setup1b), [('raw', setup_scc2, 5), ('raw', setup_scc3, 3)], items(setup2),
                   [('until', lambda: sch.keys.get('cqiss') and st['G'] >= cfg.get('qqat', 0)), setup_sh], eg_issue(1 if typ == 'A' else 2), qq_stream(), mask_items(), early_gather(1 if typ == 'A' else 2))
        nq_ = 2 if typ == 'A' else 1
        pool.extend(CB[4 * nq_:])
        def cg_txt(k): return f'buffer_load_dwordx4 {R(CB[k],4)}, v{vL16}, s[{SW}:{SW+3}], s{k>>2} offen offset:{1024*(k&3)} sc1'
        def corr_issue():
            c = lambda: sch.keys.get('qqst')
            d0 = cfg.get('cgd', 40)
            yield ('when', c, 1, [('s', f's_lshl_b32 s0, s{sSL}, 12'), ('s', f's_add_u32 s1, s0, {16*4096}')])
            for k in range(4 * nq_): yield ('when', c, d0 + 2 * k, [('vm', cg_txt(k), f'cg{k}')])
            yield ('when', c, d0 + 8 * nq_ + cfg.get('cqd', 16), [('mark', 'cgland')])
        def corr_apply(j, acc, unit):
            g0 = next(n for n, g in enumerate(groups) if g[0] == unit)
            T3 = SPR + 3
            chk_ = []
            for m in range(4):
                k = 4 * j + m
                chk_ += [f'v_accvgpr_read_b32 v{T3}, {R(CB[k]+1)}', f'v_accvgpr_read_b32 v{vD[3]}, {R(CB[k]+3)}']
                chk_ += [f'v_bitop3_b32 v{vD[1] if m == 0 else T3}, v{T3}, v{vD[3]}, v{vT} bitop3:0x7e'] + ([f'v_or_b32 v{vD[1]}, v{vD[1]}, v{T3}'] if m else [])
            yield ('until', lambda: sch.keys.get('cgland') and st['G'] > g0)
            yield ('wv', f'cg{4*j+3}')
            for ln in chk_: yield ('v', ln)
            def chk(a):
                slow = a.newlabel('slow'); ok = a.newlabel('ok')
                a.e(f'v_cmp_ne_u32 vcc, 0, v{vD[1]}\ns_nop 1\ns_cmp_lg_u64 vcc, 0\ns_cbranch_scc1 {slow}')
                a.label(ok)
                a.cold.append(f'{slow}:\ns_mov_b32 s{sCNT}, 0\n{slow}_l:\ns_sleep {SLEEP[0]}\n' + '\n'.join(cg_txt(4 * j + m) for m in range(4)) + '\ns_waitcnt vmcnt(0)\n' + '\n'.join(chk_) + f'''
v_cmp_ne_u32 vcc, 0, v{vD[1]}
s_add_u32 s{sCNT}, s{sCNT}, 1
s_cmp_gt_u32 s{sCNT}, {SPIN}
s_cbranch_scc1 {ok}
s_cmp_lg_u64 vcc, 0
s_cbranch_scc1 {slow}_l
s_branch {ok}
''')
            yield ('raw', chk, 4)
            yield sitem(f'cg{j}ok')
            for m in range(4):
                yield ('m', f'v_mfma_f32_32x32x16_bf16 {V(acc+16*m,16)}, {R(CB[4*j+m],4)}, {R(AM,4)}, {V(acc+16*m,16)}')
                yield ('delay', 0)
            yield ('mark', f'corr{unit}')
            yield ('call', lambda: pool.extend(CB[4*j:4*j+4] + ([AM] if unit == 2 else [])))
        spare1, spare2 = vD[0], vD[1]
        chk_d = ('call', lambda: (_ for _ in ()).throw(AssertionError('D dma pending')) if any(th.kind == 'X' or (th.kind == 'S' and stages[th.stage][0] == 'D') for th in dmaq) else None)
        BQ = list(range(116, 136, 4))
        def _fs():
            pool.extend(range(28, 88, 4))
        free_ssm = ('call', _fs)
        EAr, EAo, EAw, vXP, vXL = 15, 16, 17, 18, 7
        t_ = 8
        def epaddr():
            yield from items(f'''v_and_b32 v{EAw}, 15, v1
v_mul_u32_u24 v{EAw}, 320, v{EAw}
v_lshrrev_b32 v{t_+5}, 4, v1
v_bfe_u32 v{t_+4}, v1, 1, 2
v_xor_b32 v{t_+5}, v{t_+5}, v{t_+4}
v_lshl_add_u32 v{EAw}, v{t_+5}, 4, v{EAw}
s_mul_i32 s{sT0}, s3, 20480
v_add_u32 v{EAw}, s{sT0}, v{EAw}
v_lshrrev_b32 v{t_}, 2, v1
v_and_b32 v{t_+1}, 3, v1
v_lshlrev_b32 v{t_+2}, 3, v{t_+1}
v_mul_u32_u24 v{t_+3}, 1280, v{t_}
v_add_u32 v{t_+3}, v{t_+3}, v{t_+2}
v_lshlrev_b32 v{t_+4}, 3, v{t_}
v_lshlrev_b32 v{EAo}, 1, v{t_+3}
v_bfe_u32 v{t_+5}, v1, 3, 2
v_xor_b32 v{t_+5}, v{t_+5}, v{t_+1}
v_mul_u32_u24 v{EAr}, 320, v{t_}
v_lshl_add_u32 v{EAr}, v{t_+5}, 4, v{EAr}
s_mul_i32 s{sT1}, s3, 5120
v_add_u32 v{EAr}, s{sT1}, v{EAr}
s_lshl_b32 s{sT0}, s2, 7
s_lshl_b32 s{sT1}, s3, 2
s_add_u32 s{sT0}, s{sT0}, s{sT1}
s_add_u32 s{sT0}, s{sT0}, {FX_OFF}
v_mov_b32 v{vXP}, {OOB}
v_writelane_b32 v{vXP}, s{sT0}, 0
s_xor_b32 s{sT0}, s{sT0}, 128
v_mov_b32 v{vXL}, s{sT0}''')
            for d, pp, n in ((SXX, P_X, 2621440), (SDK, P_DSK, 1280), (SO, P_OUT, 5242880)):
                yield from items(f's_mov_b32 s{d}, s{pp}\ns_mov_b32 s{d+1}, s{pp+1}\ns_mov_b32 s{d+2}, {n}\ns_mov_b32 s{d+3}, 0x00020000')
            yield ('vm', f'buffer_load_dword v21, v{t_+4}, s[{SW}:{SW+3}], s{sSTO} offen sc1', 'bs')
            yield ('call', lambda: st.__setitem__('ep', True))
        def base_loads(XQ):
            for i in range(5):
                yield ('vm', f'buffer_load_dwordx2 {P(XQ[i])}, v{t_+3}, s[{SXX}:{SXX+3}], s{sXO2} offen offset:{32*i}', f'bx{i}')
                yield ('delay', 2)
                yield ('vm', f'buffer_load_dwordx2 {P(XQ[i]+2)}, v{t_+2}, s[{SDK}:{SDK+3}], s{sDKO} offen offset:{32*i}', f'bd{i}')
                yield ('delay', 2)
        def base_calc(XQ):
            yield ('wv', 'bd0')
            yield from items(f'''v_and_b32 v22, 0xffff0000, v21
v_rcp_f32 v22, v22
v_lshlrev_b32 v21, 16, v21
v_mul_f32 v21, v21, v22''')
            for i in range(5):
                b = BQ[i]; x = XQ[i]
                yield ('wv', f'bd{i}')
                for k in range(4):
                    un = (lambda d, s_: f'v_and_b32 v{d}, 0xffff0000, v{s_}') if k & 1 else (lambda d, s_: f'v_lshlrev_b32 v{d}, 16, v{s_}')
                    yield ('v', un(b + k, x + (k >> 1)))
                    yield ('v', un(t_, x + 2 + (k >> 1)))
                    yield ('v', f'v_fma_f32 v{t_+1}, v{b+k}, v22, v21')
                    yield ('v', f'v_fmac_f32 v{b+k}, v{t_+1}, v{t_}')
            yield sitem('bend')
            yield ('call', lambda: st.__setitem__('base', True))
        def lchk2(level, d):
            yield ('vm', poll_load(FL, vFL2, 128 * level), f'l{level}')
            yield ('after', d, [sitem(f'l{level}a'), ('wv', f'l{level}'), sitem(f'l{level}w'), ('raw', poll_check(FL, vFL2, 128 * level, sNEEDA if level == 1 else None), 4), sitem(f'l{level}ok'),
                   ('call', lambda: st.__setitem__('lvl', level))])
        sl_ = lambda k: ('call', lambda: st.__setitem__('slots', cfg.get(k, cfg['slots'])))
        f1w = ('when', lambda: sch.keys.get('f1pub'), cfg.get('f1vis', 50), list(f1_chk(SPR)))
        if typ == 'A':
            G = [64, 68, 72, 76, 44, 48, 52, 56]
            u2 = chain([('until', lambda: st.get('xiss')), setup_sa(SA1, sD1), f1w], corr_issue(), [sl_('slotsC')], f_scale(ACC_D, vRS, 'a1'), f_agg(ACC_D, C1, 0, SA1, 'a1'), [sl_('slots'), chk_d], f_coef(ACC_D, C1, spare1), corr_apply(0, ACC_A, 1),
                       [('delay', cfg.get('gdelay0', 2))], f_gather_issue(G, SA1, 'a1'), [('delay', cfg.get('gdelay', 16))],
                       [sl_('slotsK')], f_carry(G, ACC_D, C1, spare1, SA1, sD1, 'a1'), [('mark', 'ssm'), free_ssm, sl_('slotsE')], f_publish(1, ackd),
                       [('when', lambda: sch.keys.get('pub1'), cfg.get('visd', 40), list(lchk2(1, polld)))])
            u3 = chain([('delay', 3)], f_epiq(ACC_A, 40), f_publish(2, ackd), corr_apply(1, ACC_B, 2))
            tailg = chain(f_epiq(ACC_B, 72))
        else:
            G = [ACC_A + 32 + 4 * j for j in range(8)]; G2 = [ACC_D + 4 * j for j in range(8)]
            cd2 = [('until', lambda: st['G'] >= 21)] + [('m', f'v_mfma_f32_32x32x16_bf16 {V(ACC_A+16*k,16)}, {R(AM,4)}, {V(GA+12+4*k,4)}, {V(ACC_A+16*k,16)}') for k in range(2)]
            u2 = chain([('until', lambda: st.get('xiss')), setup_sa(SA1, sD1), f1w], corr_issue(), cd2, f_scale(ACC_D, vRS, 'a1'), f_agg(ACC_D, C1, 0, SA1, 'a1'), [chk_d], f_coef(ACC_D, C1, spare1),
                       [('until', lambda: st.get('riss')), setup_sa(SA2, sD2)])
            ag2 = chain(f_scale(ACC_A, vRS, 'a2'), f_agg(ACC_A, C2, 2048, SA2, 'a2')); cf2 = f_coef(ACC_A, C2, spare2)
            u3 = chain([('delay', 3)], f_gather_issue(G, SA1, 'a1', ag2), ag2,
                       f_carry(G, ACC_D, C1, spare1, SA1, sD1, 'a1'), corr_apply(0, ACC_B, 2), f_gather_issue(G2, SA2, 'a2', cf2), cf2, [('delay', 12)],
                       f_carry(G2, ACC_A, C2, spare2, SA2, sD2, 'a2'), [('mark', 'ssm'), free_ssm], f_publish(2, cfg.get('ackb', 24)))
            tailg = chain(lchk2(1, 20), f_epiq(ACC_B, 40), [('flush',)], f_publish(3, 1000), [('call', lambda: [pre_load() for _ in range(cfg.get('bpre', 16))]), ('flush',)])
        def on_unit(ui):
            if ui == 1: assert sch.keys.get('cw') is not None, 'qq late'
            if ui == 2:
                assert sch.keys.get('rtst') and sch.keys.get('qqst')
        barrier_for(0, stages, sch)
        a.wait(vm=xlast[0])
        for G0 in (0, 1):
            rd, win = reads(G0, groups)
            for lst in rd:
                for tx in lst: st['rid'][G0] = a.lds(tx)
        emit_groups(stages, groups, sch, {0: u1, 1: u2, 2: u3}, pre_load, pool, on_unit)
        assert not dmaq
        stamp(a, 'T'); dbg(4)
        pool += [XF + 156] + [WB + 4 * k for k in range(12)]
        sch.drain(every=(cfg.get('yevery', 24), pre_load))
        assert sch.keys.get('corr2')
        stamp(a, 'T2')
        a.e('s_nop 7\ns_nop 3')
        pid = {}
        tl_ = list(tailg)
        kp = (len(tl_) * cfg.get('p2pos', 7)) // 8 if typ == 'A' else len(tl_)
        def p2i():
            while sch.timers: sch.tick(True)
            pid[2] = a.vm(poll_load(FL, vFL2, 256))
        sch.add(chain(tl_[:kp], [('call', p2i)], tl_[kp:])); sch.drain(every=(cfg.get('yevery', 24), pre_load))
        while sch.timers: sch.tick(True)
        assert st.get('lvl') == 1
        pool.extend([88, 92])
        stamp(a, 'Y')
        ACC = (96, 176)
        FL3 = FL
        nb_ = lambda ps, i: (ps, [(i, rt) for rt in range(4)])
        rb_ = lambda ps, ii: [(ps, [(i, rt) for i in ii]) for rt in range(4)]
        blocks = [nb_(0, 0), nb_(0, 1), nb_(1, 0), nb_(1, 1)] + [nb_(0, i) for i in range(2, 5)] + rb_(0, (5, 6, 7)) + [nb_(1, i) for i in range(2, 13)] + rb_(1, (13, 14, 15))
        pd = cfg.get('pd', 10)
        l_a = [x for x in lq if lv(x) <= 1 and x[1] < 8]; l_b = [x for x in lq if lv(x) == 2]
        rest = sum([H(1, i) for i in range(2, 8)], [])
        wl = [x for x in sum([Wf(i) for i in range(8, 16)], []) if x not in p.id]
        n2 = cfg.get('w2', 8)
        mid = rest[:8]; rest = rest[8:]
        w0 = wl[:n2]; wl = wl[n2:]
        nlate = cfg.get('wlate', 10)
        wz = wl[len(wl) - nlate:]; wl = wl[:len(wl) - nlate]
        while rest or wl:
            mid += rest[:4] + wl[:3]; rest = rest[4:]; wl = wl[3:]
        hl = sum([H(1, i) for i in range(8, 13)], [])
        lq = l_a + w0 + [('Pc', 2)] + l_b + mid[:len(mid) - pd] + [('Pi', 3)] + mid[len(mid) - pd:] + [('Pc', 3)] \
            + hl[:12] + wz[:5] + hl[12:16] + wz[5:] + hl[16:] + HR(1, (13, 14, 15))
        s2 = sch
        if typ == 'A': s2.add(f_publish(3, cfg.get('pubat', 60)))
        s2.add(epaddr())
        BX = {'b': BQ, 'p': list(range(ACC[0], ACC[0] + 20, 4))}
        def next_load():
            if not lq: return False
            it = lq[0]
            if it[0] in ('H0', 'H1', 'W'):
                pl = poolB if (it[0] == 'H0' and poolB) else pool
                if not pl: return False
                if a.vm_n - a.vm_done >= cfg.get('maxout', 40): return False
                lq.pop(0); p2_load(p, it[0], it[1], it[2], pl.pop(0)); return True
            if it[0] == 'Pi':
                lq.pop(0); pid[it[1]] = a.vm(poll_load(FL3, vFL2, 128 * it[1])); return True
            if it[0] == 'Pc':
                lq.pop(0)
                assert sch.keys.get('pub2') and (it[1] == 2 or sch.keys.get('pub3'))
                a.wait(vm=pid[it[1]]); stamp(a, f'l{it[1]}w')
                poll_check(FL3, vFL2, 128 * it[1], None)(a)
                if it[1] == 2: a.e('s_barrier')
                stamp(a, f'l{it[1]}ok'); st['lvl'] = it[1]
                for _ in range(cfg.get('burst', 4)):
                    if lq and lq[0][0] not in ('Pc', 'B'): next_load()
                return True
        def red_writes(ps, rt):
            yield ('delay', 4)
            for ct in range(5):
                yield ('lds', f'ds_write_b128 v{EAw}, {V(ACC[ps]+4*(rt*5+ct),4)} offset:{rt*5120+ct*64}', f'rw{ps}')
        def red0_rest():
            A0 = ACC[0]
            yield ('delay', 3)
            yield ('wl', 'rw0')
            yield ('forcebar',)
            for i in range(5):
                for q in range(4):
                    yield ('lds', f'ds_read_b128 {V(A0+16*i+4*q,4)}, v{EAr} offset:{q*20480+64*i}', f'rr{i}')
            yield ('delay', 2)
            for i in range(5):
                b = A0 + 16 * i
                yield ('wl', f'rr{i}')
                for k in range(4): yield ('v', f'v_add_f32 v{b+k}, v{b+k}, v{b+4+k}')
                for k in range(4): yield ('v', f'v_add_f32 v{b+8+k}, v{b+8+k}, v{b+12+k}')
                for k in range(4): yield ('v', f'v_add_f32 v{b+k}, v{b+k}, v{b+8+k}')
                if i == 4: yield ('s', f's_add_u32 s{sXS}, s{sXS}, 4096')
                yield ('vm', f'buffer_store_dwordx4 {V(b,4)}, v{vL16}, s[{SW}:{SW+3}], s{sXS} offen offset:{1024*(i%4)} sc1', 'xst')
            yield ('forcebar',)
            yield sitem('xst')
            yield ('call', lambda: (st.__setitem__('red0', True), pool.extend(range(A0 + 40, A0 + 80, 4))))
            yield ('after', cfg.get('xdelay', 70), [('wv', 'xst'), ('vm', f'buffer_store_dword v{vT}, v{vXP}, s[{SF}:{SF+3}], 0 offen sc1', None), sitem('xpub'), ('mark', 'xpub')])
            yield from base_loads(BX['p'])
            yield ('delay', cfg.get('bdelay', 20))
            yield from base_calc(BX['p'])
        def xch_load():
            yield ('flush',)
            yield ('req', 'xpub')
            yield ('wv', 'xp')
            yield sitem('xw')
            yield ('raw', poll_check(FL3, vXL, 0, None), 4)
            yield sitem('xok')
            for i in range(5):
                if i == 4: yield ('s', f's_add_u32 s{sXL}, s{sXL}, 4096')
                yield ('vm', f'buffer_load_dwordx4 {V(BX["p"][i],4)}, v{vL16}, s[{SW}:{SW+3}], s{sXL} offen offset:{1024*(i%4)} sc1', f'xl{i}')
        for _ in range(cfg.get('ypre', 2)): next_load()
        cnt = 0; ratio = cfg.get('ratio', 4)
        wuse = {i: 0 for i in range(16)}
        for bn, (ps, blk) in enumerate(blocks):
            need = [(f'H{ps}', i, rt) for i, rt in blk] + [('W', i, j) for i, rt in blk for j in range(5)]
            guard = 0
            while any(k not in p.id for k in need):
                if not next_load():
                    a.wait(vm=a.vm_done + 4)
                guard += 1; assert guard < 2000, (bn, lq[:3], len(pool))
            if bn in (0, 4, 11, 17, 22): stamp(a, f'b{bn}')
            if bn == 22: assert st.get('red0')
            if bn == cfg.get('xpat', 21):
                assert st['lvl'] == 3
                sch.keys['xp'] = a.vm(poll_load(FL3, vXL, 0))
            for i, rt in blk:
                a.wait(vm=max(p.id[k] for k in [(f'H{ps}', i, rt)] + [('W', i, j) for j in range(5)]))
                for ct in range(5):
                    d = ACC[ps] + 4 * (rt * 5 + ct)
                    c = '0' if i == 0 else V(d, 4)
                    a.e(f'v_mfma_f32_16x16x32_bf16 {V(d,4)}, {R(p.buf["W",i,ct],4)}, {R(p.buf[f"H{ps}",i,rt],4)}, {c}')
                    cnt += 1
                    did = next_load() if cnt % ratio == 0 else False
                    s2.fill(0 if did else cfg.get('b2', 2))
                r = p.buf[f'H{ps}', i, rt]
                pool.append(r)
                wuse[i] += 1
                if wuse[i] == (8 if i < 8 else 4):
                    for ct in range(5): pool.append(p.buf['W', i, ct])
            if len(blk) == 3:
                assert st.get('ep')
                s2.add(red_writes(ps, blk[0][1]))
                if bn == 10: s2.add(red0_rest())
            if bn == cfg.get('xlat', 23): s2.add(xch_load())
        assert not lq
        stamp(a, 'mfend'); dbg(5)
        a.e('s_nop 7')
        s2.tick(True); s2.drain()
        assert st.get('base') and not s2.timers and not s2.barq
        a.wait_all(vm=False)
        a.e('s_barrier')
        A1 = ACC[1]
        rd = {}
        for i in range(5):
            for q in range(4):
                rd[i, q] = a.lds(f'ds_read_b128 {V(A1+16*i+4*q,4)}, v{EAr} offset:{q*20480+64*i}')
        for i in range(5):
            a.wait(vm=sch.keys[f'xl{i}'])
            B = BX['b'][i]; X = BX['p'][i]
            for k in (0, 2): a.e(f'v_pk_add_f32 {P(B+k)}, {P(B+k)}, {P(X+k)}')
        for i in range(5):
            a.wait(lg=rd[i, 3])
            b = A1 + 16 * i; B = BX['b'][i]
            for k in (0, 2):
                a.e(f'v_pk_add_f32 {P(b+k)}, {P(b+k)}, {P(b+4+k)}\nv_pk_add_f32 {P(b+8+k)}, {P(b+8+k)}, {P(b+12+k)}')
            for k in (0, 2): a.e(f'v_pk_add_f32 {P(B+k)}, {P(B+k)}, {P(b+k)}')
            for k in (0, 2): a.e(f'v_pk_add_f32 {P(B+k)}, {P(B+k)}, {P(b+8+k)}')
            a.vm(f'buffer_store_dwordx4 {V(B,4)}, v{EAo}, s[{SO}:{SO+3}], s{sOO} offen offset:{64*i} {cfg.get("ost", "").replace("_", " ")}')
        stamp(a, 'st')
        stamp_out(a)
        if ENC[0]:
            a.e('s_waitcnt vmcnt(0)'); stamp(a, 'fin')
            lp = a.newlabel('pad')
            a.e(f's_nop 1\nv_readlane_b32 s4, v0, 0\nv_readlane_b32 s5, v0, 1\ns_nop 3\ns_sub_u32 s5, s5, s4\ns_lshl_b32 s5, s5, 2\ns_add_u32 s5, s5, 3000')
            if typ == 'B': a.e('s_mov_b32 s5, 0')
            a.label(lp)
            a.e(f's_sleep 2\ns_memrealtime s[6:7]\ns_waitcnt lgkmcnt(0)\ns_sub_u32 s6, s6, s4\ns_cmp_lt_u32 s6, s5\ns_cbranch_scc1 {lp}')
        if cfg.get('dbg'):
            a.e('s_waitcnt vmcnt(0)'); dbg(6)
            if cfg.get('pad'):
                lp = a.newlabel('pad')
                if 'padwg' in cfg: a.e(f's_cmp_lg_u32 s2, {cfg["padwg"]}\ns_cbranch_scc1 L_end')
                a.label(lp)
                a.e(f's_sleep 2\ns_memrealtime s[0:1]\ns_waitcnt lgkmcnt(0)\ns_sub_u32 s0, s0, s100\ns_cmp_lt_u32 s0, {cfg["pad"]}\ns_cbranch_scc1 {lp}')
            a.e(f'''s_or_b32 s0, s3, s2
s_cmp_eq_u32 s0, 0
s_cselect_b32 s1, 0, {OOB}
s_cmp_eq_u32 s0, 200
s_cselect_b32 s1, 32, s1
v_lshlrev_b32 v4, 2, v1
v_mov_b32 v6, s101
v_readlane_b32 s0, v0, 63
v_add_u32 v4, s1, v4
s_nop 1
v_mov_b32 v7, s0
v_cmp_gt_u32 vcc, 64, v4
v_add_co_u32 v6, s[4:5], v6, v4
s_nop 1
v_addc_co_u32 v7, s[4:5], 0, v7, s[4:5]
s_and_b64 exec, vcc, 0xff
s_cbranch_execz L_end
global_store_dword v[6:7], v0, off''')
        a.e('s_endpgm')
    for s in a.cold: a.e(s)
    a.label('L_end')
    a.e('s_endpgm')
    return a

HEADER = open('parallel_sum__ssm_conv_s5__glu_gated_glu__prompt.s.ref').read().split('; Override launch')[0]
def assemble(a):
    out = HEADER + '; @launch grid=(256,1,1) block=(256,1,1) lds=163840\n'
    out += '.amdgcn_target "amdgcn-amd-amdhsa--gfx950"\n.text\n'
    errs = check_hazards(a.lines)
    for e in errs: print('HAZARD', e)
    assert not errs
    out += a.text()
    out += f'''.section .rodata,"a"
.p2align 6
.amdhsa_kernel {KNAME}
  .amdhsa_next_free_vgpr 512
  .amdhsa_next_free_sgpr 102
  .amdhsa_accum_offset 256
  .amdhsa_group_segment_fixed_size 0
  .amdhsa_kernarg_size 128
  .amdhsa_user_sgpr_count 2
  .amdhsa_user_sgpr_kernarg_segment_ptr 1
  .amdhsa_system_sgpr_workgroup_id_x 1
.end_amdhsa_kernel
'''
    return out
if __name__ == '__main__':
    cfg = dict(k1map='R', slots=6, u1all=1)
    for kv in sys.argv[2:]:
        k, v = kv.split('=')
        if k == 'stamp': STAMP[0] = True
        elif k == 'sleep': SLEEP[0] = int(v)
        elif k == 'enc': ENC[0] = v
        elif k == 'only': STAMP[0] = True; ONLY[0] = v.split('.'); cfg['only'] = v
        else: cfg[k] = int(v) if v.isdigit() else v
    txt = assemble(kernel(cfg))
    if cfg.get('vlog'): print(' '.join(f'{n}:{v}/{m}/{l}' for n, v, m, l in VLOG))
    if STAMP[0]: txt = '; STAMPS ' + ','.join(SNAMES) + '\n; CFG ' + str(cfg) + '\n' + txt
    open(sys.argv[1], 'w').write(txt)
```

```python
import sys, copy
from asmlib import *

KNAME = 'parallel_sum__ssm_conv_s5__glu_gated_glu__prompt_kernel'
CS_OFF = 0
HF_OFF = 4 << 20
W2F_OFF = 20 << 20
AGG_OFF = 24 << 20
NONCE_OFF = 25 << 20
FLG_OFF = (25 << 20) + 131072
DIAG_OFF = 26 << 20
WS_BYTES = 32 << 20
NKS = 94
GOLD = 0x9e3779b9
P_X, P_LRE, P_LIM, P_BRE, P_BIM, P_CRE, P_CIM, P_LDT, P_DSK, P_BX, P_WG, P_WU, P_WD, P_OUT, P_DBG, P_WS = [16 + 2 * i for i in range(16)]
NS = 9
SCR = NS * 16384
LOG2E = 0x3fb8aa3b
NLOG2E = 0xbfb8aa3b
OOB = 0x40000000
STAT_OFF = (25 << 20) + 4096
XCH_OFF = 27 << 20
F1_OFF, FX_OFF = 131072, 163840
SW, SG, SU, SB, SA1, SA2, SH, SF = 48, 52, 56, 60, 64, 68, 72, 76
SP, SR = SA1, SA2
SO, SXX, SDK = SG, SA1, SB
sRB, sSL, sD1, sD2 = 4, 5, 6, 7
sRBP, sNB = 8, 9
sDOFF1, sDOFF2, sQOFF1, sQOFF2 = 10, 11, 12, 13
sHB = 14
sT0, sT1 = 80, 81
sM0B, sXO = 82, 83
sMASK = 84
sCNT, sOOBK = 98, 99
sH2 = (18, 19); sW2, sOO = 20, 21
sXS, sXL = 22, 23
sSTO, sDKO, sXO2 = 24, 25, 26
sHL, sWL = 27, 30
sZM = 31
AGS = 8704
sNEEDA = 28
sTP = 34
sP0, sP1 = 44, 45
vD = [3, 4, 5, 6]; vQ = [7, 8]
vRQ = [[9, 10, 11], [12, 13, 14]]
vRD = [15, 16, 17, 18]
vHG, vL16, vAGW, vAGR, vPUB, vTW, vTR, vT = 19, 20, 21, 22, 23, 24, 25, 26
vFP = 27
C1, C2 = 28, 44
TMP = 60
GOF = TMP + 20; EXP = TMP + 35
vC1, vS = 88, 89
AM = 256 + 252
RSL, CSL = SCR + 14336, SCR + 15360
ACC_D, ACC_A, ACC_B = 96, 128, 192
XF = 256; WB = 256 + 160
cLr, cLi, cnLi, cP, cQn, cnP, c16r, c16i, c128r, c128i, c256r, c256i, cqr, cqi, cPr, cPi = range(16)

STAMP = [False]
SNAMES = []
ONLY = [None]
ENC = [None]
VLOG = []
def stamp(a, nm, real=False):
    VLOG.append((nm, a.vm_n, sum('v_mfma' in l for l in a.lines), len(a.lines)))
    if ENC[0] == nm:
        a.e('s_memrealtime s[100:101]'); a.wait_all(vm=False); a.e('v_writelane_b32 v0, s100, 1')
    if not STAMP[0]: return
    if ONLY[0] is not None:
        if nm not in ONLY[0] and nm not in ('rt0', 'rt1', 't0', 'end'): return
        if nm not in ('t0', 'end'): real = True
    if nm not in SNAMES: SNAMES.append(nm)
    i = SNAMES.index(nm); assert i < 64
    a.e(f'{"s_memrealtime" if real else "s_memtime"} s[100:101]')
    a.wait_all(vm=False)
    a.e(f'v_writelane_b32 v0, s100, {i}')
def stamp_out(a):
    if not STAMP[0]: return
    a.e('s_waitcnt vmcnt(0)')
    stamp(a, 'end'); stamp(a, 'rt1', True)
    a.e(f'''s_lshl_b32 s100, s2, 2
s_add_u32 s100, s100, s3
s_lshl_b32 s100, s100, 8
s_add_u32 s100, s100, {DIAG_OFF}
v_lshlrev_b32 v4, 2, v1
buffer_store_dword v0, v4, s[{SW}:{SW+3}], s100 offen''')
def sitem(nm): return ('raw', lambda a: stamp(a, nm), 0)

def items(text, kind=None):
    for ln in text.strip().split('\n'):
        ln = ln.strip()
        if not ln: continue
        op = ln.split()[0]
        if op in TRANS: yield ('t', ln)
        elif op.startswith('s_'): yield ('s', ln)
        else: yield ('v', ln)
def chain(*gens):
    for g in gens: yield from g

def bfround_t(d, s): return f'v_cvt_pk_bf16_f32 v{d}, v{s}, v{s}\nv_lshlrev_b32 v{d}, 16, v{d}\n'
def cmul_sq(dr, di, sr, si, t):
    return f'v_mul_f32 v{t}, v{si}, v{si}\nv_mul_f32 v{di}, v{sr}, v{si}\nv_fma_f32 v{dr}, v{sr}, v{sr}, -v{t}\nv_add_f32 v{di}, v{di}, v{di}\n'
def ssm_consts(C, l0):
    t = TMP + 8
    s = f'''v_lshlrev_b32 v{l0+2}, 16, v{l0+2}
v_mul_f32 v{l0+2}, {LOG2E}, v{l0+2}
v_exp_f32 v{l0+2}, v{l0+2}
v_lshlrev_b32 v{l0}, 16, v{l0}
v_lshlrev_b32 v{l0+1}, 16, v{l0+1}
''' + bfround_t(l0 + 2, l0 + 2) + f'''v_mul_f32 v{t}, v{l0+2}, v{l0}
v_mul_f32 v{t+1}, v{l0+2}, v{l0+1}
v_mul_f32 v{t}, {LOG2E}, v{t}
v_mul_f32 v{t+1}, 0.15915494, v{t+1}
v_exp_f32 v{t}, v{t}
v_fract_f32 v{t+1}, v{t+1}
v_cos_f32 v{t+2}, v{t+1}
v_sin_f32 v{t+3}, v{t+1}
v_mul_f32 v{t+4}, v{l0}, v{l0}
v_fmac_f32 v{t+4}, v{l0+1}, v{l0+1}
v_mul_f32 v{C+cLr}, v{t}, v{t+2}
v_mul_f32 v{C+cLi}, v{t}, v{t+3}
v_rcp_f32 v{t+4}, v{t+4}
v_sub_f32 v{C+cnLi}, 0, v{C+cLi}
v_add_f32 v{t+5}, -1.0, v{C+cLr}
v_add_f32 v{t+4}, v{t+4}, v{t+4}
v_mul_f32 v{t+6}, v{t+5}, v{l0}
v_fmac_f32 v{t+6}, v{C+cLi}, v{l0+1}
v_mul_f32 v{t+7}, v{t+5}, v{l0+1}
v_fmac_f32 v{t+7}, v{C+cnLi}, v{l0}
v_mul_f32 v{C+cP}, v{t+6}, v{t+4}
v_mul_f32 v{C+cQn}, v{t+7}, v{t+4}
v_sub_f32 v{C+cnP}, 0, v{C+cP}
'''
    s += cmul_sq(t, t + 1, C + cLr, C + cLi, t + 8) + cmul_sq(t + 2, t + 3, t, t + 1, t + 8) + cmul_sq(t, t + 1, t + 2, t + 3, t + 8)
    s += cmul_sq(C + c16r, C + c16i, t, t + 1, t + 8) + cmul_sq(t, t + 1, C + c16r, C + c16i, t + 8) + cmul_sq(t + 2, t + 3, t, t + 1, t + 8)
    s += cmul_sq(C + c128r, C + c128i, t + 2, t + 3, t + 8) + cmul_sq(C + c256r, C + c256i, C + c128r, C + c128i, t + 8)
    s += f'''s_mov_b32 s{sT0}, 0
s_mov_b32 s{sT1}, -1
v_cndmask_b32 v{C+cqr}, 1.0, v{C+c16r}, s[{sT0}:{sT1}]
v_cndmask_b32 v{C+cqi}, 0, v{C+c16i}, s[{sT0}:{sT1}]
'''
    for bit, (pr, pi) in ((0, (t, t + 1)), (1, (t + 2, t + 3))):
        s += f'''s_bfe_i32 s{sT0}, s3, {0x10000 | bit}
s_mov_b32 s{sT1}, s{sT0}
v_cndmask_b32 v{t+4}, 1.0, v{pr}, s[{sT0}:{sT1}]
v_cndmask_b32 v{t+5}, 0, v{pi}, s[{sT0}:{sT1}]
v_mul_f32 v{t+6}, v{C+cqr}, v{t+4}
v_mul_f32 v{t+7}, v{C+cqr}, v{t+5}
v_fma_f32 v{C+cqr}, -v{C+cqi}, v{t+5}, v{t+6}
v_fma_f32 v{C+cqi}, v{C+cqi}, v{t+4}, v{t+7}
'''
    s += f'v_mov_b32 v{C+cPr}, 0\nv_mov_b32 v{C+cPi}, 0\n'
    return s

def cfma(dr, di, lr, li, sr, si):
    yield ('v', f'v_fmac_f32 v{dr}, v{lr}, v{sr}')
    yield ('v', f'v_fmac_f32 v{di}, v{lr}, v{si}')
    yield ('v', f'v_fma_f32 v{dr}, -v{li}, v{si}, v{dr}')
    yield ('v', f'v_fmac_f32 v{di}, v{li}, v{sr}')

def f_scale(acc, vRS, tag):
    for k in range(4):
        yield ('lds', f'ds_read_b128 {V(TMP+4+4*k,4)}, v{vRS} offset:{16*k}', tag + 'rs')
    yield ('delay', 3)
    yield ('wl', tag + 'rs')
    for r in range(16):
        yield ('v', f'v_mul_f32 v{acc+r}, v{TMP+4+r}, v{acc+r}')
        yield ('v', f'v_mul_f32 v{acc+16+r}, v{TMP+4+r}, v{acc+16+r}')
def f_agg(acc, C, area, SA, tag):
    sr, si = acc, acc + 16
    for r in range(1, 16):
        t = TMP + 2 * (r & 1)
        yield ('v', f'v_fma_f32 v{t}, v{C+cLr}, v{sr}, v{acc+r}')
        yield ('v', f'v_fma_f32 v{t+1}, v{C+cLr}, v{si}, v{acc+16+r}')
        yield ('v', f'v_fmac_f32 v{t}, v{C+cnLi}, v{si}')
        yield ('v', f'v_fmac_f32 v{t+1}, v{C+cLi}, v{sr}')
        sr, si = t, t + 1
    yield ('lds', f'ds_write_b64 v{vAGW}, v[{sr}:{si}] offset:{area}', tag + 'w')
    yield ('delay', 2)
    yield ('wl', tag + 'w')
    yield ('forcebar',)
    g = TMP + 4
    for j in range(8):
        yield ('lds', f'ds_read_b64 v[{g+2*j}:{g+2*j+1}], v{vAGR} offset:{area+256*j}', tag + f'r{j}')
    yield ('delay', 3)
    yield ('wl', tag + 'r7')
    for j in range(1, 8):
        pr, pi = g + 2 * (j - 1), g + 2 * (j - 1) + 1
        yield from cfma(g + 2 * j, g + 2 * j + 1, C + c16r, C + c16i, pr, pi)
    yield ('v', f'v_and_b32 v{TMP}, s{sZM}, v{g+14}')
    yield ('v', f'v_mov_b32 v{TMP+1}, v{vT}')
    yield ('v', f'v_and_b32 v{TMP+2}, s{sZM}, v{g+15}')
    yield ('v', f'v_mov_b32 v{TMP+3}, v{vT}')
    yield ('vm', f'buffer_store_dwordx4 v[{TMP}:{TMP+3}], v{vPUB}, s[{SA}:{SA+3}], 0 offen sc1', tag + 'pub')
    yield sitem(tag + 'pub')
    for j in range(1, 8):
        pr, pi = g + 2 * (j - 1), g + 2 * (j - 1) + 1
        m = sMASK + 2 * (j - 1)
        yield ('v', f'v_cndmask_b32 v{C+cPr}, v{C+cPr}, v{pr}, s[{m}:{m+1}]')
        yield ('v', f'v_cndmask_b32 v{C+cPi}, v{C+cPi}, v{pi}, s[{m}:{m+1}]')

def ren(acc, spare): return [spare] + [acc + r for r in range(15)]
def f_coef(acc, C, spare):
    an = ren(acc, spare)
    for r in range(16):
        ar, br = acc + r, acc + 16 + r
        yield ('v', f'v_mul_f32 v{an[r]}, v{C+cP}, v{ar}')
        yield ('v', f'v_fmac_f32 v{an[r]}, v{C+cQn}, v{br}')
        yield ('v', f'v_mul_f32 v{br}, v{C+cnP}, v{br}')
        yield ('v', f'v_fmac_f32 v{br}, v{C+cQn}, v{ar}')
def f_gather_issue(G, SA, tag, fill=None):
    for j in range(8):
        yield ('vm', f'buffer_load_dwordx4 {V(G[j],4)}, v{GOF+j}, s[{SA}:{SA+3}], 0 offen sc1', tag + f'g{j}')
        if fill is not None:
            for _ in range(6):
                x = next(fill, None)
                if x is not None: yield x
        else: yield ('delay', 1)
SPIN = 20000
SLEEP = [4]
def tagchk(G):
    L = [f'v_bitop3_b32 v{G[j]+1}, v{G[j]+1}, v{G[j]+3}, v{vT} bitop3:0x7e' for j in range(8)]
    L += [f'v_or3_b32 v{G[0]+1}, v{G[0]+1}, v{G[1]+1}, v{G[2]+1}', f'v_or3_b32 v{G[3]+1}, v{G[3]+1}, v{G[4]+1}, v{G[5]+1}',
          f'v_or3_b32 v{G[0]+1}, v{G[0]+1}, v{G[6]+1}, v{G[7]+1}', f'v_or_b32 v{G[0]+1}, v{G[0]+1}, v{G[3]+1}']
    return L
def f_carry(G, acc, C, spare, SA, sD, tag, kb=0):
    yield ('wv', tag + 'g7')
    for ln in tagchk(G): yield ('v', ln)
    t0 = G[0] + 1
    def chk(a):
        slow = a.newlabel('slow'); ok = a.newlabel('ok')
        a.e(f'v_cmp_ne_u32 vcc, 0, v{t0}\ns_nop 1\ns_cmp_lg_u64 vcc, 0\ns_cbranch_scc1 {slow}')
        a.label(ok)
        s = f'{slow}:\ns_mov_b32 s{sCNT}, 0\n{slow}_l:\ns_sleep {SLEEP[0]}\n'
        for j in range(8):
            s += f'buffer_load_dwordx4 {V(G[j],4)}, v{GOF+j}, s[{SA}:{SA+3}], 0 offen sc1\n'
        s += 's_waitcnt vmcnt(0)\n' + '\n'.join(tagchk(G)) + '\n'
        s += f'''v_cmp_ne_u32 vcc, 0, v{t0}
s_add_u32 s{sCNT}, s{sCNT}, 1
s_cmp_gt_u32 s{sCNT}, {SPIN}
s_cbranch_scc1 {ok}
s_cmp_lg_u64 vcc, 0
s_cbranch_scc1 {slow}_l
s_branch {ok}
'''
        a.cold.append(s)
    yield sitem(tag + 'w')
    yield ('raw', chk, 4)
    yield sitem(tag + 'ok')
    for j in range(6, -1, -1):
        yield from cfma(G[j], G[j] + 2, C + c256r, C + c256i, G[j + 1], G[j + 1] + 2)
    g0, g1 = G[0], G[1]
    yield ('v', f'v_mov_b32 v{g1}, v{g0}')
    yield ('v', f'v_mov_b32 v{g1+2}, v{g0+2}')
    yield ('s', f's_lshl_b32 s{sT0}, s{sD}, 13')
    yield ('s', f's_add_u32 s{sT0}, s{sT0}, s{sHB}')
    yield ('v', f'v_permlane32_swap_b32 v{g0}, v{g1}')
    yield ('v', f'v_permlane32_swap_b32 v{g0+2}, v{g1+2}')
    yield ('s', 's_nop 0')
    yield ('s', f's_add_u32 s{sT1}, s{sT0}, 4096')
    yield from cfma(g0, g0 + 2, C + c128r, C + c128i, g1, g1 + 2)
    yield from cfma(C + cPr, C + cPi, C + cqr, C + cqi, g0, g0 + 2)
    yield ('v', f'v_mul_f32 v{g0}, v{C+cP}, v{C+cPr}')
    yield ('v', f'v_mul_f32 v{g0+1}, v{C+cQn}, v{C+cPr}')
    yield ('v', f'v_fmac_f32 v{g0}, v{C+cQn}, v{C+cPi}')
    yield ('v', f'v_fmac_f32 v{g0+1}, v{C+cnP}, v{C+cPi}')
    an = ren(acc, spare)
    pr, pi = g0, g0 + 1
    for r in range(16):
        ar, br = an[r], acc + 16 + r
        yield ('v', f'v_fmac_f32 v{ar}, v{C+cLr}, v{pr}')
        yield ('v', f'v_fmac_f32 v{br}, v{C+cLr}, v{pi}')
        yield ('v', f'v_fmac_f32 v{ar}, v{C+cLi}, v{pi}')
        yield ('v', f'v_fmac_f32 v{br}, v{C+cnLi}, v{pr}')
        pr, pi = ar, br
    for comp in range(2):
        src = an if comp == 0 else [acc + 16 + r for r in range(16)]
        for k in range(8):
            yield ('v', f'v_cvt_pk_bf16_f32 v{G[2*comp+(k>>2)]+(k&3)}, v{src[2*k]}, v{src[2*k+1]}')
        yield ('lds', f'ds_write_b128 v{vTW}, {V(G[2*comp],4)}', tag + f'tw{comp}a')
        yield ('lds', f'ds_write_b128 v{vTW}, {V(G[2*comp+1],4)} offset:16', tag + f'tw{comp}b')
        yield ('delay', 0)
        for h2 in range(2):
            for e in range(2):
                d = G[4 + 2 * comp + h2] + 2 * e
                yield ('lds', f'ds_read_b64_tr_b16 v[{d}:{d+1}], v{vTR} offset:{h2*32+e*320}', tag + f'tr{comp}{h2}{e}')
            yield ('delay', 0)
    yield ('delay', 4)
    yield ('wl', tag + 'tr111')
    for comp in range(2):
        for h2 in range(2):
            yield ('vm', f'buffer_store_dwordx4 {V(G[4+2*comp+h2],4)}, v{vL16}, s[{SH}:{SH+3}], s{sT0+comp} offen offset:{h2*1024} sc1', 'lastH')
            yield ('delay', 0)

def f_epiq(acc, kbase):
    yield ('s', f's_lshl_b32 s{sXO}, s{sSL}, 13')
    yield ('s', f's_add_u32 s{sXO}, s{sXO}, s{sHB}')
    yield ('s', f's_add_u32 s{sXO}, s{sXO}, {4096*kbase}')
    g = lambda e: acc + 32 * (e >> 4) + (e & 15)
    for n in range(32 + 4):
        if n < 32: yield ('v', f'v_mul_f32 v{g(n)}, v{vC1}, v{g(n)}')
        if 0 <= n - 1 < 32: yield ('t', f'v_exp_f32 v{g(n-1)}, v{g(n-1)}')
        if 0 <= n - 2 < 32: yield ('v', f'v_fma_f32 v{g(n-2)}, v{g(n-2)}, v{vS}, v{vS}')
        if 0 <= n - 3 < 32: yield ('t', f'v_rcp_f32 v{g(n-3)}, v{g(n-3)}')
        e = n - 4
        if n >= 34: yield ('s', 's_nop 0')
        if 0 <= e < 32:
            yield ('v', f'v_mul_f32 v{g(e)}, v{g(e)}, v{g(e)+16}')
            if e & 1:
                U = acc + 32 * (e >> 4) + 16; c = (e >> 3) & 1
                yield ('v', f'v_cvt_pk_bf16_f32 v{U+8*c+((e&7)>>1)}, v{g(e-1)}, v{g(e)}')
                if (e & 7) == 7:
                    yield ('vm', f'buffer_store_dwordx4 v[{U+8*c}:{U+8*c+3}], v{vHG}, s[{SW}:{SW+3}], s{sXO} offen offset:{512*c} sc1', 'lastH')
                    if e == 15: yield ('s', f's_add_u32 s{sXO}, s{sXO}, 4096')

def f_publish(level, delay):
    yield sitem(f'st{level}')
    yield ('after', delay, [sitem(f'ak{level}'), ('wv', 'lastH'), ('vm', f'buffer_store_dword v{vT}, v{vFP}, s[{SF}:{SF+3}], 0 offen offset:{128*level} sc1', None), sitem(f'pub{level}'), ('mark', f'pub{level}')])

def poll_load(dst, vaddr, off, n=1):
    x = '' if n == 1 else f'x{n}'
    return f'buffer_load_dword{x} {V(dst,n)}, v{vaddr}, s[{SF}:{SF+3}], 0 offen offset:{off} sc1'
def poll_check(dst, vaddr, off, need, n=1):
    def cmp_txt():
        s = ''
        if n > 1:
            s += f'v_xor_b32 v{dst}, v{dst}, v{vT}\n'
            for k in range(1, n): s += f'v_bitop3_b32 v{dst}, v{dst}, v{dst+k}, v{vT} bitop3:0xf6\n'
            s += f'v_cmp_ne_u32 vcc, 0, v{dst}\n'
        else: s += f'v_cmp_ne_u32 vcc, v{dst}, v{vT}\n'
        s += 's_nop 1\n'
        s += f's_and_b64 s[{sTP}:{sTP+1}], vcc, s[{need}:{need+1}]\n' if need else 's_cmp_lg_u64 vcc, 0\n'
        return s
    def chk(a):
        slow = a.newlabel('slow'); ok = a.newlabel('ok')
        a.e(cmp_txt() + f's_cbranch_scc1 {slow}')
        a.label(ok)
        a.cold.append(f'''{slow}:
s_mov_b32 s{sCNT}, 0
{slow}_l:
s_add_u32 s{sCNT}, s{sCNT}, 1
s_cmp_gt_u32 s{sCNT}, {SPIN}
s_cbranch_scc1 {ok}
s_sleep {SLEEP[0]}
{poll_load(dst, vaddr, off, n)}
s_waitcnt vmcnt(0)
{cmp_txt()}s_cbranch_scc1 {slow}_l
s_branch {ok}
''')
    return chk

class Sched:
    def __init__(self, a):
        self.a = a; self.keys = {}
        self.stream = None; self.pend = None; self.delay = 0; self.blocked = False
        self.timers = []; self.barq = []; self.maxlds = 2
    def tick(self, force=False):
        used = 0
        for tm in list(self.timers):
            if len(tm) > 2 and not tm[2]() and not force: continue
            tm[0] -= 1
            if tm[0] <= 0 or force:
                self.timers.remove(tm)
                for it in tm[1]: used += self.emit_item(it)
        return used
    def add(self, gen):
        self.stream = gen if self.stream is None else chain(self.stream, gen)
    def push(self, gen):
        rest = ([self.pend] if self.pend is not None else [])
        self.pend = None; self.delay = 0
        self.stream = chain(gen, rest, self.stream if self.stream is not None else [])
    def peek(self):
        if self.pend is None and self.stream is not None:
            self.pend = next(self.stream, None)
            if self.pend is None: self.stream = None
        return self.pend
    def emit_item(self, it):
        a = self.a; k = it[0]
        if k in ('v', 's'): a.e(it[1]); return 1
        if k == 'm': a.e(it[1]); return 2
        if k == 't': a.e(it[1]); return 2
        if k == 'lds': self.keys[it[2]] = a.lds(it[1]); return 1
        if k == 'vm': self.keys[it[2]] = a.vm(it[1]); return 1
        if k == 'wl': return 1 if a.wait(lg=self.keys[it[1]]) else 0
        if k == 'wv': return 1 if a.wait(vm=self.keys[it[1]]) else 0
        if k == 'raw': it[1](a); return it[2]
        if k == 'forcebar': a.e('s_barrier'); return 1
        if k == 'call': it[1](); return 0
        if k == 'after':
            its = [((x[0] + 'i', self.keys[x[1]]) if x[0] in ('wv', 'wl') else x) for x in it[2]]
            self.timers.append([it[1], its]); return 0
        if k == 'when': self.timers.append([it[2], it[3], it[1]]); return 0
        if k == 'wvi': return 1 if a.wait(vm=it[1]) else 0
        if k == 'wli': return 1 if a.wait(lg=it[1]) else 0
        if k == 'onbar': self.barq.append(it[1]); return 0
        if k == 'flush': return self.tick(True)
        if k == 'mark': self.keys[it[1]] = True; return 0
        if k == 'req': assert self.keys.get(it[1]), it[1]; return 0
        raise ValueError(k)
    def head_vm(self):
        return self.delay <= 0 and not self.blocked and self.peek() is not None and self.pend[0] == 'vm'
    def fill(self, budget, vm_ok=True):
        budget -= self.tick()
        if self.delay > 0: self.delay -= 1; return
        if budget <= 0: return
        used = 0; valu_seen = False; self.nl = 0
        while not self.blocked:
            it = self.peek()
            if it is None: return
            k = it[0]
            if k == 'delay': self.delay = it[1]; self.pend = None; return
            if k == 'needbar': self.blocked = True; self.pend = None; return
            if k == 'until':
                if not it[1](): return
                self.pend = None; continue
            if k in ('lds', 'vm') and valu_seen: return
            if k == 'vm':
                if not vm_ok: return
                vm_ok = False
            if k == 'lds':
                nl = getattr(self, 'nl', 0)
                if nl >= self.maxlds: return
                self.nl = nl + 1
            cost = 2 if k in ('t', 'm') else it[2] if k == 'raw' else 1 if k in ('v', 's', 'lds', 'vm', 'wl', 'wv', 'forcebar') else 0
            if used + cost > budget and (used > 0 or (k == 't' and budget < 2)): return
            self.pend = None
            used += self.emit_item(it)
            if k in ('v', 't', 'raw'): valu_seen = True
    def on_barrier(self):
        self.blocked = False
        q = self.barq; self.barq = []
        for its in q:
            for it in its: self.emit_item(it)
    def drain(self, every=None):
        n = 0
        while True:
            if self.blocked:
                self.a.e('s_barrier'); self.blocked = False
            it = self.peek()
            if it is None: return
            self.pend = None
            if it[0] in ('delay', 'until'): continue
            if it[0] == 'needbar': self.blocked = True; continue
            c = self.emit_item(it); n += c
            self.acc = getattr(self, 'acc', 0) + c
            if self.acc >= 6: self.acc = 0; self.tick()
            if every and n >= every[0]:
                n = 0; every[1]()

def P(r): return f'v[{r}:{r+1}]'

def kernel(cfg):
    a = Asm(); a.cold = []
    name = KNAME
    ntx = ' nt' if cfg.get('ntx') else ''
    ntw = ' nt' if cfg.get('ntw') else ''
    a.e(f'.globl {name}\n.p2align 8\n.type {name},@function')
    a.label(name)
    a.e(f's_cmp_ge_u32 s2, 256\ns_cbranch_scc1 L_end')
    if cfg.get('dbg') or ENC[0] or STAMP[0]: a.e('s_memrealtime s[100:101]')
    a.e('''s_load_dwordx16 s[16:31], s[0:1], 0
s_load_dwordx16 s[32:47], s[0:1], 64
v_lshrrev_b32 v2, 6, v0
v_and_b32 v1, 63, v0
v_readfirstlane_b32 s3, v2''')
    if cfg.get('scr'):
        a.e('s_lshr_b32 s10, s2, 3\ns_lshl_b32 s11, s2, 5\ns_or_b32 s2, s10, s11\ns_and_b32 s2, s2, 255')
    a.e('s_and_b32 s10, s2, 7\ns_lshr_b32 s11, s2, 3')
    mp = cfg['k1map']
    lgr = {'T': 1, 'P': 2, 'R': 3, 'S': 4}[mp]
    lx = 4 - lgr
    ls = 3 - lx
    sSH = 15
    a.e(f'''s_lshr_b32 s{sSH}, s11, {5-lgr}
s_lshr_b32 s{sRB}, s10, {ls}
s_lshl_b32 s{sRB}, s{sRB}, {lgr}
s_add_u32 s{sRB}, s{sRB}, s{sSH}
s_and_b32 s{sSL}, s11, {(32>>lgr)-1}
s_lshl_b32 s{sSL}, s{sSL}, {ls}
s_and_b32 s12, s10, {(1<<ls)-1}
s_add_u32 s{sSL}, s{sSL}, s12
s_lshl_b32 s10, s{sSL}, 1
s_sub_u32 s11, s10, 12
s_min_u32 s13, s{sSL}, 9
s_cmp_ge_u32 s{sSL}, 11
s_cselect_b32 s{sD1}, s11, s13''')
    RT = 192
    vRTR, vRTL, vRS, vSG = 208, 209, 95, 210
    GA = 212
    vRX = [252, 253, 254, 255]
    XV, XR, DV = 96, 116, 148
    CQ, CD = 148, 168
    tl = 128
    vJ, vPI, vXA, vSTA, vCDS, vPAR, vZ, vTQ = range(tl + 8, tl + 16)
    vCQA, vCQS, vCL = 248, 249, 250
    sU, sKS, sCG, sRO, sRLO, sRST = 84, 85, 86, 87, 40, 41
    sCQL, sCQS, sCDL, sCDS = 89, 90, 91, 92
    sCL, sCS = 0, 1
    t = tl
    a.e(f'''v_lshrrev_b32 v{t}, 3, v1
v_and_b32 v{t+1}, 7, v1
v_lshrrev_b32 v{t+2}, 1, v{t}
v_xor_b32 v{t+3}, v{t+1}, v{t+2}
v_lshlrev_b32 v{t+3}, 4, v{t+3}
v_and_b32 v{t+4}, 3, v{t}
v_lshrrev_b32 v{t+5}, 2, v{t}
v_lshl_add_u32 v{t+4}, v{t+5}, 4, v{t+4}
v_mul_u32_u24 v{t+4}, 1280, v{t+4}
v_add_u32 v{vD[0]}, v{t+4}, v{t+3}
v_xor_b32 v{vD[1]}, 64, v{vD[0]}
v_add_u32 v{vD[1]}, 4096, v{vD[1]}
v_add_u32 v{vD[2]}, 8192, v{vD[0]}
v_add_u32 v{vD[3]}, 8192, v{vD[1]}
s_lshl_b32 s{sM0B}, s3, 12
s_lshr_b32 s14, s3, 1
s_lshl_b32 s15, s14, 7
s_mul_i32 s{sCDL}, s{sD1}, 40960
s_add_u32 s{sDOFF1}, s{sCDL}, s15
s_lshl_b32 s{sXO}, s{sRB}, 2
s_add_u32 s{sXO}, s{sXO}, s3
s_mul_i32 s{sXO}, s{sXO}, 40960
v_and_b32 v{vJ}, 31, v1
s_lshl_b32 s12, s{sRB}, 6
s_lshl_b32 s11, s{sSL}, 2
s_add_u32 s12, s12, s11
s_add_u32 s12, s12, s3
v_lshl_add_u32 v{vSTA}, s12, 1, v{t+5}
v_mul_u32_u24 v{vXA}, 1280, v{vSTA}
v_lshl_add_u32 v{vXA}, v{vJ}, 3, v{vXA}
v_mov_b32 v{vZ}, {NONCE_OFF}''')
    A_ = Asm()
    a_main = a
    a = A_
    a.e(f'''s_add_u32 s{sD2}, s{sD1}, 1
s_bfe_u32 s{sRBP}, s2, 0x20001
s_lshl_b32 s{sRBP}, s{sRBP}, 2
s_lshr_b32 s14, s2, 6
s_add_u32 s{sRBP}, s{sRBP}, s14
s_bfe_u32 s{sNB}, s2, 0x30003
v_lshlrev_b32 v{t+3}, 3, v{vSTA}
v_add_u32 v{t+3}, {STAT_OFF}, v{t+3}
v_cmp_eq_u32 vcc, 0, v{vJ}
v_mov_b32 v{vSTA}, {OOB}
v_lshlrev_b32 v{vL16}, 4, v1
v_cndmask_b32 v{vSTA}, v{vSTA}, v{t+3}, vcc
v_mul_u32_u24 v{t+4}, 1280, v{t}
v_lshl_add_u32 v{vRTL}, v{t+1}, 4, v{t+4}
v_and_b32 v{t+2}, 1, v{t+2}
v_lshlrev_b32 v{t+2}, 2, v{t+2}
v_xor_b32 v{t+3}, v{t+1}, v{t+2}
v_lshlrev_b32 v{t+3}, 4, v{t+3}
v_mul_u32_u24 v{t+4}, 3456, v{t}
v_add_u32 v{vQ[0]}, v{t+4}, v{t+3}
v_add_u32 v{vQ[1]}, {8*3456-1024}, v{vQ[0]}
v_lshl_add_u32 v{vCQA}, v{t+1}, 4, v{t+4}
s_lshr_b32 s14, s3, 1
s_lshl_b32 s15, s14, 7
s_add_u32 s{sDOFF2}, s{sCDL}, s15
s_add_u32 s{sDOFF2}, s{sDOFF2}, 40960
s_lshl_b32 s{sCDS}, s{sRB}, 1
s_add_u32 s{sCDS}, s{sCDS}, s14
s_bfe_u32 s14, s{sCDS}, 0x10002
s_lshl_b32 s14, s14, 4
s_and_b32 s15, s{sCDS}, 3
s_add_u32 s14, s14, s15
s_lshr_b32 s15, s{sCDS}, 3
s_lshl_b32 s15, s15, 2
s_add_u32 s14, s14, s15
s_mul_i32 s14, s14, 1280
s_add_u32 s{sCDL}, s{sCDL}, s14
s_lshl_b32 s{sCDS}, s{sCDS}, 4
s_lshl_b32 s14, s{sD1}, 1
s_add_u32 s14, s14, 108
s_and_b32 s15, s3, 1
s_add_u32 s14, s14, s15
s_lshl_b32 s14, s14, 10
s_add_u32 s{sCDS}, s{sCDS}, s14
s_mul_i32 s14, s3, {16*3456}
s_lshl_b32 s{sQOFF1}, s{sSL}, 7
s_add_u32 s{sQOFF1}, s{sQOFF1}, s14
s_add_u32 s{sQOFF2}, s{sQOFF1}, 2048''')
    assert CS_OFF == 0
    a.e(f'''s_lshr_b32 s14, s{sRB}, 3
s_lshl_b32 s14, s14, 4
s_add_u32 s14, s14, s{sSL}
s_and_b32 s15, s{sRB}, 3
s_lshl_b32 s{sCQL}, s15, 2
s_add_u32 s{sCQL}, s{sCQL}, s3
s_mul_i32 s{sCQL}, s{sCQL}, {40*3456}
s_lshl_b32 s{sCQS}, s14, 7
s_add_u32 s{sCQL}, s{sCQL}, s{sCQS}
s_lshl_b32 s{sCQS}, s14, 12
s_cmp_ge_u32 s14, 27
s_cselect_b32 s14, {OOB}, 0
s_add_u32 s{sCQL}, s{sCQL}, s14
s_cmp_lg_u32 s3, 0
s_cselect_b32 s14, {OOB}, s14
s_add_u32 s{sCQS}, s{sCQS}, s14
s_bfe_u32 s14, s{sRB}, 0x10002
s_lshl_b32 s14, s14, 10
s_add_u32 s{sCQS}, s{sCQS}, s14
s_lshr_b32 s14, s15, 1
s_lshl_b32 s14, s14, 9
s_add_u32 s{sCQS}, s{sCQS}, s14
s_and_b32 s14, s15, 1
s_lshl_b32 s14, s14, 3
s_add_u32 s{sCQS}, s{sCQS}, s14
v_and_b32 v{t+2}, 3, v1
v_lshl_add_u32 v{t+2}, v{t+2}, 3, v{t}
v_lshlrev_b32 v{t+2}, 4, v{t+2}
v_bfe_u32 v{t+3}, v1, 2, 1
v_lshl_add_u32 v{vCQS}, v{t+3}, 11, v{t+2}
v_lshrrev_b32 v{t+2}, 5, v1
v_lshlrev_b32 v{t+2}, 9, v{t+2}
v_bfe_u32 v{t+3}, v1, 4, 1
v_lshl_add_u32 v{t+2}, v{t+3}, 3, v{t+2}
v_and_b32 v{t+3}, 15, v1
v_cmp_eq_u32 vcc, 0, v{t+3}
v_mov_b32 v{vCDS}, {OOB}
v_lshlrev_b32 v{vCL}, 2, v1
v_cndmask_b32 v{vCDS}, v{vCDS}, v{t+2}, vcc
v_bfe_u32 v{t}, v1, 2, 1
v_bfe_u32 v{t+1}, v1, 3, 2
v_and_b32 v{vPI}, 3, v1
v_lshl_add_u32 v{vPI}, v{t}, 4, v{vPI}
v_lshl_add_u32 v{vPI}, v{t+1}, 2, v{vPI}
v_lshlrev_b32 v{vPAR}, 1, v{vPI}
v_lshlrev_b32 v{vSG}, 3, v{vPI}
v_mul_u32_u24 v{vTW}, 80, v{vPI}
v_lshrrev_b32 v{t}, 2, v1
v_and_b32 v{t+1}, 3, v1
v_lshlrev_b32 v{t+1}, 2, v{t+1}
v_lshl_add_u32 v{t}, v{t}, 9, v{t+1}
s_lshl_b32 s14, s{sRBP}, 13
v_add_u32 v2, s14, v{t}
s_lshl_b32 s14, s{sRB}, 13
s_lshl_b32 s15, s{sSL}, 9
s_add_u32 s14, s14, s15
s_lshl_b32 s15, s3, 2
s_add_u32 s14, s14, s15
v_mov_b32 v{vFP}, {OOB}
v_writelane_b32 v{vFP}, s14, 0''')
    vFL2 = 2
    a.e(f'''v_lshrrev_b32 v{t}, 5, v1
v_bfe_u32 v{t+1}, v1, 2, 2
v_lshl_add_u32 v{t}, v{t}, 3, v{t+1}
v_lshlrev_b32 v{t}, 7, v{t}
v_bfe_u32 v{t+1}, v1, 3, 1
v_lshl_add_u32 v{t}, v{t+1}, 6, v{t}
v_bfe_u32 v{t+1}, v1, 4, 1
v_lshl_add_u32 v{t}, v{t+1}, 5, v{t}
v_and_b32 v{t+1}, 3, v1
v_lshl_add_u32 v{vRQ[0][0]}, v{t+1}, 3, v{t}
v_xor_b32 v{vRQ[1][0]}, 64, v{vRQ[0][0]}''')
    for jh in range(2):
        for wn in (1, 2): a.e(f'v_add_u32 v{vRQ[jh][wn]}, {65536*wn}, v{vRQ[jh][0]}')
    a.e(f'''v_bfe_u32 v{t}, v1, 1, 3
v_lshrrev_b32 v{t+1}, 5, v1
v_xor_b32 v{t}, v{t}, v{t+1}
v_lshlrev_b32 v{t}, 4, v{t}
v_lshl_add_u32 v{vRD[0]}, v{vJ}, 7, v{t}
v_xor_b32 v{vRD[1]}, 32, v{vRD[0]}
v_xor_b32 v{vRD[2]}, 64, v{vRD[0]}
v_xor_b32 v{vRD[3]}, 96, v{vRD[0]}
s_add_u32 s14, s{sM0B}, {5*16384}''')
    for k in range(4): a.e(f'v_add_u32 v{vRX[k]}, s14, v{vRD[k]}')
    a.srd(SG, P_WG, 640 * 3456); a.srd(SU, P_WU, 640 * 3456 + 2048, add=-2048)
    a.srd(SF, P_WS, 262144, add=FLG_OFF)
    a = a_main
    a.e('s_waitcnt lgkmcnt(0)')
    if ENC[0]: a.e('v_writelane_b32 v0, s100, 0\nv_writelane_b32 v0, s100, 1')
    if STAMP[0]: SNAMES.append('rt0'); a.e('v_writelane_b32 v0, s100, 0')
    stamp(a, 't0'); stamp(a, 'ka')
    def dbg(i):
        if cfg.get('dbg'):
            a.e('s_memrealtime s[0:1]'); a.wait_all(vm=False); a.e(f's_sub_u32 s0, s0, s100\nv_writelane_b32 v0, s0, {i}')
    if cfg.get('dbg'): a.e(f'v_mov_b32 v0, 0\ns_mov_b32 s101, s{P_DBG}\nv_writelane_b32 v0, s{P_DBG+1}, 63')
    dbg(0)

    stage_last = {}
    st = dict(dwin=0, rid={}, bar=-1, xdone=-1, G=0)
    K = {}
    cur = {}
    SLOT = [0, 1, 2, 3, 4, 0, 1, 7, 8, 2, 5, 3, 4, 0, 1, 7, 8, 6, 2, 5, 3, 4, 0, 1, 7]
    while len(SLOT) < 25: SLOT.append(SLOT[len(SLOT) - 9])
    RSLOT = 6
    xlast = {}
    def job(kind, n):
        if kind == 'X':
            slot = 5 + (n & 3)
            ready = lambda: n < 4 or st['xdone'] >= n - 4
        elif kind == 'R':
            slot = RSLOT
            ready = lambda: st['xdone'] >= 9
        else:
            slot = SLOT[n]
            prev = [m for m in range(n) if SLOT[m] == slot]
            if prev: ready = lambda: st['bar'] >= prev[-1] + 2
            elif slot == RSLOT: ready = lambda: st.get('rtread')
            elif slot >= 5: ready = lambda: st['xdone'] >= max(c for c in range(10) if 5 + (c & 3) == slot)
            else: ready = lambda: True
        out = []
        for j in range(4):
            def th(j=j):
                if j == 0:
                    a.e(f's_add_u32 m0, s{sM0B}, {slot*16384}')
                    if kind == 'S':
                        k2, soff = cur['stages'][n]
                        first = n == 0 or cur['stages'][n - 1] != cur['stages'][n]
                        a.e('s_nop 0' if first else f's_add_u32 s{soff}, s{soff}, {256 if k2=="D" else 64*3456}')
                    elif kind == 'X': a.e('s_nop 0' if n == 0 else f's_add_u32 s{sXO}, s{sXO}, 128')
                    else: a.e('s_nop 0')
                if kind == 'X':
                    xlast[n] = a.vm(f'buffer_load_dwordx4 v{vD[j]}, s[{SP}:{SP+3}], s{sXO} offen offset:{1024*j} lds')
                    if n == 9 and j == 3: st['xiss'] = True
                elif kind == 'R':
                    K['rt'] = a.vm(f'buffer_load_dwordx4 v{vRTL}, s[{SR}:{SR+3}], s{sRLO} offen offset:{1024*j}{ntx} lds')
                    if j < 3: a.e(f's_add_u32 s{sRLO}, s{sRLO}, s{sRST}')
                    else: st['riss'] = True
                else:
                    k2, soff = cur['stages'][n]
                    if k2 == 'D': i = a.vm(f'buffer_load_dwordx4 v{vD[j]}, s[{SB}:{SB+3}], s{soff} offen offset:{1024*j} lds')
                    else:
                        srd = SG if j < 2 else SU
                        i = a.vm(f'buffer_load_dwordx4 v{vQ[j&1]}, s[{srd}:{srd+3}], s{soff} offen offset:{1024*j} lds')
                    if j == 3: stage_last[n] = i
            th.kind = kind; th.stage = n; th.ready = ready if j == 0 else (lambda: True)
            out.append(th)
        return out
    dmaq = []
    def make_jobs(nst):
        seq = []
        for n in range(5): seq += [('S', n), ('X', 2 * n), ('X', 2 * n + 1)]
        seq += [('S', n) for n in range(5, nst)]
        seq.insert(cfg.get('rpos', 18), ('R', 0))
        for kd, n in seq: dmaq.extend(job(kd, n))
    def step_i():
        a.srd(SP, P_X, 2621440)
        a.e(f's_and_b32 s14, s3, 1\ns_cselect_b32 s{SB}, s{P_BIM}, s{P_BRE}\ns_cselect_b32 s{SB+1}, s{P_BIM+1}, s{P_BRE+1}\ns_mov_b32 s{SB+2}, 819200\ns_mov_b32 s{SB+3}, 0x00020000')
    def step_x():
        K['x'] = [a.vm(f'buffer_load_dwordx2 v[{XR+2*n}:{XR+2*n+1}], v{vXA}, s[{SP}:{SP+3}], 0 offen offset:{256*n}') for n in range(5)][-1]
        a.srd(SW, P_WS, WS_BYTES)
        K['n'] = a.vm(f'buffer_load_dword v{vT}, v{vZ}, s[{SW}:{SW+3}], 0 offen sc1')
    def step_a1():
        a.lines.extend(A_.lines)
    def step_pf():
        lab = 'L_typeA' if cur['typ'] == 'A' else 'L_typeB'
        here = a.newlabel('pf')
        n = cfg.get('pfn', 1)
        a.e(f's_getpc_b64 s[14:15]')
        a.label(here)
        a.e(f'''s_lshr_b32 s{sT0}, s2, 3
s_and_b32 s{sT0}, s{sT0}, {cfg.get('pfmask', 0)}
s_lshl_b32 s{sT0}, s{sT0}, 2
s_add_u32 s{sT0}, s{sT0}, s3
s_mul_i32 s{sT0}, s{sT0}, {cfg.get('pfl', 64) * 128}
v_lshlrev_b32 v{tl+6}, 7, v1
v_add_u32 v{tl+6}, s{sT0}, v{tl+6}
v_min_u32 v{tl+6}, {cfg.get('pfmax', 28000)}, v{tl+6}
v_and_b32 v{tl+6}, -4, v{tl+6}''')
        if cfg.get('pfl', 64) < 64: a.e(f's_mov_b64 exec, {(1 << cfg["pfl"]) - 1}')
        a.vm(f'global_load_dword v251, v{tl+6}, s[14:15]')
        if cfg.get('pfl', 64) < 64: a.e('s_mov_b64 exec, -1')
    def step_cd():
        for k in range(1 if cur['typ'] == 'A' else 2):
            if k: a.e(f's_add_u32 s{sCDL}, s{sCDL}, 40960')
            a.vm(f'buffer_load_dwordx4 {V(CD+6*k,4)}, v{vL16}, s[{SB}:{SB+3}], s{sCDL} offen')
            K['cd'] = a.vm(f'buffer_load_dword v{CD+6*k+4}, v{vCL}, s[{SB}:{SB+3}], s{sCDL} offen offset:1024')
    def step_cq():
        a.e(f's_bitcmp1_b32 s{sRB}, 2\ns_cselect_b32 s{SH}, s{P_WU}, s{P_WG}\ns_cselect_b32 s{SH+1}, s{P_WU+1}, s{P_WG+1}\ns_mov_b32 s{SH+2}, {640*3456}\ns_mov_b32 s{SH+3}, 0x00020000')
        a.e(f's_mov_b32 s{sCL}, s{sCQL}\ns_mov_b32 s{sCS}, s{sCQS}')
    def step_cl():
        for n in range(5):
            K[f'cl{n}'] = a.vm(f'buffer_load_dwordx4 {V(CQ+4*n,4)}, v{vCQA}, s[{SH}:{SH+3}], s{sCL} offen')
            if n < 4: a.e(f's_add_u32 s{sCL}, s{sCL}, {8*3456}')
        K['cqiss'] = True
    def step_tq():
        a.e(f'v_mul_u32_u24 v{vTQ}, 3456, v1\nv_cmp_gt_u32 vcc, 40, v1\nv_mov_b32 v{tl+6}, {OOB}\ns_nop 0\nv_cndmask_b32 v{vTQ}, v{tl+6}, v{vTQ}, vcc')
        a.vm(f'buffer_load_dword v251, v{vTQ}, s[{SH}:{SH+3}], s{sCL} offen')
    def split_t(d, v, tt):
        return f'v_cvt_pk_bf16_f32 v{tt}, v{v}, v{v}\nv_lshlrev_b32 v{tt}, 16, v{tt}\nv_sub_f32 v{v}, v{v}, v{tt}\nv_cvt_pk_bf16_f32 v{d}, v{tt}, v{v}\n'
    def cq_loads(c, d0, gap):
        for n in range(5):
            its = [('vm', f'buffer_load_dwordx4 {V(CQ+4*n,4)}, v{vCQA}, s[{SH}:{SH+3}], s{sCL} offen', f'cl{n}')]
            its += [('s', f's_add_u32 s{sCL}, s{sCL}, {8*3456}')] if n < 4 else [('mark', 'cqiss')]
            yield ('when', c, d0 + gap * n, its)
    def qq_stream():
        A8 = 232; U8 = 240
        for n in range(5):
            yield ('wv', f'cl{n}')
            for e in range(4):
                dst = A8 + 2 * e if n == 0 else U8 + 2 * (e & 1)
                yield ('v', f'v_lshlrev_b32 v{dst}, 16, v{CQ+4*n+e}')
                yield ('v', f'v_and_b32 v{dst+1}, 0xffff0000, v{CQ+4*n+e}')
                if n:
                    yield ('v', f'v_add_f32 v{A8+2*e}, v{A8+2*e}, v{dst}')
                    yield ('v', f'v_add_f32 v{A8+2*e+1}, v{A8+2*e+1}, v{dst+1}')
        yield from items(f'''s_lshl_b32 s{sCL}, s3, 8
v_add_u32 v{vCL}, {CSL}, v{vCL}
v_add_u32 v{U8}, s{sCL}, v{vCL}''')
        for c in range(4): yield ('v', f'v_permlane32_swap_b32 v{A8+c}, v{A8+c+4}')
        for c in range(4): yield ('v', f'v_add_f32 v{A8+c}, v{A8+c}, v{A8+c+4}')
        yield ('s', f's_mov_b32 s{sTP}, 0xff00ff00')
        for c in range(2): yield ('v', f'v_permlane16_swap_b32 v{A8+c}, v{A8+c+2}')
        for c in range(2): yield ('v', f'v_add_f32 v{A8+c}, v{A8+c}, v{A8+c+2}')
        yield ('s', f's_mov_b32 s{sTP+1}, s{sTP}')
        for c in range(2): yield ('v', f'v_add_f32_dpp v{A8+c}, v{A8+c}, v{A8+c} row_ror:8 row_mask:0xf bank_mask:0xf')
        yield ('v', f'v_cndmask_b32 v{A8}, v{A8}, v{A8+1}, s[{sTP}:{sTP+1}]')
        yield ('lds', f'ds_write_b32 v{U8}, v{A8}', 'cw')
        rest = [('lds', f'ds_read_b32 v{A8+k}, v{vCL} offset:{256*k}', 'cr') for k in range(4)]
        fin = list(items(f'v_add_f32 v{A8}, v{A8}, v{A8+1}\nv_add_f32 v{A8+2}, v{A8+2}, v{A8+3}\nv_add_f32 v{A8+2}, v{A8}, v{A8+2}\n' + split_t(A8, A8 + 2, A8 + 3) + f'v_mov_b32 v{A8+1}, v{vT}'))
        fin += [('vm', f'buffer_store_dwordx2 {P(A8)}, v{vCQS}, s[{SW}:{SW+3}], s{sCS} offen sc1', None), ('mark', 'qqst'), sitem('qq')]
        yield ('after', 3, [('wl', 'cw'), ('onbar', rest + [('after', 4, [('wl', 'cr')] + fin)])])
    def split(d, v, tt):
        a.e(f'v_cvt_pk_bf16_f32 v{tt}, v{v}, v{v}\nv_lshlrev_b32 v{tt}, 16, v{tt}\nv_sub_f32 v{v}, v{v}, v{tt}\nv_cvt_pk_bf16_f32 v{d}, v{tt}, v{v}')
    def tag_ready():
        if not st.get('tag'):
            a.wait(vm=K['n'])
            a.e(f'v_add_u32 v{vT}, {GOLD}, v{vT}\nv_and_b32 v{vT}, 0xbfffbfff, v{vT}'); st['tag'] = True
    def step_dd():
        tag_ready()
        a.wait(vm=K['cd'])
        nk = 1 if cur['typ'] == 'A' else 2
        a.e('s_mov_b32 s14, 0x3f803f80')
        for k in range(nk): a.e(f'v_dot2_f32_bf16 v{CD+6*k+5}, v{CD+6*k}, s14, 0')
        for e in range(1, 5):
            for k in range(nk): a.e(f'v_dot2_f32_bf16 v{CD+6*k+5}, v{CD+6*k+e}, s14, v{CD+6*k+5}')
        a.e('s_nop 1')
        for r in (8, 4, 2, 1):
            a.e('s_nop 1')
            for k in range(nk): a.e(f'v_add_f32_dpp v{CD+6*k+5}, v{CD+6*k+5}, v{CD+6*k+5} row_ror:{r} row_mask:0xf bank_mask:0xf')
        for k in range(nk):
            split(CD + 6 * k, CD + 6 * k + 5, CD + 6 * k + 2)
            a.e(f'v_mov_b32 v{CD+6*k+1}, v{vT}')
            K['p0st'] = a.vm(f'buffer_store_dwordx2 {P(CD+6*k)}, v{vCDS}, s[{SW}:{SW+3}], s{sCDS} offen offset:{2048*k} sc1')
    def step_par():
        a.e(f's_lshl_b32 s14, s{sD1}, 6')
        for i, p in enumerate((P_LRE, P_LIM, P_LDT)):
            a.srd(SH, p, 1280)
            K['par'] = a.vm(f'buffer_load_ushort v{TMP+i}, v{vPAR}, s[{SH}:{SH+3}], s14 offen')
            if cur['typ'] == 'B': K['par'] = a.vm(f'buffer_load_ushort v{TMP+4+i}, v{vPAR}, s[{SH}:{SH+3}], s14 offen offset:64')
    def step_rta():
        Lc, Ld = a.newlabel('rt_c'), a.newlabel('rt_done')
        a.e(f's_lshl_b32 s{sU}, s2, 2\ns_add_u32 s{sU}, s{sU}, s3\ns_cmp_ge_u32 s{sU}, 540\ns_cbranch_scc1 {Lc}')
        a.sdiv(sKS, sU, 10, 540)
        a.e(f's_mul_i32 s{sCG}, s{sKS}, 10\ns_sub_u32 s{sCG}, s{sU}, s{sCG}')
        a.srd(SR, P_WD, 1728 * 1280)
        a.e(f'''s_mul_i32 s{sRLO}, s{sKS}, 40960
s_lshl_b32 s14, s{sCG}, 7
s_add_u32 s{sRLO}, s{sRLO}, s14
s_mov_b32 s{sRST}, {10240-1024}
v_lshrrev_b32 v{vRTR}, 5, v1
v_bfe_u32 v{RT}, v1, 4, 1
v_lshlrev_b32 v{RT}, 2, v{RT}
v_lshl_add_u32 v{vRTR}, v{vRTR}, 4, v{RT}
v_bfe_u32 v{RT}, v1, 2, 2
v_add_u32 v{vRTR}, v{vRTR}, v{RT}
v_lshlrev_b32 v{vRTR}, 7, v{vRTR}
v_and_b32 v{RT}, 3, v1
v_lshl_add_u32 v{vRTR}, v{RT}, 3, v{vRTR}
s_mul_i32 s{sKS}, s{sKS}, 5120
s_add_u32 s{sKS}, s{sKS}, {W2F_OFF+40*5120}''')
        for q in range(4):
            a.e(f's_lshl_b32 s14, s{sCG}, 2\ns_add_u32 s14, s14, {q}')
            a.sdiv(sRO, 14, 5, 40)
            a.e(f'''s_mul_i32 s{sRO}, s{sRO}, {NKS*5120-5120}
s_lshl_b32 s14, s14, 10
s_add_u32 s14, s14, s{sRO}
s_add_u32 s{36+q}, s14, s{sKS}''')
        a.e(f's_branch {Ld}')
        a.label(Lc)
        a.e(f's_sub_u32 s{sU}, s{sU}, 540\ns_cmp_ge_u32 s{sU}, 200\ns_cselect_b32 s{sKS}, 1, 0')
        a.e(f's_cselect_b32 s{SR}, s{P_CIM}, s{P_CRE}\ns_cselect_b32 s{SR+1}, s{P_CIM+1}, s{P_CRE+1}\ns_mov_b32 s{SR+2}, 819200\ns_mov_b32 s{SR+3}, 0x00020000')
        a.e(f's_mul_i32 s14, s{sKS}, 200\ns_sub_u32 s{sU}, s{sU}, s14')
        a.sdiv(sCG, sU, 5, 300)
        a.e(f's_mul_i32 s14, s{sCG}, 5\ns_sub_u32 s{sRO}, s{sU}, s14')
        a.e(f'''s_mul_i32 s{sRLO}, s{sCG}, 20480
s_lshl_b32 s14, s{sRO}, 8
s_add_u32 s{sRLO}, s{sRLO}, s14
s_mov_b32 s{sRST}, {5120-1024}
v_lshrrev_b32 v{RT}, 4, v1
v_and_b32 v{RT+1}, 15, v1
v_mul_u32_u24 v{vRTL}, 1280, v{RT}
v_lshl_add_u32 v{vRTL}, v{RT+1}, 4, v{vRTL}
v_lshlrev_b32 v{RT}, 4, v{RT}
v_lshl_add_u32 v{vRTR}, v{RT+1}, 8, v{RT}''')
        a.sdiv(sU, sCG, 5, 60)
        a.e(f'''s_mul_i32 s{sU}, s{sU}, {NKS*5120-5120}
s_lshl_b32 s14, s{sCG}, 10
s_add_u32 s{sU}, s{sU}, s14
s_lshl_b32 s14, s{sRO}, 3
s_add_u32 s14, s14, s{sKS}
s_mul_i32 s14, s14, 5120
s_add_u32 s{sU}, s{sU}, s14
s_cmp_ge_u32 s{sCG}, 40
s_cselect_b32 s14, {OOB}, {W2F_OFF}
s_add_u32 s36, s{sU}, s14
s_add_u32 s37, s36, 10240
s_add_u32 s38, s36, 20480
s_add_u32 s39, s36, 30720''')
        a.label(Ld)
        a.e(f's_add_u32 s14, s{sM0B}, {RSLOT*16384}\nv_add_u32 v{vRTR}, s14, v{vRTR}')
    def rt_read(a):
        a.wait(vm=K['rt'])
        lc, ld = a.newlabel('rtc'), a.newlabel('rtd')
        a.e(f's_cmp_eq_u32 s{sRST}, {5120-1024}\ns_cbranch_scc1 {lc}')
        for q in range(4):
            for e in range(2): a.e(f'ds_read_b64_tr_b16 v[{RT+4*q+2*e}:{RT+4*q+2*e+1}], v{vRTR} offset:{q*32+e*1024}')
        a.e(f's_branch {ld}')
        a.label(lc)
        for q in range(4):
            for e in range(2): K['rtr'] = a.lds(f'ds_read_b64 v[{RT+4*q+2*e}:{RT+4*q+2*e+1}], v{vRTR} offset:{q*64+e*8}')
        a.label(ld)
    def step_j():
        for _ in range(4):
            assert dmaq[0].ready(); dmaq.pop(0)()
    def step_st():
        a.wait(vm=K['x'])
        stamp(a, 'x')
        for n in range(10):
            a.e(f'v_lshlrev_b32 v{XV+2*n}, 16, v{XR+n}\nv_and_b32 v{XV+2*n+1}, 0xffff0000, v{XR+n}')
        m_, q_ = tl, tl + 2
        a.e(f'v_pk_add_f32 {P(m_)}, {P(XV)}, {P(XV+2)}\nv_pk_add_f32 {P(q_)}, {P(XV+4)}, {P(XV+6)}')
        for n in range(4, 10, 2):
            a.e(f'v_pk_add_f32 {P(m_)}, {P(m_)}, {P(XV+2*n)}\nv_pk_add_f32 {P(q_)}, {P(q_)}, {P(XV+2*n+2)}')
        a.e(f'v_pk_add_f32 {P(m_)}, {P(m_)}, {P(q_)}\nv_add_f32 v{m_}, v{m_}, v{m_+1}')
        def red32(v, tt):
            for r in (8, 4, 2, 1):
                a.e(f's_nop 1\nv_add_f32_dpp v{v}, v{v}, v{v} row_ror:{r} row_mask:0xf bank_mask:0xf')
            a.e(f'v_mov_b32 v{tt}, v{v}\ns_nop 1\nv_permlane16_swap_b32 v{v}, v{tt}\ns_nop 0\nv_add_f32 v{v}, v{v}, v{tt}')
        red32(m_, m_ + 1)
        a.e(f'v_mul_f32 v{m_}, 0xbacccccd, v{m_}')
        for n in range(10): a.e(f'v_pk_add_f32 {P(XV+2*n)}, {P(XV+2*n)}, {P(m_)} op_sel_hi:[1,0]')
        a.e(f'v_pk_mul_f32 {P(q_)}, {P(XV)}, {P(XV)}\nv_pk_mul_f32 {P(tl+4)}, {P(XV+2)}, {P(XV+2)}')
        for n in range(2, 10, 2):
            a.e(f'v_pk_fma_f32 {P(q_)}, {P(XV+2*n)}, {P(XV+2*n)}, {P(q_)}\nv_pk_fma_f32 {P(tl+4)}, {P(XV+2*n+2)}, {P(XV+2*n+2)}, {P(tl+4)}')
        a.e(f'v_pk_add_f32 {P(q_)}, {P(q_)}, {P(tl+4)}\nv_add_f32 v{q_}, v{q_}, v{q_+1}')
        red32(q_, q_ + 1)
        a.e(f'v_mul_f32 v{q_}, 0x3acccccd, v{q_}\n' + bfround_t(q_, q_) + f'v_add_f32 v{q_}, 0x3727c5ac, v{q_}\n' + bfround_t(q_, q_) + f'v_sqrt_f32 v{q_}, v{q_}')
        tag_ready()
        a.e(f'v_mov_b32 v{m_+1}, v{vT}\nv_cvt_pk_bf16_f32 v{m_}, v{m_}, v{q_}')
        K['p0st'] = a.vm(f'buffer_store_dwordx2 {P(m_)}, v{vSTA}, s[{SW}:{SW+3}], 0 offen sc1')
        stamp(a, 'stp')
    steps = dict(x=step_x, cd=step_cd, cq=step_cq, par=step_par, ra=step_rta, j=step_j, st=step_st, dd=step_dd, tq=step_tq, cl=step_cl, pf=step_pf, a1=step_a1)
    order = cfg.get('p0', 'x.j.j.a1.cd.par.cq.j.ra.st.j.dd.j.j').split('.')

    def rt_flow(SPR):
        pub = ('onbar', [('vm', f'buffer_store_dword v{vT}, v{SPR+2}, s[{SF}:{SF+3}], 0 offen sc1', None), sitem('f1pub'), ('mark', 'f1pub')])
        sts = [('vm', f'buffer_store_dwordx4 v[{RT+4*q}:{RT+4*q+3}], v{vL16}, s[{SW}:{SW+3}], s{36+q} offen sc1', 'p0st') for q in range(4)]
        c = lambda: st.get('riss')
        d = cfg.get('rtdelay', 24)
        yield ('when', c, d, [('raw', rt_read, 10)])
        yield ('when', c, d + 4, [('call', lambda: (a.wait(lg=K['rtr']), st.__setitem__('rtread', True), st.__setitem__('rtbar', st['bar']))), sts[0]])
        g = cfg.get('stgap', 4)
        yield ('when', c, d + 4 + g, [sts[1]])
        yield ('when', c, d + 4 + 2 * g, [sts[2]])
        yield ('when', c, d + 4 + 3 * g, [sts[3], ('mark', 'rtst')])
        yield ('when', lambda: cur['sch'].keys.get('rtst'), cfg.get('f1delay', 26), [('wv', 'p0st'), pub])
    def eg_issue(nk):
        yield from early_gather(nk, True)
    def early_gather(nk, issue=False):
        lds_ = [f'buffer_load_dwordx2 {P(GA)}, v{vSG}, s[{SW}:{SW+3}], s{sT0} offen sc1']
        lds_ += [f'buffer_load_dwordx4 {V(GA+4+4*k,4)}, v{vL16}, s[{SW}:{SW+3}], s{sT1} offen offset:{1024*k} sc1' for k in range(2 * nk)]
        chk_ = [f'v_xor_b32 v{GA+2}, v{GA+1}, v{vT}']
        for k in range(2 * nk):
            chk_ += [f'v_bitop3_b32 v{GA+3}, v{GA+5+4*k}, v{GA+7+4*k}, v{vT} bitop3:0x7e', f'v_or_b32 v{GA+2}, v{GA+2}, v{GA+3}']
        if issue:
            yield from items(f'''s_lshl_b32 s{sT0}, s{sRB}, 2
s_add_u32 s{sT0}, s{sT0}, s3
s_lshl_b32 s{sT0}, s{sT0}, 8
s_add_u32 s{sT0}, s{sT0}, {STAT_OFF}
s_lshl_b32 s{sT1}, s{sD1}, 11
s_add_u32 s{sT1}, s{sT1}, {108*1024}''')
            for k, ln in enumerate(lds_): yield ('when', lambda: st['G'] >= cfg.get('egat', 10), 1 + k, [('vm', ln, 'eg')] + ([('mark', 'egiss')] if k == len(lds_) - 1 else []))
            return
        yield ('until', lambda: st['G'] >= cfg.get('egck', 16) and cur['sch'].keys.get('egiss'))
        yield ('wv', 'eg')
        yield sitem('egw')
        for ln in chk_: yield ('v', ln)
        def chk(a):
            slow = a.newlabel('slow'); ok = a.newlabel('ok')
            a.e(f'v_cmp_ne_u32 vcc, 0, v{GA+2}\ns_nop 1\ns_cmp_lg_u64 vcc, 0\ns_cbranch_scc1 {slow}')
            a.label(ok)
            a.cold.append(f'{slow}:\ns_mov_b32 s{sCNT}, 0\n{slow}_l:\ns_sleep {SLEEP[0]}\n' + '\n'.join(lds_) + '\ns_waitcnt vmcnt(0)\n' + '\n'.join(chk_) + f'''
v_cmp_ne_u32 vcc, 0, v{GA+2}
s_add_u32 s{sCNT}, s{sCNT}, 1
s_cmp_gt_u32 s{sCNT}, {SPIN}
s_cbranch_scc1 {ok}
s_cmp_lg_u64 vcc, 0
s_cbranch_scc1 {slow}_l
s_branch {ok}
''')
        yield ('raw', chk, 4)
        yield sitem('egok')
        yield from items(f'''v_and_b32 v{vS}, 0xffff0000, v{GA}
v_and_b32 v{GA+2}, 0xffff, v{GA}
v_rcp_f32 v{GA+3}, v{vS}
v_lshl_or_b32 v{GA+2}, v{GA+2}, 16, v{GA+2}
v_accvgpr_write_b32 {R(AM)}, v{GA+2}
v_accvgpr_write_b32 {R(AM+1)}, 0
v_accvgpr_write_b32 {R(AM+2)}, v{GA+2}
v_accvgpr_write_b32 {R(AM+3)}, 0
v_mul_f32 v{vC1}, {NLOG2E}, v{GA+3}
s_lshl_b32 s{sT0}, s3, 7
s_add_u32 s{sT0}, s{sT0}, {RSL}
v_lshrrev_b32 v{vSG}, 1, v{vSG}
v_add_u32 v{vSG}, s{sT0}, v{vSG}
v_lshrrev_b32 v{vRS}, 5, v1
v_lshl_add_u32 v{vRS}, v{vRS}, 6, s{sT0}''')
        yield ('lds', f'ds_write_b32 v{vSG}, v{GA+3}', 'rsw')
        for k in range(2):
            yield ('m', f'v_mfma_f32_32x32x16_bf16 {V(ACC_D+16*k,16)}, {R(AM,4)}, {V(GA+4+4*k,4)}, {V(ACC_D+16*k,16)}')
            yield ('delay', 0)
        yield ('mark', 'corrD1')

    setup = f'''s_lshl_b32 s{sHB}, s{sRB}, 1
s_lshr_b32 s{sT0}, s3, 1
s_add_u32 s{sHB}, s{sHB}, s{sT0}
s_mul_i32 s{sHB}, s{sHB}, {NKS*4096}
s_and_b32 s{sT0}, s3, 1
s_lshl_b32 s{sT0}, s{sT0}, 11
s_add_u32 s{sHB}, s{sHB}, s{sT0}
s_add_u32 s{sHB}, s{sHB}, {HF_OFF}
s_and_b32 s{sT0}, s2, 1
s_lshl_b32 s{sT1}, s{sRBP}, 1
s_add_u32 s{sT1}, s{sT1}, s{sT0}
s_lshl_b32 s{sT0}, s{sT0}, 2
s_add_u32 s{sT0}, s{sT0}, s3
s_mul_i32 s{sW2}, s{sNB}, {NKS}
s_add_u32 s{sW2}, s{sW2}, s{sT0}
s_mul_i32 s{sW2}, s{sW2}, 5120
s_add_u32 s{sW2}, s{sW2}, {W2F_OFF}
s_lshl_b32 s{sT0}, s{sT0}, 12
s_add_u32 s{sT0}, s{sT0}, {HF_OFF}
s_mul_i32 s{sH2[1]}, s{sT1}, {NKS*4096}
s_add_u32 s{sH2[1]}, s{sH2[1]}, s{sT0}
s_xor_b32 s{sH2[0]}, s{sT1}, 1
s_mul_i32 s{sH2[0]}, s{sH2[0]}, {NKS*4096}
s_add_u32 s{sH2[0]}, s{sH2[0]}, s{sT0}
s_mul_i32 s{sHL}, s{sT1}, {NKS*4096}
s_add_u32 s{sHL}, s{sHL}, s{sM0B}
s_add_u32 s{sHL}, s{sHL}, {HF_OFF+62*4096}
s_mul_i32 s{sWL}, s{sNB}, {NKS}
s_add_u32 s{sWL}, s{sWL}, s3
s_mul_i32 s{sWL}, s{sWL}, 5120
s_add_u32 s{sWL}, s{sWL}, {W2F_OFF+62*5120}
s_lshl_b32 s{sT1}, s{sT1}, 2
s_add_u32 s{sT1}, s{sT1}, s3
s_lshl_b32 s{sSTO}, s{sT1}, 7
s_add_u32 s{sSTO}, s{sSTO}, {STAT_OFF}
s_mul_i32 s{sXO2}, s{sT1}, 20480
s_mul_i32 s{sDKO}, s{sNB}, 160
s_add_u32 s{sXO2}, s{sXO2}, s{sDKO}
s_lshl_b32 s{sOO}, s{sXO2}, 1
s_lshl_b32 s{sT0}, s2, 2
s_add_u32 s{sT0}, s{sT0}, s3
s_mul_i32 s{sXS}, s{sT0}, 5120
s_add_u32 s{sXS}, s{sXS}, {XCH_OFF}
s_xor_b32 s{sT0}, s{sT0}, 4
s_mul_i32 s{sXL}, s{sT0}, 5120
s_add_u32 s{sXL}, s{sXL}, {XCH_OFF}
s_mov_b32 s{sNEEDA}, -1
s_mov_b32 s{sNEEDA+1}, 0xfff
v_and_b32 v{GOF}, 31, v1
v_lshrrev_b32 v{GOF+2}, 5, v1
v_bfe_u32 v{GOF+1}, v1, 2, 1
v_lshlrev_b32 v{GOF+1}, 10, v{GOF+1}
v_lshl_add_u32 v{GOF+1}, v{GOF+2}, 8, v{GOF+1}
v_bfe_u32 v{GOF+3}, v1, 3, 2
v_lshl_add_u32 v{GOF+1}, v{GOF+3}, 6, v{GOF+1}
v_and_b32 v{GOF+3}, 3, v1
v_lshl_add_u32 v{vHG}, v{GOF+3}, 4, v{GOF+1}
s_lshl_b32 s{sT0}, s3, 9
s_add_u32 s{sT0}, s{sT0}, {SCR}
v_lshl_add_u32 v{vAGW}, v1, 3, s{sT0}
v_lshlrev_b32 v{GOF+1}, 3, v{GOF}
v_add_u32 v{vAGR}, {SCR}, v{GOF+1}
s_mul_i32 s{sT0}, s3, 2560
s_add_u32 s{sT0}, s{sT0}, {SCR+4096}
v_lshl_add_u32 v{vTW}, v{GOF+2}, 5, v{vTW}
v_add_u32 v{vTW}, s{sT0}, v{vTW}
v_lshrrev_b32 v{GOF+1}, 4, v1
v_bfe_u32 v{GOF+4}, v1, 2, 2
v_lshl_add_u32 v{GOF+1}, v{GOF+1}, 3, v{GOF+4}
v_mul_u32_u24 v{GOF+1}, 80, v{GOF+1}
v_lshl_add_u32 v{GOF+1}, v{GOF+3}, 3, v{GOF+1}
v_add_u32 v{vTR}, s{sT0}, v{GOF+1}
'''
    def setup_sa(SA, sD):
        def f(a):
            a.e(f'''s_mul_i32 s{SA+2}, s{sD}, {AGS}
s_add_u32 s{SA+2}, s{SA+2}, {AGG_OFF}
s_add_u32 s{SA}, s{P_WS}, s{SA+2}
s_addc_u32 s{SA+1}, s{P_WS+1}, 0
s_mov_b32 s{SA+2}, {AGS}
s_mov_b32 s{SA+3}, 0x00020000''')
        return ('raw', f, 6)
    def setup_scc2(a):
        a.e(f'''s_cmp_eq_u32 s{sT1}, 1
s_cselect_b32 s{sT0}, 8192, s{sOOBK}
s_cmp_eq_u32 s3, 0
s_cselect_b32 s{sT0}, s15, s{sT0}
s_cselect_b32 s{sZM}, -1, 0''')
    def setup_scc3(a):
        a.e(f'''s_cmp_eq_u32 s{sSL}, 10
s_cselect_b32 s{sT0}, s{sOOBK}, s{sT0}''')
    setup_sh = ('raw', lambda a: a.e(f's_mov_b32 s{SH}, s{P_WS}\ns_mov_b32 s{SH+1}, s{P_WS+1}\ns_cmp_eq_u32 s{sSL}, 10\ns_cselect_b32 s{SH+2}, 0, {WS_BYTES}\ns_mov_b32 s{SH+3}, 0x00020000'), 5)
    setup1b = f'''s_lshl_b32 s15, s{sRB}, 9
s_or_b32 s{sT1}, s15, s3
s_mov_b32 s{sOOBK}, 0x100000
'''
    setup2 = f'''v_lshlrev_b32 v{GOF+1}, 4, v{GOF}
v_add_u32 v{vPUB}, s{sT0}, v{GOF+1}
s_sub_u32 s15, s15, 512
v_add_u32 v{EXP}, 8192, v{GOF+1}
v_add_u32 v{GOF+1}, s15, v{GOF+1}
v_lshlrev_b32 v{GOF+2}, 9, v{GOF+2}
v_sub_u32 v{GOF}, v{GOF+1}, v{GOF+2}
s_lshr_b32 s{sOOBK}, s3, 1
s_and_b32 s{sOOBK}, s{sOOBK}, s2
s_lshl_b32 s{sOOBK}, s{sOOBK}, 30
'''
    for j in range(1, 8): setup2 += f'v_subrev_u32 v{GOF+j}, {1024*j}, v{GOF}\n'
    for j in range(8): setup2 += f'v_min_u32 v{GOF+j}, v{GOF+j}, v{EXP}\n'
    def mask_items():
        for j in range(1, 8):
            m = sMASK + 2 * (j - 1)
            yield ('raw', lambda a, j=j, m=m: a.e(f's_cmp_eq_u32 s3, {j>>1}\ns_cselect_b32 s{m+(j&1)}, -1, 0\ns_mov_b32 s{m+1-(j&1)}, 0'), 3)
    def f1_pub(SPR):
        vF1P = SPR + 2
        yield ('raw', lambda a: a.e(f's_lshl_b32 s{sT0}, s2, 4\ns_add_u32 s{sT0}, s{sT0}, {F1_OFF}\ns_cmp_lg_u32 s3, 0\ns_cselect_b32 s{sT0}, {OOB}, s{sT0}\nv_mov_b32 v{vF1P}, {OOB}\nv_writelane_b32 v{vF1P}, s{sT0}, 0'), 6)
        yield ('raw', lambda a: a.e(f's_or_b32 s{sT0}, s2, s3\ns_cselect_b32 s{sT0}, {OOB}, {NONCE_OFF}\nv_mov_b32 v{SPR+4}, {OOB}\nv_writelane_b32 v{SPR+4}, s{sT0}, 0'), 4)
        yield ('s', f's_lshl_b32 s{sT0}, s3, 10')
        yield ('s', f's_add_u32 s{sT0}, s{sT0}, {F1_OFF}')
        yield ('v', f'v_add_u32 v{SPR+1}, s{sT0}, v{vL16}')
    def f1_chk(SPR):
        yield ('vm', poll_load(SPR, SPR + 1, 0), 'f1')
        yield ('after', cfg.get('polld', 28), [('req', 'f1pub'), ('wv', 'f1'), sitem('f1w'), ('raw', poll_check(SPR, SPR + 1, 0, None), 4),
               ('onbar', [('vm', f'buffer_store_dword v{vT}, v{SPR+4}, s[{SW}:{SW+3}], 0 offen sc1', None), ('call', lambda: st.__setitem__('f1ok', True)), sitem('f1ok')])])

    def build(units):
        stages = []; groups = []
        for ui, (kind, acc, soff) in enumerate(units):
            ns = 5 if kind == 'D' else 10
            for s in range(ns):
                n = len(stages); stages.append((kind, soff))
                for g in range(4): groups.append((ui, kind, acc, n, s, g))
        return stages, groups
    bars = [0, 1, 2, 3, 4] + list(range(5, 25, 2))
    def reads(G, groups):
        ui, kind, acc, n, s, g = groups[G]
        slot = SLOT[n]; win = slot // 4; base = (slot % 4) * 16384
        buf = WB + 16 * (G % 3)
        out = []
        if kind == 'Q':
            for m in range(4):
                jh, mat = m >> 1, m & 1
                out.append([f'ds_read_b64_tr_b16 {R(buf+4*m+2*e,2)}, v{vRQ[jh][win]} offset:{base+g*4096+mat*2048+e*512}' for e in range(2)])
        else:
            for m in range(4):
                ks, mat = 2 * g + (m >> 1), m & 1
                out.append([f'ds_read_b128 {R(buf+4*m,4)}, v{vRD[ks&3]} offset:{base+(ks>>2)*8192+mat*4096}'])
            if ui == 0:
                for m in range(2):
                    ks = 2 * G + m
                    out[2 * m + 1].append(f'ds_read_b128 {R(XF+4*ks,4)}, v{vRX[ks&3]} offset:{((ks>>2)&3)*16384}')
        return out, (win if kind == 'D' else None)
    def barrier_for(n, stages, sch):
        nxt = min([b for b in bars if b > n] + [len(stages)])
        need = min(nxt, len(stages)) - 1
        while need not in stage_last:
            assert dmaq[0].ready(), (n, dmaq[0].kind, dmaq[0].stage); dmaq.pop(0)()
        a.wait(vm=stage_last[need])
        a.e('s_barrier')
        st['bar'] = n
        sch.on_barrier()
    def set_dwin(w):
        if w is not None and w != st['dwin']:
            d = (w - st['dwin']) * 65536
            for r in vRD: a.e(f'v_add_u32 v{r}, {d & 0xffffffff}, v{r}')
            st['dwin'] = w

    class P2: pass
    def p2_load(p, kind, i, j, reg):
        late = i >= 8
        if kind == 'W': off, sb, sreg = ((i - 8) * 20480, sWL, sP1) if late else (i * 40960, sW2, sP1)
        else: off, sb, sreg = ((i - 8) * 16384, sHL, sP0) if late else (i * 32768, sH2[int(kind[1])], sP0)
        key = (kind, i, j // 4)
        assert st.get('f1ok')
        if kind != 'W': assert st.get('lvl', 0) >= (1 if i < 2 else 2 if i < 8 else 3), (kind, i)
        if p.cur.get(sreg) != key:
            a.e(f's_add_u32 s{sreg}, s{sb}, {off + (j // 4) * 4096}')
            if i == 7: a.e(f's_add_u32 s{sreg}, s{sreg}, s{sOOBK}')
            p.cur[sreg] = key
        p.buf[kind, i, j] = reg
        p.id[kind, i, j] = a.vm(f'buffer_load_dwordx4 {R(reg,4)}, v{vL16}, s[{SW}:{SW+3}], s{sreg} offen offset:{1024*(j%4)} sc1')

    def emit_groups(stages, groups, sch, fillers, pre_load, pool, on_unit):
        lastu = groups[-1][0]
        freed = set()
        for G in range(len(groups)):
            ui, kind, acc, n, s, g = groups[G]
            st['G'] = G
            if s == 0 and g == 0:
                on_unit(ui)
                if ui in fillers: sch.add(fillers[ui])
                stamp(a, f'U{ui+1}'); dbg(1 + ui)
            if cfg.get('gst') and g == 0 and s > 0 and str(ui + 1) in str(cfg['gst']): stamp(a, f'u{ui+1}s{s}')
            nx = G + 2
            rd = None
            if nx < len(groups): rd, win = reads(nx, groups)
            buf = WB + 16 * (G % 3)
            for m in range(4):
                if kind == 'Q': ks = 4 * s + g; d = acc + 16 * m
                else: ks = 8 * s + 2 * g + (m >> 1); d = acc + 16 * (m & 1)
                if m == 0:
                    a.wait(lg=st['rid'][G])
                    if ui == 0 and G & 1: st['xdone'] = G >> 1
                c = '0' if ks == 0 else V(d, 16)
                if kind == 'Q': a.e(f'v_mfma_f32_32x32x16_bf16 {V(d,16)}, {R(buf+4*m,4)}, {R(XF+4*ks,4)}, {c}')
                else: a.e(f'v_mfma_f32_32x32x16_bf16 {V(d,16)}, {R(XF+4*ks,4)}, {R(buf+4*m,4)}, {c}')
                n0 = len(a.lines); budget = 0
                if m == 0 and rd and groups[nx][5] == 0 and groups[nx][3] in bars:
                    barrier_for(groups[nx][3], stages, sch); budget -= 2
                if rd and m == 1 and groups[nx][0] == 0 and not nx & 1:
                    while (nx >> 1) not in xlast or (dmaq[0].kind == 'X' and dmaq[0].stage == nx >> 1):
                        assert dmaq[0].ready(); dmaq.pop(0)()
                    a.wait(vm=xlast[nx >> 1])
                if rd:
                    for t_ in rd[m]: st['rid'][nx] = a.lds(t_)
                if ui == lastu and ks >= 1 and ks - 1 not in freed:
                    freed.add(ks - 1); pool.append(XF + 4 * (ks - 1))
                dma_ok = dmaq and dmaq[0].ready()
                lead = ((dmaq[0].stage - n) if dmaq[0].kind == 'S' else 0) if dmaq else 99
                did = False
                if ui == 0:
                    if dma_ok and not sch.head_vm() and (m != 0 or cfg.get('u1all', 0)): dmaq.pop(0)(); did = True
                elif m in (1, 3):
                    if dma_ok and (m == 3 or lead <= cfg.get('lead2', 5)): dmaq.pop(0)(); did = True
                    elif not sch.head_vm() and not st.get('fvm'): did = pre_load()
                elif m == 2:
                    if dma_ok and lead <= cfg.get('minlead', 2): dmaq.pop(0)(); did = True
                if m == 3 and G + 3 < len(groups): set_dwin(reads(G + 3, groups)[1])
                v0_ = a.vm_n
                sch.fill((st.get('slots', cfg['slots']) if cur['typ'] == 'A' else cfg.get('slotsB', 8)) - (len(a.lines) - n0) - (1 if m == 3 else 0) + (cfg.get('u1extra', 4) if ui == 0 else 0), vm_ok=not did)
                st['fvm'] = a.vm_n > v0_

    unitsA = [('D', ACC_D, sDOFF1), ('Q', ACC_A, sQOFF1), ('Q', ACC_B, sQOFF2)]
    unitsB = [('D', ACC_D, sDOFF1), ('D', ACC_A, sDOFF2), ('Q', ACC_B, sQOFF1)]
    step_i()
    a.e(f's_cmp_ge_u32 s{sSL}, 11\ns_cbranch_scc1 L_typeB')
    st0 = copy.deepcopy(st); as0 = a.state()
    for typ, units in (('A', unitsA), ('B', unitsB)):
        if typ == 'B':
            a.label('L_typeB')
            a.restore(as0); st.clear(); st.update(copy.deepcopy(st0)); stage_last.clear(); xlast.clear(); K.clear()
        stages, groups = build(units)
        cur.update(units=units, stages=stages, typ=typ)
        make_jobs(len(stages))
        assert order.index('a1') < order.index('par') < order.index('cq') < order.index('ra') and order.index('a1') < order.index('cd') and order.index('a1') < order.index('st')
        for stp in order: steps[stp]()
        sch = Sched(a); cur['sch'] = sch; sch.keys.update(K)
        p = P2(); p.buf = {}; p.id = {}; p.cur = {}
        SPR = TMP + 30
        FL = vD[2]
        H = lambda ps, i: [(f'H{ps}', i, j) for j in range(4)]
        Wf = lambda i: [('W', i, j) for j in range(5)]
        HR = lambda ps, ii: [(f'H{ps}', i, j) for j in range(4) for i in ii]
        pool = []
        CB = [256 + 208 + 4 * k for k in range(11)]
        poolB = []
        lq = H(0, 0) + H(0, 1) + H(1, 0) + H(1, 1) + sum([Wf(i) for i in range(8)], []) + sum([H(0, i) for i in range(2, 5)], []) + HR(0, (5, 6, 7)) + sum([Wf(i) for i in range(8, 16)], [])[:cfg.get('wlpre', 10)]
        def lv(it): return 0 if it[0] == 'W' else (1 if it[1] < 2 else 2 if it[1] < 8 else 3)
        def pre_load():
            if not st.get('f1ok'): return False
            for k, it in enumerate(lq):
                if lv(it) > st.get('lvl', 0): continue
                pl = poolB if (it[0] == 'H0' and poolB) else pool
                if not pl: continue
                lq.pop(k); p2_load(p, it[0], it[1], it[2], pl.pop(0)); return True
            return False
        polld = cfg.get('polld', 20); ackd = cfg.get('ackd', 28)
        u1 = chain([] if 'cl' in order else cq_loads(lambda: True, cfg.get('cq0', 4), cfg.get('cqgap', 4)), f1_pub(SPR), rt_flow(SPR), [('call', lambda: a.wait(vm=K['par']))], items(ssm_consts(C1, TMP)), items(ssm_consts(C2, TMP + 4)) if typ == 'B' else [],
                   items(setup), items(setup1b), [('raw', setup_scc2, 5), ('raw', setup_scc3, 3)], items(setup2),
                   [('until', lambda: sch.keys.get('cqiss') and st['G'] >= cfg.get('qqat', 0)), setup_sh], eg_issue(1 if typ == 'A' else 2), qq_stream(), mask_items(), early_gather(1 if typ == 'A' else 2))
        nq_ = 2 if typ == 'A' else 1
        pool.extend(CB[4 * nq_:])
        def cg_txt(k): return f'buffer_load_dwordx4 {R(CB[k],4)}, v{vL16}, s[{SW}:{SW+3}], s{k>>2} offen offset:{1024*(k&3)} sc1'
        def corr_issue():
            c = lambda: sch.keys.get('qqst')
            d0 = cfg.get('cgd', 40)
            yield ('when', c, 1, [('s', f's_lshl_b32 s0, s{sSL}, 12'), ('s', f's_add_u32 s1, s0, {16*4096}')])
            for k in range(4 * nq_): yield ('when', c, d0 + 2 * k, [('vm', cg_txt(k), f'cg{k}')])
            yield ('when', c, d0 + 8 * nq_ + cfg.get('cqd', 16), [('mark', 'cgland')])
        def corr_apply(j, acc, unit):
            g0 = next(n for n, g in enumerate(groups) if g[0] == unit)
            T3 = SPR + 3
            chk_ = []
            for m in range(4):
                k = 4 * j + m
                chk_ += [f'v_accvgpr_read_b32 v{T3}, {R(CB[k]+1)}', f'v_accvgpr_read_b32 v{vD[3]}, {R(CB[k]+3)}']
                chk_ += [f'v_bitop3_b32 v{vD[1] if m == 0 else T3}, v{T3}, v{vD[3]}, v{vT} bitop3:0x7e'] + ([f'v_or_b32 v{vD[1]}, v{vD[1]}, v{T3}'] if m else [])
            yield ('until', lambda: sch.keys.get('cgland') and st['G'] > g0)
            yield ('wv', f'cg{4*j+3}')
            for ln in chk_: yield ('v', ln)
            def chk(a):
                slow = a.newlabel('slow'); ok = a.newlabel('ok')
                a.e(f'v_cmp_ne_u32 vcc, 0, v{vD[1]}\ns_nop 1\ns_cmp_lg_u64 vcc, 0\ns_cbranch_scc1 {slow}')
                a.label(ok)
                a.cold.append(f'{slow}:\ns_mov_b32 s{sCNT}, 0\n{slow}_l:\ns_sleep {SLEEP[0]}\n' + '\n'.join(cg_txt(4 * j + m) for m in range(4)) + '\ns_waitcnt vmcnt(0)\n' + '\n'.join(chk_) + f'''
v_cmp_ne_u32 vcc, 0, v{vD[1]}
s_add_u32 s{sCNT}, s{sCNT}, 1
s_cmp_gt_u32 s{sCNT}, {SPIN}
s_cbranch_scc1 {ok}
s_cmp_lg_u64 vcc, 0
s_cbranch_scc1 {slow}_l
s_branch {ok}
''')
            yield ('raw', chk, 4)
            yield sitem(f'cg{j}ok')
            for m in range(4):
                yield ('m', f'v_mfma_f32_32x32x16_bf16 {V(acc+16*m,16)}, {R(CB[4*j+m],4)}, {R(AM,4)}, {V(acc+16*m,16)}')
                yield ('delay', 0)
            yield ('mark', f'corr{unit}')
            yield ('call', lambda: pool.extend(CB[4*j:4*j+4] + ([AM] if unit == 2 else [])))
        spare1, spare2 = vD[0], vD[1]
        chk_d = ('call', lambda: (_ for _ in ()).throw(AssertionError('D dma pending')) if any(th.kind == 'X' or (th.kind == 'S' and stages[th.stage][0] == 'D') for th in dmaq) else None)
        BQ = list(range(116, 136, 4))
        def _fs():
            pool.extend(range(28, 88, 4))
        free_ssm = ('call', _fs)
        EAr, EAo, EAw, vXP, vXL = 15, 16, 17, 18, 7
        t_ = 8
        def epaddr():
            yield from items(f'''v_and_b32 v{EAw}, 15, v1
v_mul_u32_u24 v{EAw}, 320, v{EAw}
v_lshrrev_b32 v{t_+5}, 4, v1
v_bfe_u32 v{t_+4}, v1, 1, 2
v_xor_b32 v{t_+5}, v{t_+5}, v{t_+4}
v_lshl_add_u32 v{EAw}, v{t_+5}, 4, v{EAw}
s_mul_i32 s{sT0}, s3, 20480
v_add_u32 v{EAw}, s{sT0}, v{EAw}
v_lshrrev_b32 v{t_}, 2, v1
v_and_b32 v{t_+1}, 3, v1
v_lshlrev_b32 v{t_+2}, 3, v{t_+1}
v_mul_u32_u24 v{t_+3}, 1280, v{t_}
v_add_u32 v{t_+3}, v{t_+3}, v{t_+2}
v_lshlrev_b32 v{t_+4}, 3, v{t_}
v_lshlrev_b32 v{EAo}, 1, v{t_+3}
v_bfe_u32 v{t_+5}, v1, 3, 2
v_xor_b32 v{t_+5}, v{t_+5}, v{t_+1}
v_mul_u32_u24 v{EAr}, 320, v{t_}
v_lshl_add_u32 v{EAr}, v{t_+5}, 4, v{EAr}
s_mul_i32 s{sT1}, s3, 5120
v_add_u32 v{EAr}, s{sT1}, v{EAr}
s_lshl_b32 s{sT0}, s2, 7
s_lshl_b32 s{sT1}, s3, 2
s_add_u32 s{sT0}, s{sT0}, s{sT1}
s_add_u32 s{sT0}, s{sT0}, {FX_OFF}
v_mov_b32 v{vXP}, {OOB}
v_writelane_b32 v{vXP}, s{sT0}, 0
s_xor_b32 s{sT0}, s{sT0}, 128
v_mov_b32 v{vXL}, s{sT0}''')
            for d, pp, n in ((SXX, P_X, 2621440), (SDK, P_DSK, 1280), (SO, P_OUT, 5242880)):
                yield from items(f's_mov_b32 s{d}, s{pp}\ns_mov_b32 s{d+1}, s{pp+1}\ns_mov_b32 s{d+2}, {n}\ns_mov_b32 s{d+3}, 0x00020000')
            yield ('vm', f'buffer_load_dword v21, v{t_+4}, s[{SW}:{SW+3}], s{sSTO} offen sc1', 'bs')
            yield ('call', lambda: st.__setitem__('ep', True))
        def base_loads(XQ):
            for i in range(5):
                yield ('vm', f'buffer_load_dwordx2 {P(XQ[i])}, v{t_+3}, s[{SXX}:{SXX+3}], s{sXO2} offen offset:{32*i}', f'bx{i}')
                yield ('delay', 2)
                yield ('vm', f'buffer_load_dwordx2 {P(XQ[i]+2)}, v{t_+2}, s[{SDK}:{SDK+3}], s{sDKO} offen offset:{32*i}', f'bd{i}')
                yield ('delay', 2)
        def base_calc(XQ):
            yield ('wv', 'bd0')
            yield from items(f'''v_and_b32 v22, 0xffff0000, v21
v_rcp_f32 v22, v22
v_lshlrev_b32 v21, 16, v21
v_mul_f32 v21, v21, v22''')
            for i in range(5):
                b = BQ[i]; x = XQ[i]
                yield ('wv', f'bd{i}')
                for k in range(4):
                    un = (lambda d, s_: f'v_and_b32 v{d}, 0xffff0000, v{s_}') if k & 1 else (lambda d, s_: f'v_lshlrev_b32 v{d}, 16, v{s_}')
                    yield ('v', un(b + k, x + (k >> 1)))
                    yield ('v', un(t_, x + 2 + (k >> 1)))
                    yield ('v', f'v_fma_f32 v{t_+1}, v{b+k}, v22, v21')
                    yield ('v', f'v_fmac_f32 v{b+k}, v{t_+1}, v{t_}')
            yield sitem('bend')
            yield ('call', lambda: st.__setitem__('base', True))
        def lchk2(level, d):
            yield ('vm', poll_load(FL, vFL2, 128 * level), f'l{level}')
            yield ('after', d, [sitem(f'l{level}a'), ('wv', f'l{level}'), sitem(f'l{level}w'), ('raw', poll_check(FL, vFL2, 128 * level, sNEEDA if level == 1 else None), 4), sitem(f'l{level}ok'),
                   ('call', lambda: st.__setitem__('lvl', level))])
        sl_ = lambda k: ('call', lambda: st.__setitem__('slots', cfg.get(k, cfg['slots'])))
        f1w = ('when', lambda: sch.keys.get('f1pub'), cfg.get('f1vis', 50), list(f1_chk(SPR)))
        if typ == 'A':
            G = [64, 68, 72, 76, 44, 48, 52, 56]
            u2 = chain([('until', lambda: st.get('xiss')), setup_sa(SA1, sD1), f1w], corr_issue(), [sl_('slotsC')], f_scale(ACC_D, vRS, 'a1'), f_agg(ACC_D, C1, 0, SA1, 'a1'), [sl_('slots'), chk_d], f_coef(ACC_D, C1, spare1), corr_apply(0, ACC_A, 1),
                       [('delay', cfg.get('gdelay0', 2))], f_gather_issue(G, SA1, 'a1'), [('delay', cfg.get('gdelay', 16))],
                       [sl_('slotsK')], f_carry(G, ACC_D, C1, spare1, SA1, sD1, 'a1'), [('mark', 'ssm'), free_ssm, sl_('slotsE')], f_publish(1, ackd),
                       [('when', lambda: sch.keys.get('pub1'), cfg.get('visd', 40), list(lchk2(1, polld)))])
            u3 = chain([('delay', 3)], f_epiq(ACC_A, 40), f_publish(2, ackd), corr_apply(1, ACC_B, 2))
            tailg = chain(f_epiq(ACC_B, 72))
        else:
            G = [ACC_A + 32 + 4 * j for j in range(8)]; G2 = [ACC_D + 4 * j for j in range(8)]
            cd2 = [('until', lambda: st['G'] >= 21)] + [('m', f'v_mfma_f32_32x32x16_bf16 {V(ACC_A+16*k,16)}, {R(AM,4)}, {V(GA+12+4*k,4)}, {V(ACC_A+16*k,16)}') for k in range(2)]
            u2 = chain([('until', lambda: st.get('xiss')), setup_sa(SA1, sD1), f1w], corr_issue(), cd2, f_scale(ACC_D, vRS, 'a1'), f_agg(ACC_D, C1, 0, SA1, 'a1'), [chk_d], f_coef(ACC_D, C1, spare1),
                       [('until', lambda: st.get('riss')), setup_sa(SA2, sD2)])
            ag2 = chain(f_scale(ACC_A, vRS, 'a2'), f_agg(ACC_A, C2, 2048, SA2, 'a2')); cf2 = f_coef(ACC_A, C2, spare2)
            u3 = chain([('delay', 3)], f_gather_issue(G, SA1, 'a1', ag2), ag2,
                       f_carry(G, ACC_D, C1, spare1, SA1, sD1, 'a1'), corr_apply(0, ACC_B, 2), f_gather_issue(G2, SA2, 'a2', cf2), cf2, [('delay', 12)],
                       f_carry(G2, ACC_A, C2, spare2, SA2, sD2, 'a2'), [('mark', 'ssm'), free_ssm], f_publish(2, cfg.get('ackb', 24)))
            tailg = chain(lchk2(1, 20), f_epiq(ACC_B, 40), [('flush',)], f_publish(3, 1000), [('call', lambda: [pre_load() for _ in range(cfg.get('bpre', 16))]), ('flush',)])
        def on_unit(ui):
            if ui == 1: assert sch.keys.get('cw') is not None, 'qq late'
            if ui == 2:
                assert sch.keys.get('rtst') and sch.keys.get('qqst')
        barrier_for(0, stages, sch)
        a.wait(vm=xlast[0])
        for G0 in (0, 1):
            rd, win = reads(G0, groups)
            for lst in rd:
                for tx in lst: st['rid'][G0] = a.lds(tx)
        emit_groups(stages, groups, sch, {0: u1, 1: u2, 2: u3}, pre_load, pool, on_unit)
        assert not dmaq
        stamp(a, 'T'); dbg(4)
        pool += [XF + 156] + [WB + 4 * k for k in range(12)]
        sch.drain(every=(cfg.get('yevery', 24), pre_load))
        assert sch.keys.get('corr2')
        stamp(a, 'T2')
        a.e('s_nop 7\ns_nop 3')
        pid = {}
        tl_ = list(tailg)
        kp = (len(tl_) * cfg.get('p2pos', 7)) // 8 if typ == 'A' else len(tl_)
        def p2i():
            while sch.timers: sch.tick(True)
            pid[2] = a.vm(poll_load(FL, vFL2, 256))
        sch.add(chain(tl_[:kp], [('call', p2i)], tl_[kp:])); sch.drain(every=(cfg.get('yevery', 24), pre_load))
        while sch.timers: sch.tick(True)
        assert st.get('lvl') == 1
        pool.extend([88, 92])
        stamp(a, 'Y')
        ACC = (96, 176)
        FL3 = FL
        nb_ = lambda ps, i: (ps, [(i, rt) for rt in range(4)])
        rb_ = lambda ps, ii: [(ps, [(i, rt) for i in ii]) for rt in range(4)]
        blocks = [nb_(0, 0), nb_(0, 1), nb_(1, 0), nb_(1, 1)] + [nb_(0, i) for i in range(2, 5)] + rb_(0, (5, 6, 7)) + [nb_(1, i) for i in range(2, 13)] + rb_(1, (13, 14, 15))
        pd = cfg.get('pd', 10)
        l_a = [x for x in lq if lv(x) <= 1 and x[1] < 8]; l_b = [x for x in lq if lv(x) == 2]
        rest = sum([H(1, i) for i in range(2, 8)], [])
        wl = [x for x in sum([Wf(i) for i in range(8, 16)], []) if x not in p.id]
        n2 = cfg.get('w2', 8)
        mid = rest[:8]; rest = rest[8:]
        w0 = wl[:n2]; wl = wl[n2:]
        nlate = cfg.get('wlate', 10)
        wz = wl[len(wl) - nlate:]; wl = wl[:len(wl) - nlate]
        while rest or wl:
            mid += rest[:4] + wl[:3]; rest = rest[4:]; wl = wl[3:]
        hl = sum([H(1, i) for i in range(8, 13)], [])
        lq = l_a + w0 + [('Pc', 2)] + l_b + mid[:len(mid) - pd] + [('Pi', 3)] + mid[len(mid) - pd:] + [('Pc', 3)] \
            + hl[:12] + wz[:5] + hl[12:16] + wz[5:] + hl[16:] + HR(1, (13, 14, 15))
        s2 = sch
        if typ == 'A': s2.add(f_publish(3, cfg.get('pubat', 60)))
        s2.add(epaddr())
        BX = {'b': BQ, 'p': list(range(ACC[0], ACC[0] + 20, 4))}
        def next_load():
            if not lq: return False
            it = lq[0]
            if it[0] in ('H0', 'H1', 'W'):
                pl = poolB if (it[0] == 'H0' and poolB) else pool
                if not pl: return False
                if a.vm_n - a.vm_done >= cfg.get('maxout', 40): return False
                lq.pop(0); p2_load(p, it[0], it[1], it[2], pl.pop(0)); return True
            if it[0] == 'Pi':
                lq.pop(0); pid[it[1]] = a.vm(poll_load(FL3, vFL2, 128 * it[1])); return True
            if it[0] == 'Pc':
                lq.pop(0)
                assert sch.keys.get('pub2') and (it[1] == 2 or sch.keys.get('pub3'))
                a.wait(vm=pid[it[1]]); stamp(a, f'l{it[1]}w')
                poll_check(FL3, vFL2, 128 * it[1], None)(a)
                if it[1] == 2: a.e('s_barrier')
                stamp(a, f'l{it[1]}ok'); st['lvl'] = it[1]
                for _ in range(cfg.get('burst', 4)):
                    if lq and lq[0][0] not in ('Pc', 'B'): next_load()
                return True
        def red_writes(ps, rt):
            yield ('delay', 4)
            for ct in range(5):
                yield ('lds', f'ds_write_b128 v{EAw}, {V(ACC[ps]+4*(rt*5+ct),4)} offset:{rt*5120+ct*64}', f'rw{ps}')
        def red0_rest():
            A0 = ACC[0]
            yield ('delay', 3)
            yield ('wl', 'rw0')
            yield ('forcebar',)
            for i in range(5):
                for q in range(4):
                    yield ('lds', f'ds_read_b128 {V(A0+16*i+4*q,4)}, v{EAr} offset:{q*20480+64*i}', f'rr{i}')
            yield ('delay', 2)
            for i in range(5):
                b = A0 + 16 * i
                yield ('wl', f'rr{i}')
                for k in range(4): yield ('v', f'v_add_f32 v{b+k}, v{b+k}, v{b+4+k}')
                for k in range(4): yield ('v', f'v_add_f32 v{b+8+k}, v{b+8+k}, v{b+12+k}')
                for k in range(4): yield ('v', f'v_add_f32 v{b+k}, v{b+k}, v{b+8+k}')
                if i == 4: yield ('s', f's_add_u32 s{sXS}, s{sXS}, 4096')
                yield ('vm', f'buffer_store_dwordx4 {V(b,4)}, v{vL16}, s[{SW}:{SW+3}], s{sXS} offen offset:{1024*(i%4)} sc1', 'xst')
            yield ('forcebar',)
            yield sitem('xst')
            yield ('call', lambda: (st.__setitem__('red0', True), pool.extend(range(A0 + 40, A0 + 80, 4))))
            yield ('after', cfg.get('xdelay', 70), [('wv', 'xst'), ('vm', f'buffer_store_dword v{vT}, v{vXP}, s[{SF}:{SF+3}], 0 offen sc1', None), sitem('xpub'), ('mark', 'xpub')])
            yield from base_loads(BX['p'])
            yield ('delay', cfg.get('bdelay', 20))
            yield from base_calc(BX['p'])
        def xch_load():
            yield ('flush',)
            yield ('req', 'xpub')
            yield ('wv', 'xp')
            yield sitem('xw')
            yield ('raw', poll_check(FL3, vXL, 0, None), 4)
            yield sitem('xok')
            for i in range(5):
                if i == 4: yield ('s', f's_add_u32 s{sXL}, s{sXL}, 4096')
                yield ('vm', f'buffer_load_dwordx4 {V(BX["p"][i],4)}, v{vL16}, s[{SW}:{SW+3}], s{sXL} offen offset:{1024*(i%4)} sc1', f'xl{i}')
        for _ in range(cfg.get('ypre', 2)): next_load()
        cnt = 0; ratio = cfg.get('ratio', 4)
        wuse = {i: 0 for i in range(16)}
        for bn, (ps, blk) in enumerate(blocks):
            need = [(f'H{ps}', i, rt) for i, rt in blk] + [('W', i, j) for i, rt in blk for j in range(5)]
            guard = 0
            while any(k not in p.id for k in need):
                if not next_load():
                    a.wait(vm=a.vm_done + 4)
                guard += 1; assert guard < 2000, (bn, lq[:3], len(pool))
            if bn in (0, 4, 11, 17, 22): stamp(a, f'b{bn}')
            if bn == 22: assert st.get('red0')
            if bn == cfg.get('xpat', 21):
                assert st['lvl'] == 3
                sch.keys['xp'] = a.vm(poll_load(FL3, vXL, 0))
            for i, rt in blk:
                a.wait(vm=max(p.id[k] for k in [(f'H{ps}', i, rt)] + [('W', i, j) for j in range(5)]))
                for ct in range(5):
                    d = ACC[ps] + 4 * (rt * 5 + ct)
                    c = '0' if i == 0 else V(d, 4)
                    a.e(f'v_mfma_f32_16x16x32_bf16 {V(d,4)}, {R(p.buf["W",i,ct],4)}, {R(p.buf[f"H{ps}",i,rt],4)}, {c}')
                    cnt += 1
                    did = next_load() if cnt % ratio == 0 else False
                    s2.fill(0 if did else cfg.get('b2', 2))
                r = p.buf[f'H{ps}', i, rt]
                pool.append(r)
                wuse[i] += 1
                if wuse[i] == (8 if i < 8 else 4):
                    for ct in range(5): pool.append(p.buf['W', i, ct])
            if len(blk) == 3:
                assert st.get('ep')
                s2.add(red_writes(ps, blk[0][1]))
                if bn == 10: s2.add(red0_rest())
            if bn == cfg.get('xlat', 23): s2.add(xch_load())
        assert not lq
        stamp(a, 'mfend'); dbg(5)
        a.e('s_nop 7')
        s2.tick(True); s2.drain()
        assert st.get('base') and not s2.timers and not s2.barq
        a.wait_all(vm=False)
        a.e('s_barrier')
        A1 = ACC[1]
        rd = {}
        for i in range(5):
            for q in range(4):
                rd[i, q] = a.lds(f'ds_read_b128 {V(A1+16*i+4*q,4)}, v{EAr} offset:{q*20480+64*i}')
        for i in range(5):
            a.wait(vm=sch.keys[f'xl{i}'])
            B = BX['b'][i]; X = BX['p'][i]
            for k in (0, 2): a.e(f'v_pk_add_f32 {P(B+k)}, {P(B+k)}, {P(X+k)}')
        for i in range(5):
            a.wait(lg=rd[i, 3])
            b = A1 + 16 * i; B = BX['b'][i]
            for k in (0, 2):
                a.e(f'v_pk_add_f32 {P(b+k)}, {P(b+k)}, {P(b+4+k)}\nv_pk_add_f32 {P(b+8+k)}, {P(b+8+k)}, {P(b+12+k)}')
            for k in (0, 2): a.e(f'v_pk_add_f32 {P(B+k)}, {P(B+k)}, {P(b+k)}')
            for k in (0, 2): a.e(f'v_pk_add_f32 {P(B+k)}, {P(B+k)}, {P(b+8+k)}')
            a.vm(f'buffer_store_dwordx4 {V(B,4)}, v{EAo}, s[{SO}:{SO+3}], s{sOO} offen offset:{64*i} {cfg.get("ost", "").replace("_", " ")}')
        stamp(a, 'st')
        stamp_out(a)
        if ENC[0]:
            a.e('s_waitcnt vmcnt(0)'); stamp(a, 'fin')
            lp = a.newlabel('pad')
            a.e(f's_nop 1\nv_readlane_b32 s4, v0, 0\nv_readlane_b32 s5, v0, 1\ns_nop 3\ns_sub_u32 s5, s5, s4\ns_lshl_b32 s5, s5, 2\ns_add_u32 s5, s5, 3000')
            if typ == 'B': a.e('s_mov_b32 s5, 0')
            a.label(lp)
            a.e(f's_sleep 2\ns_memrealtime s[6:7]\ns_waitcnt lgkmcnt(0)\ns_sub_u32 s6, s6, s4\ns_cmp_lt_u32 s6, s5\ns_cbranch_scc1 {lp}')
        if cfg.get('dbg'):
            a.e('s_waitcnt vmcnt(0)'); dbg(6)
            if cfg.get('pad'):
                lp = a.newlabel('pad')
                if 'padwg' in cfg: a.e(f's_cmp_lg_u32 s2, {cfg["padwg"]}\ns_cbranch_scc1 L_end')
                a.label(lp)
                a.e(f's_sleep 2\ns_memrealtime s[0:1]\ns_waitcnt lgkmcnt(0)\ns_sub_u32 s0, s0, s100\ns_cmp_lt_u32 s0, {cfg["pad"]}\ns_cbranch_scc1 {lp}')
            a.e(f'''s_or_b32 s0, s3, s2
s_cmp_eq_u32 s0, 0
s_cselect_b32 s1, 0, {OOB}
s_cmp_eq_u32 s0, 200
s_cselect_b32 s1, 32, s1
v_lshlrev_b32 v4, 2, v1
v_mov_b32 v6, s101
v_readlane_b32 s0, v0, 63
v_add_u32 v4, s1, v4
s_nop 1
v_mov_b32 v7, s0
v_cmp_gt_u32 vcc, 64, v4
v_add_co_u32 v6, s[4:5], v6, v4
s_nop 1
v_addc_co_u32 v7, s[4:5], 0, v7, s[4:5]
s_and_b64 exec, vcc, 0xff
s_cbranch_execz L_end
global_store_dword v[6:7], v0, off''')
        a.e('s_endpgm')
    for s in a.cold: a.e(s)
    a.label('L_end')
    a.e('s_endpgm')
    return a

HEADER = open('parallel_sum__ssm_conv_s5__glu_gated_glu__prompt.s.ref').read().split('; Override launch')[0]
def assemble(a):
    out = HEADER + '; @launch grid=(256,1,1) block=(256,1,1) lds=163840\n'
    out += '.amdgcn_target "amdgcn-amd-amdhsa--gfx950"\n.text\n'
    errs = check_hazards(a.lines)
    for e in errs: print('HAZARD', e)
    assert not errs
    out += a.text()
    out += f'''.section .rodata,"a"
.p2align 6
.amdhsa_kernel {KNAME}
  .amdhsa_next_free_vgpr 512
  .amdhsa_next_free_sgpr 102
  .amdhsa_accum_offset 256
  .amdhsa_group_segment_fixed_size 0
  .amdhsa_kernarg_size 128
  .amdhsa_user_sgpr_count 2
  .amdhsa_user_sgpr_kernarg_segment_ptr 1
  .amdhsa_system_sgpr_workgroup_id_x 1
.end_amdhsa_kernel
'''
    return out
if __name__ == '__main__':
    cfg = dict(k1map='R', slots=6, u1all=1, slotsC=8, slotsK=7, ratio=3, yevery=12, ntx=1, rpos=17, rtdelay=16, f1delay=20, lead2=4)
    for kv in sys.argv[2:]:
        k, v = kv.split('=')
        if k == 'stamp': STAMP[0] = True
        elif k == 'sleep': SLEEP[0] = int(v)
        elif k == 'enc': ENC[0] = v
        elif k == 'only': STAMP[0] = True; ONLY[0] = v.split('.'); cfg['only'] = v
        else: cfg[k] = int(v) if v.isdigit() else v
    txt = assemble(kernel(cfg))
    if cfg.get('vlog'): print(' '.join(f'{n}:{v}/{m}/{l}' for n, v, m, l in VLOG))
    if STAMP[0]: txt = '; STAMPS ' + ','.join(SNAMES) + '\n; CFG ' + str(cfg) + '\n' + txt
    open(sys.argv[1], 'w').write(txt)
```

```python
import sys, copy
from asmlib import *

KNAME = 'parallel_sum__ssm_conv_s5__glu_gated_glu__prompt_kernel'
CS_OFF = 0
HF_OFF = 4 << 20
W2F_OFF = 20 << 20
AGG_OFF = 24 << 20
NONCE_OFF = 25 << 20
FLG_OFF = (25 << 20) + 131072
DIAG_OFF = 26 << 20
WS_BYTES = 40 << 20
NKS = 94
GOLD = 0x9e3779b9
P_X, P_LRE, P_LIM, P_BRE, P_BIM, P_CRE, P_CIM, P_LDT, P_DSK, P_BX, P_WG, P_WU, P_WD, P_OUT, P_DBG, P_WS = [16 + 2 * i for i in range(16)]
NS = 9
SCR = NS * 16384
LOG2E = 0x3fb8aa3b
NLOG2E = 0xbfb8aa3b
OOB = 0x40000000
STAT_OFF = (25 << 20) + 4096
XCH_OFF = 27 << 20
F1_OFF, FX_OFF = 131072, 163840
SW, SG, SU, SB, SA1, SA2, SH, SF = 48, 52, 56, 60, 64, 68, 72, 76
SP, SR = SA1, SA2
SO, SXX, SDK = SG, SA1, SB
sRB, sSL, sD1, sD2 = 4, 5, 6, 7
sRBP, sNB = 8, 9
sDOFF1, sDOFF2, sQOFF1, sQOFF2 = 10, 11, 12, 13
sHB = 14
sT0, sT1 = 80, 81
sM0B, sXO = 82, 83
sMASK = 84
sCNT, sOOBK = 98, 99
sH2 = (18, 19); sW2, sOO = 20, 21
sXS, sXL = 22, 23
sSTO, sDKO, sXO2 = 24, 25, 26
sHL, sWL = 27, 30
sZM = 31
AGS = 8704
sNEEDA = 28
sTP = 34
sP0, sP1 = 44, 45
vD = [3, 4, 5, 6]; vQ = [7, 8]
vRQ = [[9, 10, 11], [12, 13, 14]]
vRD = [15, 16, 17, 18]
vHG, vL16, vAGW, vAGR, vPUB, vTW, vTR, vT = 19, 20, 21, 22, 23, 24, 25, 26
vFP = 27
C1, C2 = 28, 44
TMP = 60
GOF = TMP + 20; EXP = TMP + 35
vC1, vS = 88, 89
AM = 256 + 252
RSL, CSL = SCR + 14336, SCR + 15360
ACC_D, ACC_A, ACC_B = 96, 128, 192
XF = 256; WB = 256 + 160
cLr, cLi, cnLi, cP, cQn, cnP, c16r, c16i, c128r, c128i, c256r, c256i, cqr, cqi, cPr, cPi = range(16)

STAMP = [False]
SNAMES = []
ONLY = [None]
ENC = [None]
VLOG = []
def stamp(a, nm, real=False):
    VLOG.append((nm, a.vm_n, sum('v_mfma' in l for l in a.lines), len(a.lines)))
    if ENC[0] == nm:
        a.e('s_memrealtime s[100:101]'); a.wait_all(vm=False); a.e('v_writelane_b32 v0, s100, 1')
    if not STAMP[0]: return
    if ONLY[0] is not None:
        if nm not in ONLY[0] and nm not in ('rt0', 'rt1', 't0', 'end'): return
        if nm not in ('t0', 'end'): real = True
    if nm not in SNAMES: SNAMES.append(nm)
    i = SNAMES.index(nm); assert i < 64
    a.e(f'{"s_memrealtime" if real else "s_memtime"} s[100:101]')
    a.wait_all(vm=False)
    a.e(f'v_writelane_b32 v0, s100, {i}')
def stamp_out(a):
    if not STAMP[0]: return
    a.e('s_waitcnt vmcnt(0)')
    stamp(a, 'end'); stamp(a, 'rt1', True)
    a.e(f'''s_lshl_b32 s100, s2, 2
s_add_u32 s100, s100, s3
s_lshl_b32 s100, s100, 8
s_add_u32 s100, s100, {DIAG_OFF}
v_lshlrev_b32 v4, 2, v1
buffer_store_dword v0, v4, s[{SW}:{SW+3}], s100 offen''')
def sitem(nm): return ('raw', lambda a: stamp(a, nm), 0)

def items(text, kind=None):
    for ln in text.strip().split('\n'):
        ln = ln.strip()
        if not ln: continue
        op = ln.split()[0]
        if op in TRANS: yield ('t', ln)
        elif op.startswith('s_'): yield ('s', ln)
        else: yield ('v', ln)
def chain(*gens):
    for g in gens: yield from g

def bfround_t(d, s): return f'v_cvt_pk_bf16_f32 v{d}, v{s}, v{s}\nv_lshlrev_b32 v{d}, 16, v{d}\n'
def cmul_sq(dr, di, sr, si, t):
    return f'v_mul_f32 v{t}, v{si}, v{si}\nv_mul_f32 v{di}, v{sr}, v{si}\nv_fma_f32 v{dr}, v{sr}, v{sr}, -v{t}\nv_add_f32 v{di}, v{di}, v{di}\n'
def ssm_consts(C, l0):
    t = TMP + 8
    s = f'''v_lshlrev_b32 v{l0+2}, 16, v{l0+2}
v_mul_f32 v{l0+2}, {LOG2E}, v{l0+2}
v_exp_f32 v{l0+2}, v{l0+2}
v_lshlrev_b32 v{l0}, 16, v{l0}
v_lshlrev_b32 v{l0+1}, 16, v{l0+1}
''' + bfround_t(l0 + 2, l0 + 2) + f'''v_mul_f32 v{t}, v{l0+2}, v{l0}
v_mul_f32 v{t+1}, v{l0+2}, v{l0+1}
v_mul_f32 v{t}, {LOG2E}, v{t}
v_mul_f32 v{t+1}, 0.15915494, v{t+1}
v_exp_f32 v{t}, v{t}
v_fract_f32 v{t+1}, v{t+1}
v_cos_f32 v{t+2}, v{t+1}
v_sin_f32 v{t+3}, v{t+1}
v_mul_f32 v{t+4}, v{l0}, v{l0}
v_fmac_f32 v{t+4}, v{l0+1}, v{l0+1}
v_mul_f32 v{C+cLr}, v{t}, v{t+2}
v_mul_f32 v{C+cLi}, v{t}, v{t+3}
v_rcp_f32 v{t+4}, v{t+4}
v_sub_f32 v{C+cnLi}, 0, v{C+cLi}
v_add_f32 v{t+5}, -1.0, v{C+cLr}
v_add_f32 v{t+4}, v{t+4}, v{t+4}
v_mul_f32 v{t+6}, v{t+5}, v{l0}
v_fmac_f32 v{t+6}, v{C+cLi}, v{l0+1}
v_mul_f32 v{t+7}, v{t+5}, v{l0+1}
v_fmac_f32 v{t+7}, v{C+cnLi}, v{l0}
v_mul_f32 v{C+cP}, v{t+6}, v{t+4}
v_mul_f32 v{C+cQn}, v{t+7}, v{t+4}
v_sub_f32 v{C+cnP}, 0, v{C+cP}
'''
    s += cmul_sq(t, t + 1, C + cLr, C + cLi, t + 8) + cmul_sq(t + 2, t + 3, t, t + 1, t + 8) + cmul_sq(t, t + 1, t + 2, t + 3, t + 8)
    s += cmul_sq(C + c16r, C + c16i, t, t + 1, t + 8) + cmul_sq(t, t + 1, C + c16r, C + c16i, t + 8) + cmul_sq(t + 2, t + 3, t, t + 1, t + 8)
    s += cmul_sq(C + c128r, C + c128i, t + 2, t + 3, t + 8) + cmul_sq(C + c256r, C + c256i, C + c128r, C + c128i, t + 8)
    s += f'''s_mov_b32 s{sT0}, 0
s_mov_b32 s{sT1}, -1
v_cndmask_b32 v{C+cqr}, 1.0, v{C+c16r}, s[{sT0}:{sT1}]
v_cndmask_b32 v{C+cqi}, 0, v{C+c16i}, s[{sT0}:{sT1}]
'''
    for bit, (pr, pi) in ((0, (t, t + 1)), (1, (t + 2, t + 3))):
        s += f'''s_bfe_i32 s{sT0}, s3, {0x10000 | bit}
s_mov_b32 s{sT1}, s{sT0}
v_cndmask_b32 v{t+4}, 1.0, v{pr}, s[{sT0}:{sT1}]
v_cndmask_b32 v{t+5}, 0, v{pi}, s[{sT0}:{sT1}]
v_mul_f32 v{t+6}, v{C+cqr}, v{t+4}
v_mul_f32 v{t+7}, v{C+cqr}, v{t+5}
v_fma_f32 v{C+cqr}, -v{C+cqi}, v{t+5}, v{t+6}
v_fma_f32 v{C+cqi}, v{C+cqi}, v{t+4}, v{t+7}
'''
    s += f'v_mov_b32 v{C+cPr}, 0\nv_mov_b32 v{C+cPi}, 0\n'
    return s

def cfma(dr, di, lr, li, sr, si):
    yield ('v', f'v_fmac_f32 v{dr}, v{lr}, v{sr}')
    yield ('v', f'v_fmac_f32 v{di}, v{lr}, v{si}')
    yield ('v', f'v_fma_f32 v{dr}, -v{li}, v{si}, v{dr}')
    yield ('v', f'v_fmac_f32 v{di}, v{li}, v{sr}')

def f_scale(acc, vRS, tag):
    for k in range(4):
        yield ('lds', f'ds_read_b128 {V(TMP+4+4*k,4)}, v{vRS} offset:{16*k}', tag + 'rs')
    yield ('delay', 3)
    yield ('wl', tag + 'rs')
    for r in range(16):
        yield ('v', f'v_mul_f32 v{acc+r}, v{TMP+4+r}, v{acc+r}')
        yield ('v', f'v_mul_f32 v{acc+16+r}, v{TMP+4+r}, v{acc+16+r}')
def f_agg(acc, C, area, SA, tag):
    sr, si = acc, acc + 16
    for r in range(1, 16):
        t = TMP + 2 * (r & 1)
        yield ('v', f'v_fma_f32 v{t}, v{C+cLr}, v{sr}, v{acc+r}')
        yield ('v', f'v_fma_f32 v{t+1}, v{C+cLr}, v{si}, v{acc+16+r}')
        yield ('v', f'v_fmac_f32 v{t}, v{C+cnLi}, v{si}')
        yield ('v', f'v_fmac_f32 v{t+1}, v{C+cLi}, v{sr}')
        sr, si = t, t + 1
    yield ('lds', f'ds_write_b64 v{vAGW}, v[{sr}:{si}] offset:{area}', tag + 'w')
    yield ('delay', 2)
    yield ('wl', tag + 'w')
    yield ('forcebar',)
    g = TMP + 4
    for j in range(8):
        yield ('lds', f'ds_read_b64 v[{g+2*j}:{g+2*j+1}], v{vAGR} offset:{area+256*j}', tag + f'r{j}')
    yield ('delay', 3)
    yield ('wl', tag + 'r7')
    for j in range(1, 8):
        pr, pi = g + 2 * (j - 1), g + 2 * (j - 1) + 1
        yield from cfma(g + 2 * j, g + 2 * j + 1, C + c16r, C + c16i, pr, pi)
    yield ('v', f'v_and_b32 v{TMP}, s{sZM}, v{g+14}')
    yield ('v', f'v_mov_b32 v{TMP+1}, v{vT}')
    yield ('v', f'v_and_b32 v{TMP+2}, s{sZM}, v{g+15}')
    yield ('v', f'v_mov_b32 v{TMP+3}, v{vT}')
    yield ('vm', f'buffer_store_dwordx4 v[{TMP}:{TMP+3}], v{vPUB}, s[{SA}:{SA+3}], 0 offen sc1', tag + 'pub')
    yield sitem(tag + 'pub')
    for j in range(1, 8):
        pr, pi = g + 2 * (j - 1), g + 2 * (j - 1) + 1
        m = sMASK + 2 * (j - 1)
        yield ('v', f'v_cndmask_b32 v{C+cPr}, v{C+cPr}, v{pr}, s[{m}:{m+1}]')
        yield ('v', f'v_cndmask_b32 v{C+cPi}, v{C+cPi}, v{pi}, s[{m}:{m+1}]')

def ren(acc, spare): return [spare] + [acc + r for r in range(15)]
def f_coef(acc, C, spare):
    an = ren(acc, spare)
    for r in range(16):
        ar, br = acc + r, acc + 16 + r
        yield ('v', f'v_mul_f32 v{an[r]}, v{C+cP}, v{ar}')
        yield ('v', f'v_fmac_f32 v{an[r]}, v{C+cQn}, v{br}')
        yield ('v', f'v_mul_f32 v{br}, v{C+cnP}, v{br}')
        yield ('v', f'v_fmac_f32 v{br}, v{C+cQn}, v{ar}')
def f_gather_issue(G, SA, tag, fill=None):
    for j in range(8):
        yield ('vm', f'buffer_load_dwordx4 {V(G[j],4)}, v{GOF+j}, s[{SA}:{SA+3}], 0 offen sc1', tag + f'g{j}')
        if fill is not None:
            for _ in range(GFILL[0]):
                x = next(fill, None)
                if x is not None: yield x
        else: yield ('delay', 1)
SPIN = 20000
SLEEP = [4]
GFILL = [4]
def tagchk(G):
    L = [f'v_bitop3_b32 v{G[j]+1}, v{G[j]+1}, v{G[j]+3}, v{vT} bitop3:0x7e' for j in range(8)]
    L += [f'v_or3_b32 v{G[0]+1}, v{G[0]+1}, v{G[1]+1}, v{G[2]+1}', f'v_or3_b32 v{G[3]+1}, v{G[3]+1}, v{G[4]+1}, v{G[5]+1}',
          f'v_or3_b32 v{G[0]+1}, v{G[0]+1}, v{G[6]+1}, v{G[7]+1}', f'v_or_b32 v{G[0]+1}, v{G[0]+1}, v{G[3]+1}']
    return L
def f_carry(G, acc, C, spare, SA, sD, tag, kb=0):
    yield ('wv', tag + 'g7')
    for ln in tagchk(G): yield ('v', ln)
    t0 = G[0] + 1
    def chk(a):
        slow = a.newlabel('slow'); ok = a.newlabel('ok')
        a.e(f'v_cmp_ne_u32 vcc, 0, v{t0}\ns_nop 1\ns_cmp_lg_u64 vcc, 0\ns_cbranch_scc1 {slow}')
        a.label(ok)
        s = f'{slow}:\ns_mov_b32 s{sCNT}, 0\n{slow}_l:\ns_sleep {SLEEP[0]}\n'
        for j in range(8):
            s += f'buffer_load_dwordx4 {V(G[j],4)}, v{GOF+j}, s[{SA}:{SA+3}], 0 offen sc1\n'
        s += 's_waitcnt vmcnt(0)\n' + '\n'.join(tagchk(G)) + '\n'
        s += f'''v_cmp_ne_u32 vcc, 0, v{t0}
s_add_u32 s{sCNT}, s{sCNT}, 1
s_cmp_gt_u32 s{sCNT}, {SPIN}
s_cbranch_scc1 {ok}
s_cmp_lg_u64 vcc, 0
s_cbranch_scc1 {slow}_l
s_branch {ok}
'''
        a.cold.append(s)
    yield sitem(tag + 'w')
    yield ('raw', chk, 4)
    yield sitem(tag + 'ok')
    for j in range(6, -1, -1):
        yield from cfma(G[j], G[j] + 2, C + c256r, C + c256i, G[j + 1], G[j + 1] + 2)
    g0, g1 = G[0], G[1]
    yield ('v', f'v_mov_b32 v{g1}, v{g0}')
    yield ('v', f'v_mov_b32 v{g1+2}, v{g0+2}')
    yield ('s', f's_lshl_b32 s{sT0}, s{sD}, 13')
    yield ('s', f's_add_u32 s{sT0}, s{sT0}, s{sHB}')
    yield ('v', f'v_permlane32_swap_b32 v{g0}, v{g1}')
    yield ('v', f'v_permlane32_swap_b32 v{g0+2}, v{g1+2}')
    yield ('s', 's_nop 0')
    yield ('s', f's_add_u32 s{sT1}, s{sT0}, 4096')
    yield from cfma(g0, g0 + 2, C + c128r, C + c128i, g1, g1 + 2)
    yield from cfma(C + cPr, C + cPi, C + cqr, C + cqi, g0, g0 + 2)
    yield ('v', f'v_mul_f32 v{g0}, v{C+cP}, v{C+cPr}')
    yield ('v', f'v_mul_f32 v{g0+1}, v{C+cQn}, v{C+cPr}')
    yield ('v', f'v_fmac_f32 v{g0}, v{C+cQn}, v{C+cPi}')
    yield ('v', f'v_fmac_f32 v{g0+1}, v{C+cnP}, v{C+cPi}')
    an = ren(acc, spare)
    pr, pi = g0, g0 + 1
    for r in range(16):
        ar, br = an[r], acc + 16 + r
        yield ('v', f'v_fmac_f32 v{ar}, v{C+cLr}, v{pr}')
        yield ('v', f'v_fmac_f32 v{br}, v{C+cLr}, v{pi}')
        yield ('v', f'v_fmac_f32 v{ar}, v{C+cLi}, v{pi}')
        yield ('v', f'v_fmac_f32 v{br}, v{C+cnLi}, v{pr}')
        pr, pi = ar, br
    for comp in range(2):
        src = an if comp == 0 else [acc + 16 + r for r in range(16)]
        for k in range(8):
            yield ('v', f'v_cvt_pk_bf16_f32 v{G[2*comp+(k>>2)]+(k&3)}, v{src[2*k]}, v{src[2*k+1]}')
        yield ('lds', f'ds_write_b128 v{vTW}, {V(G[2*comp],4)}', tag + f'tw{comp}a')
        yield ('lds', f'ds_write_b128 v{vTW}, {V(G[2*comp+1],4)} offset:16', tag + f'tw{comp}b')
        yield ('delay', 0)
        for h2 in range(2):
            for e in range(2):
                d = G[4 + 2 * comp + h2] + 2 * e
                yield ('lds', f'ds_read_b64_tr_b16 v[{d}:{d+1}], v{vTR} offset:{h2*32+e*320}', tag + f'tr{comp}{h2}{e}')
            yield ('delay', 0)
    yield ('delay', 4)
    yield ('wl', tag + 'tr111')
    for comp in range(2):
        for h2 in range(2):
            yield ('vm', f'buffer_store_dwordx4 {V(G[4+2*comp+h2],4)}, v{vL16}, s[{SH}:{SH+3}], s{sT0+comp} offen offset:{h2*1024} sc1', 'lastH')
            yield ('delay', 0)

def f_epiq(acc, kbase):
    yield ('s', f's_lshl_b32 s{sXO}, s{sSL}, 13')
    yield ('s', f's_add_u32 s{sXO}, s{sXO}, s{sHB}')
    yield ('s', f's_add_u32 s{sXO}, s{sXO}, {4096*kbase}')
    g = lambda e: acc + 32 * (e >> 4) + (e & 15)
    for n in range(32 + 4):
        if n < 32: yield ('v', f'v_mul_f32 v{g(n)}, v{vC1}, v{g(n)}')
        if 0 <= n - 1 < 32: yield ('t', f'v_exp_f32 v{g(n-1)}, v{g(n-1)}')
        if 0 <= n - 2 < 32: yield ('v', f'v_fma_f32 v{g(n-2)}, v{g(n-2)}, v{vS}, v{vS}')
        if 0 <= n - 3 < 32: yield ('t', f'v_rcp_f32 v{g(n-3)}, v{g(n-3)}')
        e = n - 4
        if n >= 34: yield ('s', 's_nop 0')
        if 0 <= e < 32:
            yield ('v', f'v_mul_f32 v{g(e)}, v{g(e)}, v{g(e)+16}')
            if e & 1:
                U = acc + 32 * (e >> 4) + 16; c = (e >> 3) & 1
                yield ('v', f'v_cvt_pk_bf16_f32 v{U+8*c+((e&7)>>1)}, v{g(e-1)}, v{g(e)}')
                if (e & 7) == 7:
                    yield ('vm', f'buffer_store_dwordx4 v[{U+8*c}:{U+8*c+3}], v{vHG}, s[{SW}:{SW+3}], s{sXO} offen offset:{512*c} sc1', 'lastH')
                    if e == 15: yield ('s', f's_add_u32 s{sXO}, s{sXO}, 4096')

def f_publish(level, delay):
    yield sitem(f'st{level}')
    yield ('after', delay, [sitem(f'ak{level}'), ('wv', 'lastH'), ('vm', f'buffer_store_dword v{vT}, v{vFP}, s[{SF}:{SF+3}], 0 offen offset:{128*level} sc1', None), sitem(f'pub{level}'), ('mark', f'pub{level}')])

def poll_load(dst, vaddr, off, n=1):
    x = '' if n == 1 else f'x{n}'
    return f'buffer_load_dword{x} {V(dst,n)}, v{vaddr}, s[{SF}:{SF+3}], 0 offen offset:{off} sc1'
def poll_check(dst, vaddr, off, need, n=1):
    def cmp_txt():
        s = ''
        if n > 1:
            s += f'v_xor_b32 v{dst}, v{dst}, v{vT}\n'
            for k in range(1, n): s += f'v_bitop3_b32 v{dst}, v{dst}, v{dst+k}, v{vT} bitop3:0xf6\n'
            s += f'v_cmp_ne_u32 vcc, 0, v{dst}\n'
        else: s += f'v_cmp_ne_u32 vcc, v{dst}, v{vT}\n'
        s += 's_nop 1\n'
        s += f's_and_b64 s[{sTP}:{sTP+1}], vcc, s[{need}:{need+1}]\n' if need else 's_cmp_lg_u64 vcc, 0\n'
        return s
    def chk(a):
        slow = a.newlabel('slow'); ok = a.newlabel('ok')
        a.e(cmp_txt() + f's_cbranch_scc1 {slow}')
        a.label(ok)
        a.cold.append(f'''{slow}:
s_mov_b32 s{sCNT}, 0
{slow}_l:
s_add_u32 s{sCNT}, s{sCNT}, 1
s_cmp_gt_u32 s{sCNT}, {SPIN}
s_cbranch_scc1 {ok}
s_sleep {SLEEP[0]}
{poll_load(dst, vaddr, off, n)}
s_waitcnt vmcnt(0)
{cmp_txt()}s_cbranch_scc1 {slow}_l
s_branch {ok}
''')
    return chk

class Sched:
    def __init__(self, a):
        self.a = a; self.keys = {}
        self.stream = None; self.pend = None; self.delay = 0; self.blocked = False
        self.timers = []; self.barq = []; self.maxlds = 2
    def tick(self, force=False):
        used = 0
        for tm in list(self.timers):
            if len(tm) > 2 and not tm[2]() and not force: continue
            tm[0] -= 1
            if tm[0] <= 0 or force:
                self.timers.remove(tm)
                for it in tm[1]: used += self.emit_item(it)
        return used
    def add(self, gen):
        self.stream = gen if self.stream is None else chain(self.stream, gen)
    def push(self, gen):
        rest = ([self.pend] if self.pend is not None else [])
        self.pend = None; self.delay = 0
        self.stream = chain(gen, rest, self.stream if self.stream is not None else [])
    def peek(self):
        if self.pend is None and self.stream is not None:
            self.pend = next(self.stream, None)
            if self.pend is None: self.stream = None
        return self.pend
    def emit_item(self, it):
        a = self.a; k = it[0]
        if k in ('v', 's'): a.e(it[1]); return 1
        if k == 'm': a.e(it[1]); return 2
        if k == 't': a.e(it[1]); return 2
        if k == 'lds': self.keys[it[2]] = a.lds(it[1]); return 1
        if k == 'vm': self.keys[it[2]] = a.vm(it[1]); return 1
        if k == 'wl': return 1 if a.wait(lg=self.keys[it[1]]) else 0
        if k == 'wv': return 1 if a.wait(vm=self.keys[it[1]]) else 0
        if k == 'raw': it[1](a); return it[2]
        if k == 'forcebar': a.e('s_barrier'); return 1
        if k == 'call': it[1](); return 0
        if k == 'after':
            its = [((x[0] + 'i', self.keys[x[1]]) if x[0] in ('wv', 'wl') else x) for x in it[2]]
            self.timers.append([it[1], its]); return 0
        if k == 'when': self.timers.append([it[2], it[3], it[1]]); return 0
        if k == 'wvi': return 1 if a.wait(vm=it[1]) else 0
        if k == 'wli': return 1 if a.wait(lg=it[1]) else 0
        if k == 'onbar': self.barq.append(it[1]); return 0
        if k == 'flush': return self.tick(True)
        if k == 'mark': self.keys[it[1]] = True; return 0
        if k == 'req': assert self.keys.get(it[1]), it[1]; return 0
        raise ValueError(k)
    def head_vm(self):
        return self.delay <= 0 and not self.blocked and self.peek() is not None and self.pend[0] == 'vm'
    def fill(self, budget, vm_ok=True):
        budget -= self.tick()
        if self.delay > 0: self.delay -= 1; return
        if budget <= 0: return
        used = 0; valu_seen = False; self.nl = 0
        while not self.blocked:
            it = self.peek()
            if it is None: return
            k = it[0]
            if k == 'delay': self.delay = it[1]; self.pend = None; return
            if k == 'needbar': self.blocked = True; self.pend = None; return
            if k == 'until':
                if not it[1](): return
                self.pend = None; continue
            if k in ('lds', 'vm') and valu_seen: return
            if k == 'vm':
                if not vm_ok: return
                vm_ok = False
            if k == 'lds':
                nl = getattr(self, 'nl', 0)
                if nl >= self.maxlds: return
                self.nl = nl + 1
            cost = 2 if k in ('t', 'm') else it[2] if k == 'raw' else 1 if k in ('v', 's', 'lds', 'vm', 'wl', 'wv', 'forcebar') else 0
            if used + cost > budget and (used > 0 or (k == 't' and budget < 2)): return
            self.pend = None
            used += self.emit_item(it)
            if k in ('v', 't', 'raw'): valu_seen = True
    def on_barrier(self):
        self.blocked = False
        q = self.barq; self.barq = []
        for its in q:
            for it in its: self.emit_item(it)
    def drain(self, every=None):
        n = 0
        while True:
            if self.blocked:
                self.a.e('s_barrier'); self.blocked = False
            it = self.peek()
            if it is None: return
            self.pend = None
            if it[0] in ('delay', 'until'): continue
            if it[0] == 'needbar': self.blocked = True; continue
            c = self.emit_item(it); n += c
            self.acc = getattr(self, 'acc', 0) + c
            if self.acc >= 6: self.acc = 0; self.tick()
            if every and n >= every[0]:
                n = 0; every[1]()

def P(r): return f'v[{r}:{r+1}]'

def kernel(cfg):
    a = Asm(); a.cold = []
    a.is_big_store = lambda ln: 'store_dwordx4' in ln
    name = KNAME
    ntx = ' nt' if cfg.get('ntx') else ''
    ntw = ' nt' if cfg.get('ntw') else ''
    a.e(f'.globl {name}\n.p2align 8\n.type {name},@function')
    a.label(name)
    a.e(f's_cmp_ge_u32 s2, 256\ns_cbranch_scc1 L_end')
    if cfg.get('dbg') or ENC[0] or STAMP[0]: a.e('s_memrealtime s[100:101]')
    a.e('''s_load_dwordx16 s[16:31], s[0:1], 0
s_load_dwordx16 s[32:47], s[0:1], 64
v_lshrrev_b32 v2, 6, v0
v_and_b32 v1, 63, v0
v_readfirstlane_b32 s3, v2''')
    if cfg.get('scr'):
        a.e('s_lshr_b32 s10, s2, 3\ns_lshl_b32 s11, s2, 5\ns_or_b32 s2, s10, s11\ns_and_b32 s2, s2, 255')
    a.e('s_and_b32 s10, s2, 7\ns_lshr_b32 s11, s2, 3')
    mp = cfg['k1map']
    lgr = {'T': 1, 'P': 2, 'R': 3, 'S': 4}[mp]
    lx = 4 - lgr
    ls = 3 - lx
    sSH = 15
    a.e(f'''s_lshr_b32 s{sSH}, s11, {5-lgr}
s_lshr_b32 s{sRB}, s10, {ls}
s_lshl_b32 s{sRB}, s{sRB}, {lgr}
s_add_u32 s{sRB}, s{sRB}, s{sSH}
s_and_b32 s{sSL}, s11, {(32>>lgr)-1}
s_lshl_b32 s{sSL}, s{sSL}, {ls}
s_and_b32 s12, s10, {(1<<ls)-1}
s_add_u32 s{sSL}, s{sSL}, s12
s_lshl_b32 s10, s{sSL}, 1
s_sub_u32 s11, s10, 12
s_min_u32 s13, s{sSL}, 9
s_cmp_ge_u32 s{sSL}, 11
s_cselect_b32 s{sD1}, s11, s13''')
    RT = 192
    vRTR, vRTL, vRS, vSG = 208, 209, 95, 210
    GA = 212
    vRX = [252, 253, 254, 255]
    XV, XR, DV = 96, 116, 148
    CQ, CD = 148, 168
    tl = 128
    vJ, vPI, vXA, vSTA, vCDS, vPAR, vZ, vTQ = range(tl + 8, tl + 16)
    vCQA, vCQS, vCL = 248, 249, 250
    sU, sKS, sCG, sRO, sRLO, sRST = 84, 85, 86, 87, 40, 41
    sCQL, sCQS, sCDL, sCDS = 89, 90, 91, 92
    sCL, sCS = 0, 1
    t = tl
    a.e(f'''v_lshrrev_b32 v{t}, 3, v1
v_and_b32 v{t+1}, 7, v1
v_lshrrev_b32 v{t+2}, 1, v{t}
v_xor_b32 v{t+3}, v{t+1}, v{t+2}
v_lshlrev_b32 v{t+3}, 4, v{t+3}
v_and_b32 v{t+4}, 3, v{t}
v_lshrrev_b32 v{t+5}, 2, v{t}
v_lshl_add_u32 v{t+4}, v{t+5}, 4, v{t+4}
v_mul_u32_u24 v{t+4}, 1280, v{t+4}
v_add_u32 v{vD[0]}, v{t+4}, v{t+3}
v_xor_b32 v{vD[1]}, 64, v{vD[0]}
v_add_u32 v{vD[1]}, 4096, v{vD[1]}
v_add_u32 v{vD[2]}, 8192, v{vD[0]}
v_add_u32 v{vD[3]}, 8192, v{vD[1]}
s_lshl_b32 s{sM0B}, s3, 12
s_lshr_b32 s14, s3, 1
s_lshl_b32 s15, s14, 7
s_mul_i32 s{sCDL}, s{sD1}, 40960
s_add_u32 s{sDOFF1}, s{sCDL}, s15
s_lshl_b32 s{sXO}, s{sRB}, 2
s_add_u32 s{sXO}, s{sXO}, s3
s_mul_i32 s{sXO}, s{sXO}, 40960
v_and_b32 v{vJ}, 31, v1
s_lshl_b32 s12, s{sRB}, 6
s_lshl_b32 s11, s{sSL}, 2
s_add_u32 s12, s12, s11
s_add_u32 s12, s12, s3
v_lshl_add_u32 v{vSTA}, s12, 1, v{t+5}
v_mul_u32_u24 v{vXA}, 1280, v{vSTA}
v_lshl_add_u32 v{vXA}, v{vJ}, 3, v{vXA}
v_mov_b32 v{vZ}, {NONCE_OFF}''')
    A_ = Asm()
    a_main = a
    a = A_
    a.e(f'''s_add_u32 s{sD2}, s{sD1}, 1
s_bfe_u32 s{sRBP}, s2, 0x20001
s_lshl_b32 s{sRBP}, s{sRBP}, 2
s_lshr_b32 s14, s2, 6
s_add_u32 s{sRBP}, s{sRBP}, s14
s_bfe_u32 s{sNB}, s2, 0x30003
v_lshlrev_b32 v{t+3}, 3, v{vSTA}
v_add_u32 v{t+3}, {STAT_OFF}, v{t+3}
v_cmp_eq_u32 vcc, 0, v{vJ}
v_mov_b32 v{vSTA}, {OOB}
v_lshlrev_b32 v{vL16}, 4, v1
v_cndmask_b32 v{vSTA}, v{vSTA}, v{t+3}, vcc
v_mul_u32_u24 v{t+4}, 1280, v{t}
v_lshl_add_u32 v{vRTL}, v{t+1}, 4, v{t+4}
v_and_b32 v{t+2}, 1, v{t+2}
v_lshlrev_b32 v{t+2}, 2, v{t+2}
v_xor_b32 v{t+3}, v{t+1}, v{t+2}
v_lshlrev_b32 v{t+3}, 4, v{t+3}
v_mul_u32_u24 v{t+4}, 3456, v{t}
v_add_u32 v{vQ[0]}, v{t+4}, v{t+3}
v_add_u32 v{vQ[1]}, {8*3456-1024}, v{vQ[0]}
v_lshl_add_u32 v{vCQA}, v{t+1}, 4, v{t+4}
s_lshr_b32 s14, s3, 1
s_lshl_b32 s15, s14, 7
s_add_u32 s{sDOFF2}, s{sCDL}, s15
s_add_u32 s{sDOFF2}, s{sDOFF2}, 40960
s_lshl_b32 s{sCDS}, s{sRB}, 1
s_add_u32 s{sCDS}, s{sCDS}, s14
s_bfe_u32 s14, s{sCDS}, 0x10002
s_lshl_b32 s14, s14, 4
s_and_b32 s15, s{sCDS}, 3
s_add_u32 s14, s14, s15
s_lshr_b32 s15, s{sCDS}, 3
s_lshl_b32 s15, s15, 2
s_add_u32 s14, s14, s15
s_mul_i32 s14, s14, 1280
s_add_u32 s{sCDL}, s{sCDL}, s14
s_lshl_b32 s{sCDS}, s{sCDS}, 4
s_lshl_b32 s14, s{sD1}, 1
s_add_u32 s14, s14, 108
s_and_b32 s15, s3, 1
s_add_u32 s14, s14, s15
s_lshl_b32 s14, s14, 10
s_add_u32 s{sCDS}, s{sCDS}, s14
s_mul_i32 s14, s3, {16*3456}
s_lshl_b32 s{sQOFF1}, s{sSL}, 7
s_add_u32 s{sQOFF1}, s{sQOFF1}, s14
s_add_u32 s{sQOFF2}, s{sQOFF1}, 2048''')
    assert CS_OFF == 0
    a.e(f'''s_lshr_b32 s14, s{sRB}, 3
s_lshl_b32 s14, s14, 4
s_add_u32 s14, s14, s{sSL}
s_and_b32 s15, s{sRB}, 3
s_lshl_b32 s{sCQL}, s15, 2
s_add_u32 s{sCQL}, s{sCQL}, s3
s_mul_i32 s{sCQL}, s{sCQL}, {40*3456}
s_lshl_b32 s{sCQS}, s14, 7
s_add_u32 s{sCQL}, s{sCQL}, s{sCQS}
s_lshl_b32 s{sCQS}, s14, 12
s_cmp_ge_u32 s14, 27
s_cselect_b32 s14, {OOB}, 0
s_add_u32 s{sCQL}, s{sCQL}, s14
s_cmp_lg_u32 s3, 0
s_cselect_b32 s14, {OOB}, s14
s_add_u32 s{sCQS}, s{sCQS}, s14
s_bfe_u32 s14, s{sRB}, 0x10002
s_lshl_b32 s14, s14, 10
s_add_u32 s{sCQS}, s{sCQS}, s14
s_lshr_b32 s14, s15, 1
s_lshl_b32 s14, s14, 9
s_add_u32 s{sCQS}, s{sCQS}, s14
s_and_b32 s14, s15, 1
s_lshl_b32 s14, s14, 3
s_add_u32 s{sCQS}, s{sCQS}, s14
v_and_b32 v{t+2}, 3, v1
v_lshl_add_u32 v{t+2}, v{t+2}, 3, v{t}
v_lshlrev_b32 v{t+2}, 4, v{t+2}
v_bfe_u32 v{t+3}, v1, 2, 1
v_lshl_add_u32 v{vCQS}, v{t+3}, 11, v{t+2}
v_lshrrev_b32 v{t+2}, 5, v1
v_lshlrev_b32 v{t+2}, 9, v{t+2}
v_bfe_u32 v{t+3}, v1, 4, 1
v_lshl_add_u32 v{t+2}, v{t+3}, 3, v{t+2}
v_and_b32 v{t+3}, 15, v1
v_cmp_eq_u32 vcc, 0, v{t+3}
v_mov_b32 v{vCDS}, {OOB}
v_lshlrev_b32 v{vCL}, 2, v1
v_cndmask_b32 v{vCDS}, v{vCDS}, v{t+2}, vcc
v_bfe_u32 v{t}, v1, 2, 1
v_bfe_u32 v{t+1}, v1, 3, 2
v_and_b32 v{vPI}, 3, v1
v_lshl_add_u32 v{vPI}, v{t}, 4, v{vPI}
v_lshl_add_u32 v{vPI}, v{t+1}, 2, v{vPI}
v_lshlrev_b32 v{vPAR}, 1, v{vPI}
v_lshlrev_b32 v{vSG}, 3, v{vPI}
v_mul_u32_u24 v{vTW}, 80, v{vPI}
v_lshrrev_b32 v{t}, 2, v1
v_and_b32 v{t+1}, 3, v1
v_lshlrev_b32 v{t+1}, 2, v{t+1}
v_lshl_add_u32 v{t}, v{t}, 9, v{t+1}
s_lshl_b32 s14, s{sRBP}, 13
v_add_u32 v2, s14, v{t}
s_lshl_b32 s14, s{sRB}, 13
s_lshl_b32 s15, s{sSL}, 9
s_add_u32 s14, s14, s15
s_lshl_b32 s15, s3, 2
s_add_u32 s14, s14, s15
v_mov_b32 v{vFP}, {OOB}
v_writelane_b32 v{vFP}, s14, 0''')
    vFL2 = 2
    a.e(f'''v_lshrrev_b32 v{t}, 5, v1
v_bfe_u32 v{t+1}, v1, 2, 2
v_lshl_add_u32 v{t}, v{t}, 3, v{t+1}
v_lshlrev_b32 v{t}, 7, v{t}
v_bfe_u32 v{t+1}, v1, 3, 1
v_lshl_add_u32 v{t}, v{t+1}, 6, v{t}
v_bfe_u32 v{t+1}, v1, 4, 1
v_lshl_add_u32 v{t}, v{t+1}, 5, v{t}
v_and_b32 v{t+1}, 3, v1
v_lshl_add_u32 v{vRQ[0][0]}, v{t+1}, 3, v{t}
v_xor_b32 v{vRQ[1][0]}, 64, v{vRQ[0][0]}''')
    for jh in range(2):
        for wn in (1, 2): a.e(f'v_add_u32 v{vRQ[jh][wn]}, {65536*wn}, v{vRQ[jh][0]}')
    a.e(f'''v_bfe_u32 v{t}, v1, 1, 3
v_lshrrev_b32 v{t+1}, 5, v1
v_xor_b32 v{t}, v{t}, v{t+1}
v_lshlrev_b32 v{t}, 4, v{t}
v_lshl_add_u32 v{vRD[0]}, v{vJ}, 7, v{t}
v_xor_b32 v{vRD[1]}, 32, v{vRD[0]}
v_xor_b32 v{vRD[2]}, 64, v{vRD[0]}
v_xor_b32 v{vRD[3]}, 96, v{vRD[0]}
s_add_u32 s14, s{sM0B}, {5*16384}''')
    for k in range(4): a.e(f'v_add_u32 v{vRX[k]}, s14, v{vRD[k]}')
    a.srd(SG, P_WG, 640 * 3456); a.srd(SU, P_WU, 640 * 3456 + 2048, add=-2048)
    a.srd(SF, P_WS, 262144, add=FLG_OFF)
    a = a_main
    a.e('s_waitcnt lgkmcnt(0)')
    if ENC[0]: a.e('v_writelane_b32 v0, s100, 0\nv_writelane_b32 v0, s100, 1')
    if STAMP[0]: SNAMES.append('rt0'); a.e('v_writelane_b32 v0, s100, 0')
    stamp(a, 't0'); stamp(a, 'ka')
    def dbg(i):
        if cfg.get('dbg'):
            a.e('s_memrealtime s[0:1]'); a.wait_all(vm=False); a.e(f's_sub_u32 s0, s0, s100\nv_writelane_b32 v0, s0, {i}')
    if cfg.get('dbg'): a.e(f'v_mov_b32 v0, 0\ns_mov_b32 s101, s{P_DBG}\nv_writelane_b32 v0, s{P_DBG+1}, 63')
    dbg(0)

    stage_last = {}
    st = dict(dwin=0, rid={}, bar=-1, xdone=-1, G=0)
    K = {}
    cur = {}
    SLOT = [0, 1, 2, 3, 4, 0, 1, 7, 8, 2, 5, 3, 4, 0, 1, 7, 8, 6, 2, 5, 3, 4, 0, 1, 7]
    while len(SLOT) < 25: SLOT.append(SLOT[len(SLOT) - 9])
    RSLOT = 6
    xlast = {}
    def job(kind, n):
        if kind == 'X':
            slot = 5 + (n & 3)
            ready = lambda: n < 4 or st['xdone'] >= n - 4
        elif kind == 'R':
            slot = RSLOT
            ready = lambda: st['xdone'] >= 9
        else:
            slot = SLOT[n]
            prev = [m for m in range(n) if SLOT[m] == slot]
            if prev: ready = lambda: st['bar'] >= prev[-1] + 2
            elif slot == RSLOT: ready = lambda: st.get('rtread')
            elif slot >= 5: ready = lambda: st['xdone'] >= max(c for c in range(10) if 5 + (c & 3) == slot)
            else: ready = lambda: True
        out = []
        for j in range(4):
            def th(j=j):
                if j == 0:
                    a.e(f's_add_u32 m0, s{sM0B}, {slot*16384}')
                    if kind == 'S':
                        k2, soff = cur['stages'][n]
                        first = n == 0 or cur['stages'][n - 1] != cur['stages'][n]
                        a.e('s_nop 0' if first else f's_add_u32 s{soff}, s{soff}, {256 if k2=="D" else 64*3456}')
                    elif kind == 'X': a.e('s_nop 0' if n == 0 else f's_add_u32 s{sXO}, s{sXO}, 128')
                    else: a.e('s_nop 0')
                if kind == 'X':
                    xlast[n] = a.vm(f'buffer_load_dwordx4 v{vD[j]}, s[{SP}:{SP+3}], s{sXO} offen offset:{1024*j} lds')
                    if n == 9 and j == 3: st['xiss'] = True
                elif kind == 'R':
                    K['rt'] = a.vm(f'buffer_load_dwordx4 v{vRTL}, s[{SR}:{SR+3}], s{sRLO} offen offset:{1024*j}{ntx} lds')
                    if j < 3: a.e(f's_add_u32 s{sRLO}, s{sRLO}, s{sRST}')
                    else: st['riss'] = True
                else:
                    k2, soff = cur['stages'][n]
                    if k2 == 'D': i = a.vm(f'buffer_load_dwordx4 v{vD[j]}, s[{SB}:{SB+3}], s{soff} offen offset:{1024*j} lds')
                    else:
                        srd = SG if j < 2 else SU
                        i = a.vm(f'buffer_load_dwordx4 v{vQ[j&1]}, s[{srd}:{srd+3}], s{soff} offen offset:{1024*j} lds')
                    if j == 3: stage_last[n] = i
            th.kind = kind; th.stage = n; th.ready = ready if j == 0 else (lambda: True)
            out.append(th)
        return out
    dmaq = []
    def make_jobs(nst):
        seq = []
        for n in range(5): seq += [('S', n), ('X', 2 * n), ('X', 2 * n + 1)]
        seq += [('S', n) for n in range(5, nst)]
        seq.insert(cfg.get('rpos', 18), ('R', 0))
        for kd, n in seq: dmaq.extend(job(kd, n))
    def step_i():
        a.srd(SP, P_X, 2621440)
        a.e(f's_and_b32 s14, s3, 1\ns_cselect_b32 s{SB}, s{P_BIM}, s{P_BRE}\ns_cselect_b32 s{SB+1}, s{P_BIM+1}, s{P_BRE+1}\ns_mov_b32 s{SB+2}, 819200\ns_mov_b32 s{SB+3}, 0x00020000')
    def step_x():
        K['x'] = [a.vm(f'buffer_load_dwordx2 v[{XR+2*n}:{XR+2*n+1}], v{vXA}, s[{SP}:{SP+3}], 0 offen offset:{256*n}') for n in range(5)][-1]
        a.srd(SW, P_WS, WS_BYTES)
        K['n'] = a.vm(f'buffer_load_dword v{vT}, v{vZ}, s[{SW}:{SW+3}], 0 offen sc1')
    def step_a1():
        a.lines.extend(A_.lines)
    def step_pf():
        lab = 'L_typeA' if cur['typ'] == 'A' else 'L_typeB'
        here = a.newlabel('pf')
        n = cfg.get('pfn', 1)
        a.e(f's_getpc_b64 s[14:15]')
        a.label(here)
        a.e(f'''s_lshr_b32 s{sT0}, s2, 3
s_and_b32 s{sT0}, s{sT0}, {cfg.get('pfmask', 0)}
s_lshl_b32 s{sT0}, s{sT0}, 2
s_add_u32 s{sT0}, s{sT0}, s3
s_mul_i32 s{sT0}, s{sT0}, {cfg.get('pfl', 64) * 128}
v_lshlrev_b32 v{tl+6}, 7, v1
v_add_u32 v{tl+6}, s{sT0}, v{tl+6}
v_min_u32 v{tl+6}, {cfg.get('pfmax', 28000)}, v{tl+6}
v_and_b32 v{tl+6}, -4, v{tl+6}''')
        if cfg.get('pfl', 64) < 64: a.e(f's_mov_b64 exec, {(1 << cfg["pfl"]) - 1}')
        a.vm(f'global_load_dword v251, v{tl+6}, s[14:15]')
        if cfg.get('pfl', 64) < 64: a.e('s_mov_b64 exec, -1')
    def step_cd():
        for k in range(1 if cur['typ'] == 'A' else 2):
            if k: a.e(f's_add_u32 s{sCDL}, s{sCDL}, 40960')
            a.vm(f'buffer_load_dwordx4 {V(CD+6*k,4)}, v{vL16}, s[{SB}:{SB+3}], s{sCDL} offen')
            K['cd'] = a.vm(f'buffer_load_dword v{CD+6*k+4}, v{vCL}, s[{SB}:{SB+3}], s{sCDL} offen offset:1024')
    def step_cq():
        a.e(f's_bitcmp1_b32 s{sRB}, 2\ns_cselect_b32 s{SH}, s{P_WU}, s{P_WG}\ns_cselect_b32 s{SH+1}, s{P_WU+1}, s{P_WG+1}\ns_mov_b32 s{SH+2}, {640*3456}\ns_mov_b32 s{SH+3}, 0x00020000')
        a.e(f's_mov_b32 s{sCL}, s{sCQL}\ns_mov_b32 s{sCS}, s{sCQS}')
    def step_cl():
        for n in range(5):
            K[f'cl{n}'] = a.vm(f'buffer_load_dwordx4 {V(CQ+4*n,4)}, v{vCQA}, s[{SH}:{SH+3}], s{sCL} offen')
            if n < 4: a.e(f's_add_u32 s{sCL}, s{sCL}, {8*3456}')
        K['cqiss'] = True
    def step_tq():
        a.e(f'v_mul_u32_u24 v{vTQ}, 3456, v1\nv_cmp_gt_u32 vcc, 40, v1\nv_mov_b32 v{tl+6}, {OOB}\ns_nop 0\nv_cndmask_b32 v{vTQ}, v{tl+6}, v{vTQ}, vcc')
        a.vm(f'buffer_load_dword v251, v{vTQ}, s[{SH}:{SH+3}], s{sCL} offen')
    def split_t(d, v, tt):
        return f'v_cvt_pk_bf16_f32 v{tt}, v{v}, v{v}\nv_lshlrev_b32 v{tt}, 16, v{tt}\nv_sub_f32 v{v}, v{v}, v{tt}\nv_cvt_pk_bf16_f32 v{d}, v{tt}, v{v}\n'
    def cq_loads(c, d0, gap):
        for n in range(5):
            its = [('vm', f'buffer_load_dwordx4 {V(CQ+4*n,4)}, v{vCQA}, s[{SH}:{SH+3}], s{sCL} offen', f'cl{n}')]
            its += [('s', f's_add_u32 s{sCL}, s{sCL}, {8*3456}')] if n < 4 else [('mark', 'cqiss')]
            yield ('when', c, d0 + gap * n, its)
    def qq_stream():
        A8 = 232; U8 = 240
        for n in range(5):
            yield ('wv', f'cl{n}')
            for e in range(4):
                dst = A8 + 2 * e if n == 0 else U8 + 2 * (e & 1)
                yield ('v', f'v_lshlrev_b32 v{dst}, 16, v{CQ+4*n+e}')
                yield ('v', f'v_and_b32 v{dst+1}, 0xffff0000, v{CQ+4*n+e}')
                if n:
                    yield ('v', f'v_add_f32 v{A8+2*e}, v{A8+2*e}, v{dst}')
                    yield ('v', f'v_add_f32 v{A8+2*e+1}, v{A8+2*e+1}, v{dst+1}')
        yield from items(f'''s_lshl_b32 s{sCL}, s3, 8
v_add_u32 v{vCL}, {CSL}, v{vCL}
v_add_u32 v{U8}, s{sCL}, v{vCL}''')
        for c in range(4): yield ('v', f'v_permlane32_swap_b32 v{A8+c}, v{A8+c+4}')
        for c in range(4): yield ('v', f'v_add_f32 v{A8+c}, v{A8+c}, v{A8+c+4}')
        yield ('s', f's_mov_b32 s{sTP}, 0xff00ff00')
        for c in range(2): yield ('v', f'v_permlane16_swap_b32 v{A8+c}, v{A8+c+2}')
        for c in range(2): yield ('v', f'v_add_f32 v{A8+c}, v{A8+c}, v{A8+c+2}')
        yield ('s', f's_mov_b32 s{sTP+1}, s{sTP}')
        for c in range(2): yield ('v', f'v_add_f32_dpp v{A8+c}, v{A8+c}, v{A8+c} row_ror:8 row_mask:0xf bank_mask:0xf')
        yield ('v', f'v_cndmask_b32 v{A8}, v{A8}, v{A8+1}, s[{sTP}:{sTP+1}]')
        yield ('lds', f'ds_write_b32 v{U8}, v{A8}', 'cw')
        rest = [('lds', f'ds_read_b32 v{A8+k}, v{vCL} offset:{256*k}', 'cr') for k in range(4)]
        fin = list(items(f'v_add_f32 v{A8}, v{A8}, v{A8+1}\nv_add_f32 v{A8+2}, v{A8+2}, v{A8+3}\nv_add_f32 v{A8+2}, v{A8}, v{A8+2}\n' + split_t(A8, A8 + 2, A8 + 3) + f'v_mov_b32 v{A8+1}, v{vT}'))
        fin += [('vm', f'buffer_store_dwordx2 {P(A8)}, v{vCQS}, s[{SW}:{SW+3}], s{sCS} offen sc1', None), ('mark', 'qqst'), sitem('qq')]
        yield ('after', 3, [('wl', 'cw'), ('onbar', rest + [('after', 4, [('wl', 'cr')] + fin)])])
    def split(d, v, tt):
        a.e(f'v_cvt_pk_bf16_f32 v{tt}, v{v}, v{v}\nv_lshlrev_b32 v{tt}, 16, v{tt}\nv_sub_f32 v{v}, v{v}, v{tt}\nv_cvt_pk_bf16_f32 v{d}, v{tt}, v{v}')
    def tag_ready():
        if not st.get('tag'):
            a.wait(vm=K['n'])
            a.e(f'v_add_u32 v{vT}, {GOLD}, v{vT}\nv_and_b32 v{vT}, 0xbfffbfff, v{vT}'); st['tag'] = True
    def step_dd():
        tag_ready()
        a.wait(vm=K['cd'])
        nk = 1 if cur['typ'] == 'A' else 2
        a.e('s_mov_b32 s14, 0x3f803f80')
        for k in range(nk): a.e(f'v_dot2_f32_bf16 v{CD+6*k+5}, v{CD+6*k}, s14, 0')
        for e in range(1, 5):
            for k in range(nk): a.e(f'v_dot2_f32_bf16 v{CD+6*k+5}, v{CD+6*k+e}, s14, v{CD+6*k+5}')
        a.e('s_nop 1')
        for r in (8, 4, 2, 1):
            a.e('s_nop 1')
            for k in range(nk): a.e(f'v_add_f32_dpp v{CD+6*k+5}, v{CD+6*k+5}, v{CD+6*k+5} row_ror:{r} row_mask:0xf bank_mask:0xf')
        for k in range(nk):
            split(CD + 6 * k, CD + 6 * k + 5, CD + 6 * k + 2)
            a.e(f'v_mov_b32 v{CD+6*k+1}, v{vT}')
            K['p0st'] = a.vm(f'buffer_store_dwordx2 {P(CD+6*k)}, v{vCDS}, s[{SW}:{SW+3}], s{sCDS} offen offset:{2048*k} sc1')
    def step_par():
        a.e(f's_lshl_b32 s14, s{sD1}, 6')
        for i, p in enumerate((P_LRE, P_LIM, P_LDT)):
            a.srd(SH, p, 1280)
            K['par'] = a.vm(f'buffer_load_ushort v{TMP+i}, v{vPAR}, s[{SH}:{SH+3}], s14 offen')
            if cur['typ'] == 'B': K['par'] = a.vm(f'buffer_load_ushort v{TMP+4+i}, v{vPAR}, s[{SH}:{SH+3}], s14 offen offset:64')
    def step_rta():
        Lc, Ld = a.newlabel('rt_c'), a.newlabel('rt_done')
        a.e(f's_lshl_b32 s{sU}, s2, 2\ns_add_u32 s{sU}, s{sU}, s3\ns_cmp_ge_u32 s{sU}, 540\ns_cbranch_scc1 {Lc}')
        a.sdiv(sKS, sU, 10, 540)
        a.e(f's_mul_i32 s{sCG}, s{sKS}, 10\ns_sub_u32 s{sCG}, s{sU}, s{sCG}')
        a.srd(SR, P_WD, 1728 * 1280)
        a.e(f'''s_mul_i32 s{sRLO}, s{sKS}, 40960
s_lshl_b32 s14, s{sCG}, 7
s_add_u32 s{sRLO}, s{sRLO}, s14
s_mov_b32 s{sRST}, {10240-1024}
v_lshrrev_b32 v{vRTR}, 5, v1
v_bfe_u32 v{RT}, v1, 4, 1
v_lshlrev_b32 v{RT}, 2, v{RT}
v_lshl_add_u32 v{vRTR}, v{vRTR}, 4, v{RT}
v_bfe_u32 v{RT}, v1, 2, 2
v_add_u32 v{vRTR}, v{vRTR}, v{RT}
v_lshlrev_b32 v{vRTR}, 7, v{vRTR}
v_and_b32 v{RT}, 3, v1
v_lshl_add_u32 v{vRTR}, v{RT}, 3, v{vRTR}
s_mul_i32 s{sKS}, s{sKS}, 5120
s_add_u32 s{sKS}, s{sKS}, {W2F_OFF+40*5120}''')
        for q in range(4):
            a.e(f's_lshl_b32 s14, s{sCG}, 2\ns_add_u32 s14, s14, {q}')
            a.sdiv(sRO, 14, 5, 40)
            a.e(f'''s_mul_i32 s{sRO}, s{sRO}, {NKS*5120-5120}
s_lshl_b32 s14, s14, 10
s_add_u32 s14, s14, s{sRO}
s_add_u32 s{36+q}, s14, s{sKS}''')
        a.e(f's_branch {Ld}')
        a.label(Lc)
        a.e(f's_sub_u32 s{sU}, s{sU}, 540\ns_cmp_ge_u32 s{sU}, 200\ns_cselect_b32 s{sKS}, 1, 0')
        a.e(f's_cselect_b32 s{SR}, s{P_CIM}, s{P_CRE}\ns_cselect_b32 s{SR+1}, s{P_CIM+1}, s{P_CRE+1}\ns_mov_b32 s{SR+2}, 819200\ns_mov_b32 s{SR+3}, 0x00020000')
        a.e(f's_mul_i32 s14, s{sKS}, 200\ns_sub_u32 s{sU}, s{sU}, s14')
        a.sdiv(sCG, sU, 5, 300)
        a.e(f's_mul_i32 s14, s{sCG}, 5\ns_sub_u32 s{sRO}, s{sU}, s14')
        a.e(f'''s_mul_i32 s{sRLO}, s{sCG}, 20480
s_lshl_b32 s14, s{sRO}, 8
s_add_u32 s{sRLO}, s{sRLO}, s14
s_mov_b32 s{sRST}, {5120-1024}
v_lshrrev_b32 v{RT}, 4, v1
v_and_b32 v{RT+1}, 15, v1
v_mul_u32_u24 v{vRTL}, 1280, v{RT}
v_lshl_add_u32 v{vRTL}, v{RT+1}, 4, v{vRTL}
v_lshlrev_b32 v{RT}, 4, v{RT}
v_lshl_add_u32 v{vRTR}, v{RT+1}, 8, v{RT}''')
        a.sdiv(sU, sCG, 5, 60)
        a.e(f'''s_mul_i32 s{sU}, s{sU}, {NKS*5120-5120}
s_lshl_b32 s14, s{sCG}, 10
s_add_u32 s{sU}, s{sU}, s14
s_lshl_b32 s14, s{sRO}, 3
s_add_u32 s14, s14, s{sKS}
s_mul_i32 s14, s14, 5120
s_add_u32 s{sU}, s{sU}, s14
s_cmp_ge_u32 s{sCG}, 40
s_cselect_b32 s14, {OOB}, {W2F_OFF}
s_add_u32 s36, s{sU}, s14
s_add_u32 s37, s36, 10240
s_add_u32 s38, s36, 20480
s_add_u32 s39, s36, 30720''')
        a.label(Ld)
        a.e(f's_add_u32 s14, s{sM0B}, {RSLOT*16384}\nv_add_u32 v{vRTR}, s14, v{vRTR}')
    def rt_read(a):
        a.wait(vm=K['rt'])
        lc, ld = a.newlabel('rtc'), a.newlabel('rtd')
        a.e(f's_cmp_eq_u32 s{sRST}, {5120-1024}\ns_cbranch_scc1 {lc}')
        for q in range(4):
            for e in range(2): a.e(f'ds_read_b64_tr_b16 v[{RT+4*q+2*e}:{RT+4*q+2*e+1}], v{vRTR} offset:{q*32+e*1024}')
        a.e(f's_branch {ld}')
        a.label(lc)
        for q in range(4):
            for e in range(2): K['rtr'] = a.lds(f'ds_read_b64 v[{RT+4*q+2*e}:{RT+4*q+2*e+1}], v{vRTR} offset:{q*64+e*8}')
        a.label(ld)
    def step_j():
        for _ in range(4):
            assert dmaq[0].ready(); dmaq.pop(0)()
    def step_st():
        a.wait(vm=K['x'])
        stamp(a, 'x')
        for n in range(10):
            a.e(f'v_lshlrev_b32 v{XV+2*n}, 16, v{XR+n}\nv_and_b32 v{XV+2*n+1}, 0xffff0000, v{XR+n}')
        m_, q_ = tl, tl + 2
        a.e(f'v_pk_add_f32 {P(m_)}, {P(XV)}, {P(XV+2)}\nv_pk_add_f32 {P(q_)}, {P(XV+4)}, {P(XV+6)}')
        for n in range(4, 10, 2):
            a.e(f'v_pk_add_f32 {P(m_)}, {P(m_)}, {P(XV+2*n)}\nv_pk_add_f32 {P(q_)}, {P(q_)}, {P(XV+2*n+2)}')
        a.e(f'v_pk_add_f32 {P(m_)}, {P(m_)}, {P(q_)}\nv_add_f32 v{m_}, v{m_}, v{m_+1}')
        def red32(v, tt):
            for r in (8, 4, 2, 1):
                a.e(f's_nop 1\nv_add_f32_dpp v{v}, v{v}, v{v} row_ror:{r} row_mask:0xf bank_mask:0xf')
            a.e(f'v_mov_b32 v{tt}, v{v}\ns_nop 1\nv_permlane16_swap_b32 v{v}, v{tt}\ns_nop 0\nv_add_f32 v{v}, v{v}, v{tt}')
        red32(m_, m_ + 1)
        a.e(f'v_mul_f32 v{m_}, 0xbacccccd, v{m_}')
        for n in range(10): a.e(f'v_pk_add_f32 {P(XV+2*n)}, {P(XV+2*n)}, {P(m_)} op_sel_hi:[1,0]')
        a.e(f'v_pk_mul_f32 {P(q_)}, {P(XV)}, {P(XV)}\nv_pk_mul_f32 {P(tl+4)}, {P(XV+2)}, {P(XV+2)}')
        for n in range(2, 10, 2):
            a.e(f'v_pk_fma_f32 {P(q_)}, {P(XV+2*n)}, {P(XV+2*n)}, {P(q_)}\nv_pk_fma_f32 {P(tl+4)}, {P(XV+2*n+2)}, {P(XV+2*n+2)}, {P(tl+4)}')
        a.e(f'v_pk_add_f32 {P(q_)}, {P(q_)}, {P(tl+4)}\nv_add_f32 v{q_}, v{q_}, v{q_+1}')
        red32(q_, q_ + 1)
        a.e(f'v_mul_f32 v{q_}, 0x3acccccd, v{q_}\n' + bfround_t(q_, q_) + f'v_add_f32 v{q_}, 0x3727c5ac, v{q_}\n' + bfround_t(q_, q_) + f'v_sqrt_f32 v{q_}, v{q_}')
        tag_ready()
        a.e(f'v_mov_b32 v{m_+1}, v{vT}\nv_cvt_pk_bf16_f32 v{m_}, v{m_}, v{q_}')
        K['p0st'] = a.vm(f'buffer_store_dwordx2 {P(m_)}, v{vSTA}, s[{SW}:{SW+3}], 0 offen sc1')
        stamp(a, 'stp')
    steps = dict(x=step_x, cd=step_cd, cq=step_cq, par=step_par, ra=step_rta, j=step_j, st=step_st, dd=step_dd, tq=step_tq, cl=step_cl, pf=step_pf, a1=step_a1)
    order = cfg.get('p0', 'x.j.j.a1.pf.cd.par.cq.j.ra.st.j.dd.j.j').split('.')

    def rt_flow(SPR):
        pub = ('onbar', [('vm', f'buffer_store_dword v{vT}, v{SPR+2}, s[{SF}:{SF+3}], 0 offen sc1', None), sitem('f1pub'), ('mark', 'f1pub')])
        sts = [('vm', f'buffer_store_dwordx4 v[{RT+4*q}:{RT+4*q+3}], v{vL16}, s[{SW}:{SW+3}], s{36+q} offen sc1', 'p0st') for q in range(4)]
        c = lambda: st.get('riss')
        d = cfg.get('rtdelay', 24)
        yield ('when', c, d, [('raw', rt_read, 10)])
        yield ('when', c, d + 4, [('call', lambda: (a.wait(lg=K['rtr']), st.__setitem__('rtread', True), st.__setitem__('rtbar', st['bar']))), sts[0]])
        g = cfg.get('stgap', 4)
        yield ('when', c, d + 4 + g, [sts[1]])
        yield ('when', c, d + 4 + 2 * g, [sts[2]])
        yield ('when', c, d + 4 + 3 * g, [sts[3], ('mark', 'rtst')])
        yield ('when', lambda: cur['sch'].keys.get('rtst'), cfg.get('f1delay', 26), [('wv', 'p0st'), pub])
    def eg_issue(nk):
        yield from early_gather(nk, True)
    def early_gather(nk, issue=False):
        lds_ = [f'buffer_load_dwordx2 {P(GA)}, v{vSG}, s[{SW}:{SW+3}], s{sT0} offen sc1']
        lds_ += [f'buffer_load_dwordx4 {V(GA+4+4*k,4)}, v{vL16}, s[{SW}:{SW+3}], s{sT1} offen offset:{1024*k} sc1' for k in range(2 * nk)]
        chk_ = [f'v_xor_b32 v{GA+2}, v{GA+1}, v{vT}']
        for k in range(2 * nk):
            chk_ += [f'v_bitop3_b32 v{GA+3}, v{GA+5+4*k}, v{GA+7+4*k}, v{vT} bitop3:0x7e', f'v_or_b32 v{GA+2}, v{GA+2}, v{GA+3}']
        if issue:
            yield from items(f'''s_lshl_b32 s{sT0}, s{sRB}, 2
s_add_u32 s{sT0}, s{sT0}, s3
s_lshl_b32 s{sT0}, s{sT0}, 8
s_add_u32 s{sT0}, s{sT0}, {STAT_OFF}
s_lshl_b32 s{sT1}, s{sD1}, 11
s_add_u32 s{sT1}, s{sT1}, {108*1024}''')
            for k, ln in enumerate(lds_): yield ('when', lambda: st['G'] >= cfg.get('egat', 10), 1 + k, [('vm', ln, 'eg')] + ([('mark', 'egiss')] if k == len(lds_) - 1 else []))
            return
        yield ('until', lambda: st['G'] >= cfg.get('egck', 16) and cur['sch'].keys.get('egiss'))
        yield ('wv', 'eg')
        yield sitem('egw')
        for ln in chk_: yield ('v', ln)
        def chk(a):
            slow = a.newlabel('slow'); ok = a.newlabel('ok')
            a.e(f'v_cmp_ne_u32 vcc, 0, v{GA+2}\ns_nop 1\ns_cmp_lg_u64 vcc, 0\ns_cbranch_scc1 {slow}')
            a.label(ok)
            a.cold.append(f'{slow}:\ns_mov_b32 s{sCNT}, 0\n{slow}_l:\ns_sleep {SLEEP[0]}\n' + '\n'.join(lds_) + '\ns_waitcnt vmcnt(0)\n' + '\n'.join(chk_) + f'''
v_cmp_ne_u32 vcc, 0, v{GA+2}
s_add_u32 s{sCNT}, s{sCNT}, 1
s_cmp_gt_u32 s{sCNT}, {SPIN}
s_cbranch_scc1 {ok}
s_cmp_lg_u64 vcc, 0
s_cbranch_scc1 {slow}_l
s_branch {ok}
''')
        yield ('raw', chk, 4)
        yield sitem('egok')
        yield from items(f'''v_and_b32 v{vS}, 0xffff0000, v{GA}
v_and_b32 v{GA+2}, 0xffff, v{GA}
v_rcp_f32 v{GA+3}, v{vS}
v_lshl_or_b32 v{GA+2}, v{GA+2}, 16, v{GA+2}
v_accvgpr_write_b32 {R(AM)}, v{GA+2}
v_accvgpr_write_b32 {R(AM+1)}, 0
v_accvgpr_write_b32 {R(AM+2)}, v{GA+2}
v_accvgpr_write_b32 {R(AM+3)}, 0
v_mul_f32 v{vC1}, {NLOG2E}, v{GA+3}
s_lshl_b32 s{sT0}, s3, 7
s_add_u32 s{sT0}, s{sT0}, {RSL}
v_lshrrev_b32 v{vSG}, 1, v{vSG}
v_add_u32 v{vSG}, s{sT0}, v{vSG}
v_lshrrev_b32 v{vRS}, 5, v1
v_lshl_add_u32 v{vRS}, v{vRS}, 6, s{sT0}''')
        yield ('lds', f'ds_write_b32 v{vSG}, v{GA+3}', 'rsw')
        for k in range(2):
            yield ('m', f'v_mfma_f32_32x32x16_bf16 {V(ACC_D+16*k,16)}, {R(AM,4)}, {V(GA+4+4*k,4)}, {V(ACC_D+16*k,16)}')
            yield ('delay', 0)
        yield ('mark', 'corrD1')

    setup = f'''s_lshl_b32 s{sHB}, s{sRB}, 1
s_lshr_b32 s{sT0}, s3, 1
s_add_u32 s{sHB}, s{sHB}, s{sT0}
s_mul_i32 s{sHB}, s{sHB}, {NKS*4096}
s_and_b32 s{sT0}, s3, 1
s_lshl_b32 s{sT0}, s{sT0}, 11
s_add_u32 s{sHB}, s{sHB}, s{sT0}
s_add_u32 s{sHB}, s{sHB}, {HF_OFF}
s_and_b32 s{sT0}, s2, 1
s_lshl_b32 s{sT1}, s{sRBP}, 1
s_add_u32 s{sT1}, s{sT1}, s{sT0}
s_lshl_b32 s{sT0}, s{sT0}, 2
s_add_u32 s{sT0}, s{sT0}, s3
s_mul_i32 s{sW2}, s{sNB}, {NKS}
s_add_u32 s{sW2}, s{sW2}, s{sT0}
s_mul_i32 s{sW2}, s{sW2}, 5120
s_add_u32 s{sW2}, s{sW2}, {W2F_OFF}
s_lshl_b32 s{sT0}, s{sT0}, 12
s_add_u32 s{sT0}, s{sT0}, {HF_OFF}
s_mul_i32 s{sH2[1]}, s{sT1}, {NKS*4096}
s_add_u32 s{sH2[1]}, s{sH2[1]}, s{sT0}
s_xor_b32 s{sH2[0]}, s{sT1}, 1
s_mul_i32 s{sH2[0]}, s{sH2[0]}, {NKS*4096}
s_add_u32 s{sH2[0]}, s{sH2[0]}, s{sT0}
s_mul_i32 s{sHL}, s{sT1}, {NKS*4096}
s_add_u32 s{sHL}, s{sHL}, s{sM0B}
s_add_u32 s{sHL}, s{sHL}, {HF_OFF+62*4096}
s_mul_i32 s{sWL}, s{sNB}, {NKS}
s_add_u32 s{sWL}, s{sWL}, s3
s_mul_i32 s{sWL}, s{sWL}, 5120
s_add_u32 s{sWL}, s{sWL}, {W2F_OFF+62*5120}
s_lshl_b32 s{sT1}, s{sT1}, 2
s_add_u32 s{sT1}, s{sT1}, s3
s_lshl_b32 s{sSTO}, s{sT1}, 7
s_add_u32 s{sSTO}, s{sSTO}, {STAT_OFF}
s_mul_i32 s{sXO2}, s{sT1}, 20480
s_mul_i32 s{sDKO}, s{sNB}, 160
s_add_u32 s{sXO2}, s{sXO2}, s{sDKO}
s_lshl_b32 s{sOO}, s{sXO2}, 1
s_lshl_b32 s{sT0}, s2, 2
s_add_u32 s{sT0}, s{sT0}, s3
s_mul_i32 s{sXS}, s{sT0}, 7168
s_add_u32 s{sXS}, s{sXS}, {XCH_OFF}
s_xor_b32 s{sT0}, s{sT0}, 4
s_mul_i32 s{sXL}, s{sT0}, 7168
s_add_u32 s{sXL}, s{sXL}, {XCH_OFF}
s_mov_b32 s{sNEEDA}, -1
s_mov_b32 s{sNEEDA+1}, 0xfff
v_and_b32 v{GOF}, 31, v1
v_lshrrev_b32 v{GOF+2}, 5, v1
v_bfe_u32 v{GOF+1}, v1, 2, 1
v_lshlrev_b32 v{GOF+1}, 10, v{GOF+1}
v_lshl_add_u32 v{GOF+1}, v{GOF+2}, 8, v{GOF+1}
v_bfe_u32 v{GOF+3}, v1, 3, 2
v_lshl_add_u32 v{GOF+1}, v{GOF+3}, 6, v{GOF+1}
v_and_b32 v{GOF+3}, 3, v1
v_lshl_add_u32 v{vHG}, v{GOF+3}, 4, v{GOF+1}
s_lshl_b32 s{sT0}, s3, 9
s_add_u32 s{sT0}, s{sT0}, {SCR}
v_lshl_add_u32 v{vAGW}, v1, 3, s{sT0}
v_lshlrev_b32 v{GOF+1}, 3, v{GOF}
v_add_u32 v{vAGR}, {SCR}, v{GOF+1}
s_mul_i32 s{sT0}, s3, 2560
s_add_u32 s{sT0}, s{sT0}, {SCR+4096}
v_lshl_add_u32 v{vTW}, v{GOF+2}, 5, v{vTW}
v_add_u32 v{vTW}, s{sT0}, v{vTW}
v_lshrrev_b32 v{GOF+1}, 4, v1
v_bfe_u32 v{GOF+4}, v1, 2, 2
v_lshl_add_u32 v{GOF+1}, v{GOF+1}, 3, v{GOF+4}
v_mul_u32_u24 v{GOF+1}, 80, v{GOF+1}
v_lshl_add_u32 v{GOF+1}, v{GOF+3}, 3, v{GOF+1}
v_add_u32 v{vTR}, s{sT0}, v{GOF+1}
'''
    def setup_sa(SA, sD):
        def f(a):
            a.e(f'''s_mul_i32 s{SA+2}, s{sD}, {AGS}
s_add_u32 s{SA+2}, s{SA+2}, {AGG_OFF}
s_add_u32 s{SA}, s{P_WS}, s{SA+2}
s_addc_u32 s{SA+1}, s{P_WS+1}, 0
s_mov_b32 s{SA+2}, {AGS}
s_mov_b32 s{SA+3}, 0x00020000''')
        return ('raw', f, 6)
    def setup_scc2(a):
        a.e(f'''s_cmp_eq_u32 s{sT1}, 1
s_cselect_b32 s{sT0}, 8192, s{sOOBK}
s_cmp_eq_u32 s3, 0
s_cselect_b32 s{sT0}, s15, s{sT0}
s_cselect_b32 s{sZM}, -1, 0''')
    def setup_scc3(a):
        a.e(f'''s_cmp_eq_u32 s{sSL}, 10
s_cselect_b32 s{sT0}, s{sOOBK}, s{sT0}''')
    setup_sh = ('raw', lambda a: a.e(f's_mov_b32 s{SH}, s{P_WS}\ns_mov_b32 s{SH+1}, s{P_WS+1}\ns_cmp_eq_u32 s{sSL}, 10\ns_cselect_b32 s{SH+2}, 0, {WS_BYTES}\ns_mov_b32 s{SH+3}, 0x00020000'), 5)
    setup1b = f'''s_lshl_b32 s15, s{sRB}, 9
s_or_b32 s{sT1}, s15, s3
s_mov_b32 s{sOOBK}, 0x100000
'''
    setup2 = f'''v_lshlrev_b32 v{GOF+1}, 4, v{GOF}
v_add_u32 v{vPUB}, s{sT0}, v{GOF+1}
s_sub_u32 s15, s15, 512
v_add_u32 v{EXP}, 8192, v{GOF+1}
v_add_u32 v{GOF+1}, s15, v{GOF+1}
v_lshlrev_b32 v{GOF+2}, 9, v{GOF+2}
v_sub_u32 v{GOF}, v{GOF+1}, v{GOF+2}
s_lshr_b32 s{sOOBK}, s3, 1
s_and_b32 s{sOOBK}, s{sOOBK}, s2
s_lshl_b32 s{sOOBK}, s{sOOBK}, 30
'''
    for j in range(1, 8): setup2 += f'v_subrev_u32 v{GOF+j}, {1024*j}, v{GOF}\n'
    for j in range(8): setup2 += f'v_min_u32 v{GOF+j}, v{GOF+j}, v{EXP}\n'
    def mask_items():
        for j in range(1, 8):
            m = sMASK + 2 * (j - 1)
            yield ('raw', lambda a, j=j, m=m: a.e(f's_cmp_eq_u32 s3, {j>>1}\ns_cselect_b32 s{m+(j&1)}, -1, 0\ns_mov_b32 s{m+1-(j&1)}, 0'), 3)
    def f1_pub(SPR):
        vF1P = SPR + 2
        yield ('raw', lambda a: a.e(f's_lshl_b32 s{sT0}, s2, 4\ns_add_u32 s{sT0}, s{sT0}, {F1_OFF}\ns_cmp_lg_u32 s3, 0\ns_cselect_b32 s{sT0}, {OOB}, s{sT0}\nv_mov_b32 v{vF1P}, {OOB}\nv_writelane_b32 v{vF1P}, s{sT0}, 0'), 6)
        yield ('raw', lambda a: a.e(f's_or_b32 s{sT0}, s2, s3\ns_cselect_b32 s{sT0}, {OOB}, {NONCE_OFF}\nv_mov_b32 v{SPR+4}, {OOB}\nv_writelane_b32 v{SPR+4}, s{sT0}, 0'), 4)
        yield ('s', f's_lshl_b32 s{sT0}, s3, 10')
        yield ('s', f's_add_u32 s{sT0}, s{sT0}, {F1_OFF}')
        yield ('v', f'v_add_u32 v{SPR+1}, s{sT0}, v{vL16}')
    def f1_chk(SPR):
        yield ('vm', poll_load(SPR, SPR + 1, 0), 'f1')
        yield ('after', cfg.get('polld', 28), [('req', 'f1pub'), ('wv', 'f1'), sitem('f1w'), ('raw', poll_check(SPR, SPR + 1, 0, None), 4),
               ('onbar', [('vm', f'buffer_store_dword v{vT}, v{SPR+4}, s[{SW}:{SW+3}], 0 offen sc1', None), ('call', lambda: st.__setitem__('f1ok', True)), sitem('f1ok')])])

    def build(units):
        stages = []; groups = []
        for ui, (kind, acc, soff) in enumerate(units):
            ns = 5 if kind == 'D' else 10
            for s in range(ns):
                n = len(stages); stages.append((kind, soff))
                for g in range(4): groups.append((ui, kind, acc, n, s, g))
        return stages, groups
    bars = [0, 1, 2, 3, 4] + list(range(5, 25, 2))
    def reads(G, groups):
        ui, kind, acc, n, s, g = groups[G]
        slot = SLOT[n]; win = slot // 4; base = (slot % 4) * 16384
        buf = WB + 16 * (G % 3)
        out = []
        if kind == 'Q':
            for m in range(4):
                jh, mat = m >> 1, m & 1
                out.append([f'ds_read_b64_tr_b16 {R(buf+4*m+2*e,2)}, v{vRQ[jh][win]} offset:{base+g*4096+mat*2048+e*512}' for e in range(2)])
        else:
            for m in range(4):
                ks, mat = 2 * g + (m >> 1), m & 1
                out.append([f'ds_read_b128 {R(buf+4*m,4)}, v{vRD[ks&3]} offset:{base+(ks>>2)*8192+mat*4096}'])
            if ui == 0:
                for m in range(2):
                    ks = 2 * G + m
                    out[2 * m + 1].append(f'ds_read_b128 {R(XF+4*ks,4)}, v{vRX[ks&3]} offset:{((ks>>2)&3)*16384}')
        return out, (win if kind == 'D' else None)
    def barrier_for(n, stages, sch):
        nxt = min([b for b in bars if b > n] + [len(stages)])
        need = min(nxt, len(stages)) - 1
        while need not in stage_last:
            assert dmaq[0].ready(), (n, dmaq[0].kind, dmaq[0].stage); dmaq.pop(0)()
        a.wait(vm=stage_last[need])
        a.e('s_barrier')
        st['bar'] = n
        sch.on_barrier()
    def set_dwin(w):
        if w is not None and w != st['dwin']:
            d = (w - st['dwin']) * 65536
            for r in vRD: a.e(f'v_add_u32 v{r}, {d & 0xffffffff}, v{r}')
            st['dwin'] = w

    class P2: pass
    PURE = cfg.get('pure', 0); L3I = 7 if PURE else 8
    def p2_load(p, kind, i, j, reg):
        late = i >= 8 and not PURE
        if kind == 'W': off, sb, sreg = ((i - 8) * 20480, sWL, sP1) if late else (i * 40960, sW2, sP1)
        else: off, sb, sreg = ((i - 8) * 16384, sHL, sP0) if late else (i * 32768, sH2[int(kind[1])], sP0)
        key = (kind, i, j // 4)
        assert st.get('f1ok')
        if kind != 'W': assert st.get('lvl', 0) >= (1 if i < 2 else 2 if i < L3I else 3), (kind, i)
        if p.cur.get(sreg) != key:
            a.e(f's_add_u32 s{sreg}, s{sb}, {off + (j // 4) * 4096}')
            if i == (11 if PURE else 7): a.e(f's_add_u32 s{sreg}, s{sreg}, s{sOOBK}')
            p.cur[sreg] = key
        p.buf[kind, i, j] = reg
        p.id[kind, i, j] = a.vm(f'buffer_load_dwordx4 {R(reg,4)}, v{vL16}, s[{SW}:{SW+3}], s{sreg} offen offset:{1024*(j%4)} sc1')

    def emit_groups(stages, groups, sch, fillers, pre_load, pool, on_unit):
        lastu = groups[-1][0]
        freed = set()
        for G in range(len(groups)):
            ui, kind, acc, n, s, g = groups[G]
            st['G'] = G
            if s == 0 and g == 0:
                on_unit(ui)
                if ui in fillers: sch.add(fillers[ui])
                stamp(a, f'U{ui+1}'); dbg(1 + ui)
            if cfg.get('gst') and g == 0 and s > 0 and str(ui + 1) in str(cfg['gst']): stamp(a, f'u{ui+1}s{s}')
            nx = G + 2
            rd = None
            if nx < len(groups): rd, win = reads(nx, groups)
            buf = WB + 16 * (G % 3)
            for m in range(4):
                if kind == 'Q': ks = 4 * s + g; d = acc + 16 * m
                else: ks = 8 * s + 2 * g + (m >> 1); d = acc + 16 * (m & 1)
                if m == 0:
                    a.wait(lg=st['rid'][G])
                    if ui == 0 and G & 1: st['xdone'] = G >> 1
                c = '0' if ks == 0 else V(d, 16)
                if kind == 'Q': a.e(f'v_mfma_f32_32x32x16_bf16 {V(d,16)}, {R(buf+4*m,4)}, {R(XF+4*ks,4)}, {c}')
                else: a.e(f'v_mfma_f32_32x32x16_bf16 {V(d,16)}, {R(XF+4*ks,4)}, {R(buf+4*m,4)}, {c}')
                n0 = len(a.lines); budget = 0
                if m == 0 and rd and groups[nx][5] == 0 and groups[nx][3] in bars:
                    barrier_for(groups[nx][3], stages, sch); budget -= 2
                if rd and m == 1 and groups[nx][0] == 0 and not nx & 1:
                    while (nx >> 1) not in xlast or (dmaq[0].kind == 'X' and dmaq[0].stage == nx >> 1):
                        assert dmaq[0].ready(); dmaq.pop(0)()
                    a.wait(vm=xlast[nx >> 1])
                if rd:
                    for t_ in rd[m]: st['rid'][nx] = a.lds(t_)
                if ui == lastu and ks >= 1 and ks - 1 not in freed:
                    freed.add(ks - 1); pool.append(XF + 4 * (ks - 1))
                dma_ok = dmaq and dmaq[0].ready()
                lead = ((dmaq[0].stage - n) if dmaq[0].kind == 'S' else cfg.get('rlead', 0)) if dmaq else 99
                did = False
                if ui == 0:
                    if dma_ok and not sch.head_vm() and (m != 0 or cfg.get('u1all', 0)): dmaq.pop(0)(); did = True
                elif cfg.get('rate'):
                    tok = st.get('tok', 0.0) + cfg['rate'] / 100.0
                    for ln in a.lines[st.get('tl', len(a.lines)):]:
                        if ln.startswith('buffer_'):
                            tok -= (cfg.get('stw', 15) / 10.0 if a.is_big_store(ln) else cfg.get('rw', 20) / 10.0 if f's[{SR}:{SR+3}], s{sRLO}' in ln else 1.0 if 'x4' in ln else 0.3)
                    tok = min(tok, cfg.get('tokmax', 15) / 10.0)
                    st['tok'] = tok; st['tl'] = len(a.lines)
                    if dma_ok and lead <= cfg.get('minlead', 2) and m != 0: dmaq.pop(0)(); did = True
                    elif tok >= 1.0 and not sch.head_vm():
                        if dma_ok and lead <= cfg.get('lead2', 5): dmaq.pop(0)(); did = True
                        else:
                            did = pre_load()
                            if not did and dma_ok: dmaq.pop(0)(); did = True
                elif m in (1, 3):
                    if dma_ok and (m == 3 or lead <= cfg.get('lead2', 5)): dmaq.pop(0)(); did = True
                    elif not sch.head_vm() and not st.get('fvm'): did = pre_load()
                elif m == 2:
                    if dma_ok and lead <= cfg.get('minlead', 2): dmaq.pop(0)(); did = True
                if m == 3 and G + 3 < len(groups): set_dwin(reads(G + 3, groups)[1])
                v0_ = a.vm_n
                sch.fill((st.get('slots', cfg['slots']) if cur['typ'] == 'A' else cfg.get('slotsB', 8)) - (len(a.lines) - n0) - (1 if m == 3 else 0) + (cfg.get('u1extra', 4) if ui == 0 else 0), vm_ok=not did)
                st['fvm'] = a.vm_n > v0_

    unitsA = [('D', ACC_D, sDOFF1), ('Q', ACC_A, sQOFF1), ('Q', ACC_B, sQOFF2)]
    unitsB = [('D', ACC_D, sDOFF1), ('D', ACC_A, sDOFF2), ('Q', ACC_B, sQOFF1)]
    step_i()
    a.e(f's_cmp_ge_u32 s{sSL}, 11\ns_cbranch_scc1 L_typeB')
    st0 = copy.deepcopy(st); as0 = a.state()
    for typ, units in (('A', unitsA), ('B', unitsB)):
        if typ == 'B':
            a.label('L_typeB')
            a.restore(as0); st.clear(); st.update(copy.deepcopy(st0)); stage_last.clear(); xlast.clear(); K.clear()
        stages, groups = build(units)
        cur.update(units=units, stages=stages, typ=typ)
        make_jobs(len(stages))
        assert order.index('a1') < order.index('par') < order.index('cq') < order.index('ra') and order.index('a1') < order.index('cd') and order.index('a1') < order.index('st')
        for stp in order: steps[stp]()
        sch = Sched(a); cur['sch'] = sch; sch.keys.update(K)
        p = P2(); p.buf = {}; p.id = {}; p.cur = {}
        SPR = TMP + 30
        FL = vD[2]
        H = lambda ps, i: [(f'H{ps}', i, j) for j in range(4)]
        Wf = lambda i: [('W', i, j) for j in range(5)]
        HR = lambda ps, ii: [(f'H{ps}', i, j) for j in range(4) for i in ii]
        pool = []
        CB = [256 + 208 + 4 * k for k in range(11)]
        poolB = []
        lq = H(0, 0) + H(0, 1) + H(1, 0) + H(1, 1) + sum([Wf(i) for i in range(8)], []) + sum([H(0, i) for i in range(2, 5)], []) + HR(0, (5, 6, 7)) + sum([Wf(i) for i in range(8, 16)], [])[:cfg.get('wlpre', 10)]
        if PURE: lq = H(0, 0) + H(0, 1) + H(1, 0) + H(1, 1) + sum([Wf(i) for i in range(12)], [])
        def lv(it): return 0 if it[0] == 'W' else (1 if it[1] < 2 else 2 if it[1] < L3I else 3)
        def pre_load():
            if not st.get('f1ok'): return False
            for k, it in enumerate(lq):
                if lv(it) > st.get('lvl', 0): continue
                pl = poolB if (it[0] == 'W' and it[1] < 2) else pool
                if not pl: continue
                if st.get('postT') and it[0] == 'W' and it[1] >= cfg.get('wtail', 6): continue
                lq.pop(k); p2_load(p, it[0], it[1], it[2], pl.pop(0)); return True
            return False
        polld = cfg.get('polld', 20); ackd = cfg.get('ackd', 28)
        u1 = chain([] if 'cl' in order else cq_loads(lambda: True, cfg.get('cq0', 4), cfg.get('cqgap', 4)), f1_pub(SPR), rt_flow(SPR), [('call', lambda: a.wait(vm=K['par']))], items(ssm_consts(C1, TMP)), items(ssm_consts(C2, TMP + 4)) if typ == 'B' else [],
                   items(setup), items(setup1b), [('raw', setup_scc2, 5), ('raw', setup_scc3, 3)], items(setup2),
                   [('until', lambda: sch.keys.get('cqiss') and st['G'] >= cfg.get('qqat', 0)), setup_sh], eg_issue(1 if typ == 'A' else 2), qq_stream(), mask_items(), early_gather(1 if typ == 'A' else 2))
        nq_ = 2 if typ == 'A' else 1
        pool.extend(CB[4 * nq_:])
        def cg_txt(k): return f'buffer_load_dwordx4 {R(CB[k],4)}, v{vL16}, s[{SW}:{SW+3}], s{k>>2} offen offset:{1024*(k&3)} sc1'
        def corr_issue():
            c = lambda: sch.keys.get('qqst')
            d0 = cfg.get('cgd', 40)
            yield ('when', c, 1, [('s', f's_lshl_b32 s0, s{sSL}, 12'), ('s', f's_add_u32 s1, s0, {16*4096}')])
            for k in range(4 * nq_): yield ('when', c, d0 + 2 * k, [('vm', cg_txt(k), f'cg{k}')])
            yield ('when', c, d0 + 8 * nq_ + cfg.get('cqd', 16), [('mark', 'cgland')])
        def corr_apply(j, acc, unit):
            g0 = next(n for n, g in enumerate(groups) if g[0] == unit)
            T3 = SPR + 3
            chk_ = []
            for m in range(4):
                k = 4 * j + m
                chk_ += [f'v_accvgpr_read_b32 v{T3}, {R(CB[k]+1)}', f'v_accvgpr_read_b32 v{vD[3]}, {R(CB[k]+3)}']
                chk_ += [f'v_bitop3_b32 v{vD[1] if m == 0 else T3}, v{T3}, v{vD[3]}, v{vT} bitop3:0x7e'] + ([f'v_or_b32 v{vD[1]}, v{vD[1]}, v{T3}'] if m else [])
            yield ('until', lambda: sch.keys.get('cgland') and st['G'] > g0)
            yield ('wv', f'cg{4*j+3}')
            for ln in chk_: yield ('v', ln)
            def chk(a):
                slow = a.newlabel('slow'); ok = a.newlabel('ok')
                a.e(f'v_cmp_ne_u32 vcc, 0, v{vD[1]}\ns_nop 1\ns_cmp_lg_u64 vcc, 0\ns_cbranch_scc1 {slow}')
                a.label(ok)
                a.cold.append(f'{slow}:\ns_mov_b32 s{sCNT}, 0\n{slow}_l:\ns_sleep {SLEEP[0]}\n' + '\n'.join(cg_txt(4 * j + m) for m in range(4)) + '\ns_waitcnt vmcnt(0)\n' + '\n'.join(chk_) + f'''
v_cmp_ne_u32 vcc, 0, v{vD[1]}
s_add_u32 s{sCNT}, s{sCNT}, 1
s_cmp_gt_u32 s{sCNT}, {SPIN}
s_cbranch_scc1 {ok}
s_cmp_lg_u64 vcc, 0
s_cbranch_scc1 {slow}_l
s_branch {ok}
''')
            yield ('raw', chk, 4)
            yield sitem(f'cg{j}ok')
            for m in range(4):
                yield ('m', f'v_mfma_f32_32x32x16_bf16 {V(acc+16*m,16)}, {R(CB[4*j+m],4)}, {R(AM,4)}, {V(acc+16*m,16)}')
                yield ('delay', 0)
            yield ('mark', f'corr{unit}')
            yield ('call', lambda: pool.extend(CB[4*j:4*j+4] + ([AM] if unit == 2 else [])))
        spare1, spare2 = vD[0], vD[1]
        chk_d = ('call', lambda: (_ for _ in ()).throw(AssertionError('D dma pending')) if any(th.kind == 'X' or (th.kind == 'S' and stages[th.stage][0] == 'D') for th in dmaq) else None)
        BQ = list(range(28, 48, 4)); XQ0 = list(range(48, 68, 4))
        def _fs():
            poolB.extend(range(28, 68, 4)); pool.extend(range(68, 88, 4))
        free_ssm = ('call', _fs)
        EAr, EAo, EAw, vXP, vXL = 15, 16, 17, 18, 7
        t_ = 8
        def epaddr():
            yield from items(f'''v_and_b32 v{EAw}, 15, v1
v_mul_u32_u24 v{EAw}, 320, v{EAw}
v_lshrrev_b32 v{t_+5}, 4, v1
v_bfe_u32 v{t_+4}, v1, 1, 2
v_xor_b32 v{t_+5}, v{t_+5}, v{t_+4}
v_lshl_add_u32 v{EAw}, v{t_+5}, 4, v{EAw}
s_mul_i32 s{sT0}, s3, 20480
v_add_u32 v{EAw}, s{sT0}, v{EAw}
v_lshrrev_b32 v{t_}, 2, v1
v_and_b32 v{t_+1}, 3, v1
v_lshlrev_b32 v{t_+2}, 3, v{t_+1}
v_mul_u32_u24 v{t_+3}, 1280, v{t_}
v_add_u32 v{t_+3}, v{t_+3}, v{t_+2}
v_lshlrev_b32 v{t_+4}, 3, v{t_}
v_lshlrev_b32 v{EAo}, 1, v{t_+3}
v_bfe_u32 v{t_+5}, v1, 3, 2
v_xor_b32 v{t_+5}, v{t_+5}, v{t_+1}
v_mul_u32_u24 v{EAr}, 320, v{t_}
v_lshl_add_u32 v{EAr}, v{t_+5}, 4, v{EAr}
s_mul_i32 s{sT1}, s3, 5120
v_add_u32 v{EAr}, s{sT1}, v{EAr}
''')
            for d, pp, n in ((SXX, P_X, 2621440), (SDK, P_DSK, 1280), (SO, P_OUT, 5242880)):
                yield from items(f's_mov_b32 s{d}, s{pp}\ns_mov_b32 s{d+1}, s{pp+1}\ns_mov_b32 s{d+2}, {n}\ns_mov_b32 s{d+3}, 0x00020000')
            yield ('vm', f'buffer_load_dword v21, v{t_+4}, s[{SW}:{SW+3}], s{sSTO} offen sc1', 'bs')
            yield ('call', lambda: st.__setitem__('ep', True))
        def base_loads(XQ):
            for i in range(5):
                yield ('vm', f'buffer_load_dwordx2 {P(XQ[i])}, v{t_+3}, s[{SXX}:{SXX+3}], s{sXO2} offen offset:{32*i}', f'bx{i}')
                yield ('delay', 2)
                yield ('vm', f'buffer_load_dwordx2 {P(XQ[i]+2)}, v{t_+2}, s[{SDK}:{SDK+3}], s{sDKO} offen offset:{32*i}', f'bd{i}')
                yield ('delay', 2)
        def base_calc(XQ):
            yield ('wv', 'bd0')
            yield from items(f'''v_and_b32 v22, 0xffff0000, v21
v_rcp_f32 v22, v22
v_lshlrev_b32 v21, 16, v21
v_mul_f32 v21, v21, v22''')
            for i in range(5):
                b = BQ[i]; x = XQ[i]
                yield ('wv', f'bd{i}')
                for k in range(4):
                    un = (lambda d, s_: f'v_and_b32 v{d}, 0xffff0000, v{s_}') if k & 1 else (lambda d, s_: f'v_lshlrev_b32 v{d}, 16, v{s_}')
                    yield ('v', un(b + k, x + (k >> 1)))
                    yield ('v', un(t_, x + 2 + (k >> 1)))
                    yield ('v', f'v_fma_f32 v{t_+1}, v{b+k}, v22, v21')
                    yield ('v', f'v_fmac_f32 v{b+k}, v{t_+1}, v{t_}')
            yield sitem('bend')
            yield ('call', lambda: st.__setitem__('base', True))
        def lchk2(level, d):
            yield ('vm', poll_load(FL, vFL2, 128 * level), f'l{level}')
            yield ('after', d, [sitem(f'l{level}a'), ('wv', f'l{level}'), sitem(f'l{level}w'), ('raw', poll_check(FL, vFL2, 128 * level, sNEEDA if level == 1 else None), 4), sitem(f'l{level}ok'),
                   ('call', lambda: st.__setitem__('lvl', level))])
        sl_ = lambda k: ('call', lambda: st.__setitem__('slots', cfg.get(k, cfg['slots'])))
        f1w = ('when', lambda: sch.keys.get('f1pub'), cfg.get('f1vis', 50), list(f1_chk(SPR)))
        if typ == 'A':
            G = [64, 68, 72, 76, 44, 48, 52, 56]
            mid1 = list(f_coef(ACC_D, C1, spare1)) + list(corr_apply(0, ACC_A, 1))
            mid2 = iter(mid1[cfg.get('gpos', 64):])
            u2 = chain([('until', lambda: st.get('xiss')), setup_sa(SA1, sD1), f1w], corr_issue(), [sl_('slotsC')], f_scale(ACC_D, vRS, 'a1'), f_agg(ACC_D, C1, 0, SA1, 'a1'), [sl_('slots'), chk_d],
                       mid1[:cfg.get('gpos', 64)], f_gather_issue(G, SA1, 'a1', mid2), mid2, [('delay', cfg.get('gdelay', 8))],
                       [sl_('slotsK')], f_carry(G, ACC_D, C1, spare1, SA1, sD1, 'a1'), [('mark', 'ssm'), free_ssm, sl_('slotsE')], f_publish(1, ackd),
                       [('when', lambda: sch.keys.get('pub1'), cfg.get('visd', 40), list(lchk2(1, polld)))])
            u3 = chain([('delay', 3)], f_epiq(ACC_A, 40), f_publish(2, ackd), corr_apply(1, ACC_B, 2))
            tailg = chain(f_epiq(ACC_B, 72))
        else:
            G = [ACC_A + 32 + 4 * j for j in range(8)]; G2 = [ACC_D + 4 * j for j in range(8)]
            cd2 = [('until', lambda: st['G'] >= 21)] + [('m', f'v_mfma_f32_32x32x16_bf16 {V(ACC_A+16*k,16)}, {R(AM,4)}, {V(GA+12+4*k,4)}, {V(ACC_A+16*k,16)}') for k in range(2)]
            u2 = chain([('until', lambda: st.get('xiss')), setup_sa(SA1, sD1), f1w], corr_issue(), cd2, f_scale(ACC_D, vRS, 'a1'), f_agg(ACC_D, C1, 0, SA1, 'a1'), [chk_d], f_coef(ACC_D, C1, spare1),
                       [('until', lambda: st.get('riss')), setup_sa(SA2, sD2)])
            ag2 = chain(f_scale(ACC_A, vRS, 'a2'), f_agg(ACC_A, C2, 2048, SA2, 'a2')); cf2 = f_coef(ACC_A, C2, spare2)
            u3 = chain([('delay', 3)], f_gather_issue(G, SA1, 'a1', ag2), ag2,
                       f_carry(G, ACC_D, C1, spare1, SA1, sD1, 'a1'), corr_apply(0, ACC_B, 2), f_gather_issue(G2, SA2, 'a2', cf2), cf2, [('delay', 12)],
                       f_carry(G2, ACC_A, C2, spare2, SA2, sD2, 'a2'), [('mark', 'ssm'), free_ssm], f_publish(2, cfg.get('ackb', 24)))
            tailg = chain(lchk2(1, 20), f_epiq(ACC_B, 40), [('flush',)], f_publish(3, 1000), [('call', lambda: [pre_load() for _ in range(cfg.get('bpre', 16))]), ('flush',)])
        def on_unit(ui):
            if ui == 1: assert sch.keys.get('cw') is not None, 'qq late'
            if ui == 2:
                assert sch.keys.get('rtst') and sch.keys.get('qqst')
        barrier_for(0, stages, sch)
        a.wait(vm=xlast[0])
        for G0 in (0, 1):
            rd, win = reads(G0, groups)
            for lst in rd:
                for tx in lst: st['rid'][G0] = a.lds(tx)
        emit_groups(stages, groups, sch, {0: u1, 1: u2, 2: u3}, pre_load, pool, on_unit)
        assert not dmaq
        stamp(a, 'T'); dbg(4)
        pool += [XF + 156] + [WB + 4 * k for k in range(12)]
        st['postT'] = typ == 'A'
        sch.drain(every=(cfg.get('yevery', 24), pre_load))
        assert sch.keys.get('corr2')
        stamp(a, 'T2')
        a.e('s_nop 7\ns_nop 3')
        pid = {}
        tl_ = list(tailg)
        kp = (len(tl_) * cfg.get('p2pos', 7)) // 8 if typ == 'A' else len(tl_)
        def p2i():
            while sch.timers: sch.tick(True)
            pid[2] = a.vm(poll_load(FL, vFL2, 256))
        sch.add(chain(tl_[:kp], [('call', p2i)], tl_[kp:])); sch.drain(every=(cfg.get('yevery', 24), pre_load))
        while sch.timers: sch.tick(True)
        assert st.get('lvl') == 1
        pool.extend([88, 92])
        stamp(a, 'Y')
        ACC = (96, 176)
        FL3 = FL
        nb_ = lambda ps, i: (ps, [(i, rt) for rt in range(4)])
        rb_ = lambda ps, ii: [(ps, [(i, rt) for i in ii]) for rt in range(4)]
        blocks = [nb_(0, 0), nb_(0, 1), nb_(1, 0), nb_(1, 1)] + [nb_(0, i) for i in range(2, 5)] + rb_(0, (5, 6, 7)) + [nb_(1, i) for i in range(2, 13)] + rb_(1, (13, 14, 15))
        pd = cfg.get('pd', 10)
        l_a = [x for x in lq if lv(x) <= 1 and x[1] < 8]; l_b = [x for x in lq if lv(x) == 2]
        rest = sum([H(1, i) for i in range(2, 8)], [])
        wl = [x for x in sum([Wf(i) for i in range(8, 16)], []) if x not in p.id]
        n2 = cfg.get('w2', 8)
        mid = rest[:8]; rest = rest[8:]
        w0 = wl[:n2]; wl = wl[n2:]
        nlate = cfg.get('wlate', 10)
        wz = wl[len(wl) - nlate:]; wl = wl[:len(wl) - nlate]
        while rest or wl:
            mid += rest[:4] + wl[:3]; rest = rest[4:]; wl = wl[3:]
        hl = sum([H(1, i) for i in range(8, 13)], [])
        lq = l_a + w0 + [('Pc', 2)] + l_b + mid[:len(mid) - pd] + [('Pi', 3)] + mid[len(mid) - pd:] + [('Pc', 3)] \
            + hl[:12] + wz[:5] + hl[12:16] + wz[5:] + hl[16:] + HR(1, (13, 14, 15))
        bred, bfin = 10, 22
        if PURE:
            e1 = cfg.get('e1', 1)
            blocks = [nb_(0, 0), nb_(0, 1), nb_(1, 0), nb_(1, 1)] + [nb_(0, i) for i in range(2, 7)] + [nb_(1, i) for i in range(2, 2 + e1)] + [nb_(0, 7), nb_(0, 8)] + rb_(0, (9, 10, 11)) \
                + [nb_(1, i) for i in range(2 + e1, 9)] + rb_(1, (9, 10, 11))
            bred = 14 + e1
            l_a = [x for x in H(0, 0) + H(0, 1) + H(1, 0) + H(1, 1) + sum([Wf(i) for i in range(12)], []) if x not in p.id]
            todo = lambda L: [x for x in L if x not in p.id]
            seq = []
            for ps, blk in blocks:
                for i, rt in blk:
                    for x in todo(Wf(i)) + todo([(f'H{ps}', i, rt)]):
                        if x not in seq: seq.append(x)
            k2 = next(n for n, x in enumerate(seq) if lv(x) == 2); k3 = next(n for n, x in enumerate(seq) if lv(x) == 3)
            s_a, s_b, s_c = seq[:k2], seq[k2:k3], seq[k3:]
            mv = [x for x in s_b + s_c if x[0] == 'W'][:cfg.get('w2', 4)]
            s_b = [x for x in s_b if x not in mv]; s_c = [x for x in s_c if x not in mv]
            mv3 = [x for x in s_c if lv(x) < 3][:cfg.get('w3', 0)]
            s_c = [x for x in s_c if x not in mv3]; s_b += mv3
            lq = s_a + mv + [('Pc', 2)] + s_b + [('Pi', 3), ('Pc', 3)] + s_c
        s2 = sch
        if typ == 'A': s2.add(f_publish(3, cfg.get('pubat', 60)))
        s2.add(epaddr())
        BX = {'b': BQ, 'p': list(range(ACC[0], ACC[0] + 20, 4))}
        def next_load(force=False):
            if not lq: return False
            it = lq[0]
            if PURE and not force and ((it == ('Pi', 3) and st['cnt'] < cfg.get('l3at', 120)) or (it == ('Pc', 3) and st['cnt'] < st['pi3'] + cfg.get('pdm', 30))):
                if len(pool) <= cfg.get('keep', 8): return False
                k = next((n for n, x in enumerate(lq) if len(x) == 3 and lv(x) < 3), None)
                if k is None: return False
                lq.insert(0, lq.pop(k)); it = lq[0]
            if it == ('Pi', 3): st['pi3'] = st['cnt']
            if it[0] in ('H0', 'H1', 'W'):
                pl = poolB if (it[0] == 'W' and it[1] < 2) else pool
                if not pl: return False
                if a.vm_n - a.vm_done >= cfg.get('maxout', 40): return False
                lq.pop(0); p2_load(p, it[0], it[1], it[2], pl.pop(0)); return True
            if it[0] == 'Pi':
                lq.pop(0); pid[it[1]] = a.vm(poll_load(FL3, vFL2, 128 * it[1])); return True
            if it[0] == 'Pc':
                lq.pop(0)
                assert sch.keys.get('pub2') and (it[1] == 2 or sch.keys.get('pub3'))
                a.wait(vm=pid[it[1]]); stamp(a, f'l{it[1]}w')
                poll_check(FL3, vFL2, 128 * it[1], None)(a)
                if it[1] == 2: a.e('s_barrier')
                stamp(a, f'l{it[1]}ok'); st['lvl'] = it[1]
                for _ in range(cfg.get('burst', 4)):
                    if lq and lq[0][0] not in ('Pc', 'B'): next_load()
                return True
        def red_writes(ps, rt):
            yield ('delay', 4)
            for ct in range(5):
                yield ('lds', f'ds_write_b128 v{EAw}, {V(ACC[ps]+4*(rt*5+ct),4)} offset:{rt*5120+ct*64}', f'rw{ps}')
        def red0_rest():
            A0 = ACC[0]
            yield ('call', lambda: st.__setitem__('b2', cfg.get('b2r', 2)))
            yield ('delay', 3)
            yield ('wl', 'rw0')
            yield ('forcebar',)
            for i in range(5):
                for q in range(4):
                    yield ('lds', f'ds_read_b128 {V(A0+16*i+4*q,4)}, v{EAr} offset:{q*20480+64*i}', f'rr{i}')
            yield ('delay', 2)
            XG = [A0 + 4, A0 + 12, A0 + 20, A0 + 28, A0 + 36, A0 + 44, A0 + 52]
            pos = lambda v: XG[v // 3] + v % 3
            done = 0
            for i in range(5):
                b = A0 + 16 * i
                yield ('wl', f'rr{i}')
                for k in range(4): yield ('v', f'v_add_f32 v{b+k}, v{b+k}, v{b+4+k}')
                for k in range(4): yield ('v', f'v_add_f32 v{b+8+k}, v{b+8+k}, v{b+12+k}')
                for k in range(4): yield ('v', f'v_add_f32 v{pos(4*i+k)}, v{b+k}, v{b+8+k}')
                while done < 7 and (3 * done + 2 < 4 * i + 4 or i == 4):
                    yield ('v', f'v_mov_b32 v{XG[done]+3}, v{vT}')
                    if done == 4: yield ('s', f's_add_u32 s{sXS}, s{sXS}, 4096')
                    yield ('vm', f'buffer_store_dwordx4 {V(XG[done],4)}, v{vL16}, s[{SW}:{SW+3}], s{sXS} offen offset:{1024*(done%4)} sc1', 'xst')
                    done += 1
            yield ('forcebar',)
            yield sitem('xst')
            yield ('call', lambda: (st.__setitem__('red0', True), st.__setitem__('b2', cfg.get('b2', 2)), pool.extend(range(A0 + 28, A0 + 80, 4))))
        XR_ = [ACC[0] + 4 * g for g in range(7)]
        xl_txt = lambda g: f'buffer_load_dwordx4 {V(XR_[g],4)}, v{vL16}, s[{SW}:{SW+3}], s{sXL if g < 4 else sXS} offen offset:{1024*(g%4)} sc1'
        def xch_load():
            yield ('s', f's_add_u32 s{sXS}, s{sXL}, 4096')
            for g in range(7):
                yield ('vm', xl_txt(g), f'xl{g}')
                yield ('delay', 2)
        def xch_add():
            t0 = XR_[0] + 3
            chk_ = [f'v_bitop3_b32 v{XR_[g]+3}, v{XR_[g]+3}, v{XR_[g+1]+3}, v{vT} bitop3:0x7e' for g in (0, 2, 4)]
            chk_ += [f'v_xor_b32 v{XR_[6]+3}, v{XR_[6]+3}, v{vT}', f'v_or3_b32 v{t0}, v{t0}, v{XR_[2]+3}, v{XR_[4]+3}', f'v_or_b32 v{t0}, v{t0}, v{XR_[6]+3}']
            yield ('wv', 'xl6')
            yield sitem('xw')
            for ln in chk_: yield ('v', ln)
            def chk(a):
                slow = a.newlabel('slow'); ok = a.newlabel('ok')
                a.e(f'v_cmp_ne_u32 vcc, 0, v{t0}\ns_nop 1\ns_cmp_lg_u64 vcc, 0\ns_cbranch_scc1 {slow}')
                a.label(ok)
                a.cold.append(f'{slow}:\ns_mov_b32 s{sCNT}, 0\n{slow}_l:\ns_sleep 1\n' + '\n'.join(xl_txt(g) for g in range(7)) + '\ns_waitcnt vmcnt(0)\n' + '\n'.join(chk_) + f'''
v_cmp_ne_u32 vcc, 0, v{t0}
s_add_u32 s{sCNT}, s{sCNT}, 1
s_cmp_gt_u32 s{sCNT}, {SPIN}
s_cbranch_scc1 {ok}
s_cmp_lg_u64 vcc, 0
s_cbranch_scc1 {slow}_l
s_branch {ok}
''')
            yield ('raw', chk, 4)
            yield sitem('xok')
            for v in range(20): yield ('v', f'v_add_f32 v{BQ[v//4]+v%4}, v{BQ[v//4]+v%4}, v{XR_[v//3]+v%3}')
        st['cnt'] = 0
        for _ in range(cfg.get('ypre', 2)): next_load()
        cnt = 0; ratio = cfg.get('ratio', 4)
        wuse = {i: 0 for i in range(16)}
        for bn, (ps, blk) in enumerate(blocks):
            need = [(f'H{ps}', i, rt) for i, rt in blk] + [('W', i, j) for i, rt in blk for j in range(5)]
            guard = 0
            while any(k not in p.id for k in need):
                if not next_load(True):
                    a.wait(vm=a.vm_done + 4)
                guard += 1; assert guard < 2000, (bn, lq[:3], len(pool))
            stamp(a, f'b{bn}')
            if bn == 22: assert st.get('red0')
            for i, rt in blk:
                a.wait(vm=max(p.id[k] for k in [(f'H{ps}', i, rt)] + [('W', i, j) for j in range(5)]))
                for ct in range(5):
                    d = ACC[ps] + 4 * (rt * 5 + ct)
                    c = '0' if i == 0 else V(d, 4)
                    a.e(f'v_mfma_f32_16x16x32_bf16 {V(d,4)}, {R(p.buf["W",i,ct],4)}, {R(p.buf[f"H{ps}",i,rt],4)}, {c}')
                    cnt += 1; st['cnt'] = cnt
                    did = next_load() if cnt % ratio == 0 else False
                    s2.fill(0 if did else st.get('b2', cfg.get('b2', 1)))
                r = p.buf[f'H{ps}', i, rt]
                pool.append(r)
                wuse[i] += 1
                if wuse[i] == (8 if (i < 8 or PURE) else 4):
                    if i >= 2:
                        for ct in range(5): pool.append(p.buf['W', i, ct])
            if bn == 3: s2.add(chain(base_loads(XQ0), [('delay', cfg.get('bdelay', 20))], base_calc(XQ0), [('call', lambda: pool.extend(XQ0))]))
            if len(blk) == 3:
                assert st.get('ep')
                s2.add(red_writes(ps, blk[0][1]))
                if bn == bred: s2.add(red0_rest())
            if bn == cfg.get('xlat', 21): s2.add(xch_load())
            if bn == cfg.get('xaat', 24): s2.add(xch_add())
        assert not lq
        stamp(a, 'mfend'); dbg(5)
        a.e('s_nop 7')
        s2.tick(True); s2.drain()
        assert st.get('base') and not s2.timers and not s2.barq
        a.wait_all(vm=False)
        a.e('s_barrier')
        A1 = ACC[1]
        rd = {}
        for i in range(5):
            for q in range(4):
                rd[i, q] = a.lds(f'ds_read_b128 {V(A1+16*i+4*q,4)}, v{EAr} offset:{q*20480+64*i}')
        for i in range(5):
            a.wait(lg=rd[i, 3])
            b = A1 + 16 * i; B = BX['b'][i]
            for k in (0, 2):
                a.e(f'v_pk_add_f32 {P(b+k)}, {P(b+k)}, {P(b+4+k)}\nv_pk_add_f32 {P(b+8+k)}, {P(b+8+k)}, {P(b+12+k)}')
            for k in (0, 2): a.e(f'v_pk_add_f32 {P(B+k)}, {P(B+k)}, {P(b+k)}')
            for k in (0, 2): a.e(f'v_pk_add_f32 {P(B+k)}, {P(B+k)}, {P(b+8+k)}')
            a.vm(f'buffer_store_dwordx4 {V(B,4)}, v{EAo}, s[{SO}:{SO+3}], s{sOO} offen offset:{64*i} {cfg.get("ost", "").replace("_", " ")}')
        stamp(a, 'st')
        stamp_out(a)
        if ENC[0]:
            a.e('s_waitcnt vmcnt(0)'); stamp(a, 'fin')
            lp = a.newlabel('pad')
            a.e(f's_nop 1\nv_readlane_b32 s4, v0, 0\nv_readlane_b32 s5, v0, 1\ns_nop 3\ns_sub_u32 s5, s5, s4\ns_lshl_b32 s5, s5, 2\ns_add_u32 s5, s5, 3000')
            if typ == 'B': a.e('s_mov_b32 s5, 0')
            a.label(lp)
            a.e(f's_sleep 2\ns_memrealtime s[6:7]\ns_waitcnt lgkmcnt(0)\ns_sub_u32 s6, s6, s4\ns_cmp_lt_u32 s6, s5\ns_cbranch_scc1 {lp}')
        if cfg.get('dbg'):
            a.e('s_waitcnt vmcnt(0)'); dbg(6)
            if cfg.get('pad'):
                lp = a.newlabel('pad')
                if 'padwg' in cfg: a.e(f's_cmp_lg_u32 s2, {cfg["padwg"]}\ns_cbranch_scc1 L_end')
                a.label(lp)
                a.e(f's_sleep 2\ns_memrealtime s[0:1]\ns_waitcnt lgkmcnt(0)\ns_sub_u32 s0, s0, s100\ns_cmp_lt_u32 s0, {cfg["pad"]}\ns_cbranch_scc1 {lp}')
            a.e(f'''s_or_b32 s0, s3, s2
s_cmp_eq_u32 s0, 0
s_cselect_b32 s1, 0, {OOB}
s_cmp_eq_u32 s0, 200
s_cselect_b32 s1, 32, s1
v_lshlrev_b32 v4, 2, v1
v_mov_b32 v6, s101
v_readlane_b32 s0, v0, 63
v_add_u32 v4, s1, v4
s_nop 1
v_mov_b32 v7, s0
v_cmp_gt_u32 vcc, 64, v4
v_add_co_u32 v6, s[4:5], v6, v4
s_nop 1
v_addc_co_u32 v7, s[4:5], 0, v7, s[4:5]
s_and_b64 exec, vcc, 0xff
s_cbranch_execz L_end
global_store_dword v[6:7], v0, off''')
        a.e('s_endpgm')
    for s in a.cold: a.e(s)
    a.label('L_end')
    a.e('s_endpgm')
    return a

HEADER = open('parallel_sum__ssm_conv_s5__glu_gated_glu__prompt.s.ref').read().split('; Override launch')[0]
def assemble(a):
    out = HEADER + '; @launch grid=(256,1,1) block=(256,1,1) lds=163840\n'
    out += '.amdgcn_target "amdgcn-amd-amdhsa--gfx950"\n.text\n'
    errs = check_hazards(a.lines)
    for e in errs: print('HAZARD', e)
    assert not errs
    out += a.text()
    out += f'''.section .rodata,"a"
.p2align 6
.amdhsa_kernel {KNAME}
  .amdhsa_next_free_vgpr 512
  .amdhsa_next_free_sgpr 102
  .amdhsa_accum_offset 256
  .amdhsa_group_segment_fixed_size 0
  .amdhsa_kernarg_size 128
  .amdhsa_user_sgpr_count 2
  .amdhsa_user_sgpr_kernarg_segment_ptr 1
  .amdhsa_system_sgpr_workgroup_id_x 1
.end_amdhsa_kernel
'''
    return out
if __name__ == '__main__':
    cfg = dict(k1map='R', slots=6, u1all=1, slotsC=8, slotsK=7, ratio=4, yevery=16, pure=1, b2=2, b2r=4, pubat=40, p2pos=5, wtail=12, maxout=200, ntx=1, rpos=17, rtdelay=16, f1delay=20, lead2=4, pfl=16, pfmask=3)
    for kv in sys.argv[2:]:
        k, v = kv.split('=')
        if k == 'stamp': STAMP[0] = True
        elif k == 'sleep': SLEEP[0] = int(v)
        elif k == 'enc': ENC[0] = v
        elif k == 'only': STAMP[0] = True; ONLY[0] = v.split('.'); cfg['only'] = v
        else: cfg[k] = int(v) if v.isdigit() else v
    txt = assemble(kernel(cfg))
    if cfg.get('vlog'): print(' '.join(f'{n}:{v}/{m}/{l}' for n, v, m, l in VLOG))
    if STAMP[0]: txt = '; STAMPS ' + ','.join(SNAMES) + '\n; CFG ' + str(cfg) + '\n' + txt
    open(sys.argv[1], 'w').write(txt)
```
